```python
import torch

def _softmax(x, axis=-1):
    return torch.softmax(x, dim=axis)
def _gelu(x):
    return torch.nn.functional.gelu(x, approximate="tanh")
def _silu(x):
    return torch.nn.functional.silu(x)
def _sigmoid(x):
    return torch.sigmoid(x)
def _layernorm(x, axis=-1, eps=1e-5):
    m = x.mean(dim=axis, keepdim=True)
    v = x.var(dim=axis, keepdim=True, unbiased=False)
    return (x - m) / torch.sqrt(v + eps)
def _scatter_add(tgt, idx, src, axis=0):
    return tgt.clone().index_add_(axis, idx, src)
def _segment_sum(src, seg, n):
    out = torch.zeros((n,) + src.shape[1:], dtype=src.dtype)
    return out.index_add_(0, seg, src)
def _pad(x, pw):
    flat = tuple(v for pair in reversed(pw) for v in pair)
    return torch.nn.functional.pad(x, flat)

kernel_name = 'standalone__gqa_softmax__near_ridge'

def setup_inputs():

    _w = (lambda a: (lambda t: t.to(torch.bfloat16) if t.is_floating_point() else t)(torch.as_tensor(a)))
    B, Hq, Hkv, Sq, Sk, D = 8, 32, 16, 256, 1024, 128
    return {
        "q": _w((lambda *s: torch.randn(*s, dtype=torch.bfloat16) * 0.8)(B, Hq, Sq, D)),
        "k": _w((lambda *s: torch.randn(*s, dtype=torch.bfloat16) * 0.8)(B, Hkv, Sk, D)),
        "v": _w((lambda *s: torch.randn(*s, dtype=torch.bfloat16) * 0.05)(B, Hkv, Sk, D)),
    }

def reference(q, k, v):
    B, Hq, Sq, D = q.shape
    Hkv = k.shape[1]
    rep = Hq // Hkv
    k = (lambda x, n, axis: torch.repeat_interleave(x, n, dim=axis))(k, rep, axis=1)
    v = (lambda x, n, axis: torch.repeat_interleave(x, n, dim=axis))(v, rep, axis=1)
    scale = D ** -0.5
    scores = torch.einsum("bhqd,bhkd->bhqk", q, k) * scale
    p = _softmax(scores, axis=-1)
    return torch.einsum("bhqk,bhkd->bhqd", p, v)
```

```python
import re

TRANS = ("v_exp_f32", "v_log_f32", "v_rcp_f32", "v_rsq_f32", "v_sqrt_f32", "v_sin_f32", "v_cos_f32")
NO_DST_S = ("s_cmp", "s_waitcnt", "s_cbranch", "s_barrier", "s_nop", "s_setprio", "s_branch", "s_endpgm",
            "s_sleep", "s_setpc", "s_bitcmp")


def regs_of(tok):
    tok = tok.strip()
    neg = tok.lstrip("-|").rstrip("|")
    m = re.fullmatch(r"abs\((.*)\)", neg)
    if m:
        neg = m.group(1)
    m = re.fullmatch(r"([vas])\[(\d+):(\d+)\]", neg)
    if m:
        return [(m.group(1), i) for i in range(int(m.group(2)), int(m.group(3)) + 1)]
    m = re.fullmatch(r"([vas])(\d+)", neg)
    if m:
        return [(m.group(1), int(m.group(2)))]
    if neg in ("vcc", "vcc_lo", "vcc_hi"):
        return [("x", "vcc")]
    if neg == "m0":
        return [("x", "m0")]
    if neg in ("exec", "exec_lo", "exec_hi"):
        return [("x", "exec")]
    return []


class I:
    def __init__(self, text, note=None):
        self.text = text.strip()
        self.note = note
        t = self.text.split(";")[0].strip()
        self.is_label = t.endswith(":") or t.startswith(".")
        self.op = "" if self.is_label else t.split()[0]
        self.dst, self.src = [], []
        self.a = self.b = self.c = []
        if self.is_label or not self.op:
            return
        rest = t[len(self.op):].strip()
        ops = [o.strip() for o in rest.split(",")] if rest else []
        if ops:
            last = ops[-1].split()
            ops[-1] = last[0] if last else ""
            self.mods = last[1:]
        else:
            self.mods = []
        op = self.op
        R = regs_of
        if op.startswith("v_mfma"):
            self.dst = R(ops[0]); self.a = R(ops[1]); self.b = R(ops[2]); self.c = R(ops[3])
            self.src = self.a + self.b + self.c
        elif op.startswith("v_permlane") and "swap" in op:
            self.dst = R(ops[0]) + R(ops[1]); self.src = list(self.dst)
        elif op.startswith("ds_read") or op.startswith("ds_bpermute") or op.startswith("ds_swizzle"):
            self.dst = R(ops[0]); self.src = sum((R(o) for o in ops[1:]), [])
        elif op.startswith("ds_write"):
            self.src = sum((R(o) for o in ops), [])
        elif op.startswith("buffer_load") or op.startswith("global_load"):
            if "lds" in self.mods:
                self.src = sum((R(o) for o in ops), []) + [("x", "m0")]
            else:
                self.dst = R(ops[0]); self.src = sum((R(o) for o in ops[1:]), [])
        elif op.startswith("buffer_store") or op.startswith("global_store"):
            self.src = sum((R(o) for o in ops), [])
            self.data = R(ops[0]) if op.startswith("buffer_store") else R(ops[1])
        elif op.startswith("s_") and op.startswith(NO_DST_S):
            self.src = sum((R(o) for o in ops), [])
            if "vcc" in op:
                self.src += [("x", "vcc")]
        elif op.startswith("s_swappc"):
            self.dst = R(ops[0]); self.src = R(ops[1])
        elif op.startswith("s_and_saveexec") or op.startswith("s_or_saveexec"):
            self.dst = R(ops[0]) + [("x", "exec")]; self.src = R(ops[1]) + [("x", "exec")]
        else:
            self.dst = R(ops[0]); self.src = sum((R(o) for o in ops[1:]), [])
            if op.startswith(("v_fmac", "v_dot2c", "v_pk_fmac", "s_addk", "s_mulk", "v_writelane")):
                self.src += self.dst
            if op.startswith(("v_add_co", "v_addc_co", "v_sub_co", "v_subb_co")):
                self.dst += R(ops[1])
            if op.startswith("v_cndmask") and len(ops) == 3:
                self.src += [("x", "vcc")]

    @property
    def is_mfma(self): return self.op.startswith("v_mfma")
    @property
    def passes(self):
        if "32x32x16" in self.op: return 8
        if "16x16x32" in self.op: return 4
        if "4x4x4" in self.op: return 2
        raise ValueError(self.op)
    @property
    def is_valu(self): return self.op.startswith("v_") and not self.is_mfma
    @property
    def is_trans(self): return self.op.startswith(TRANS)
    @property
    def is_ds(self): return self.op.startswith("ds_")
    @property
    def is_vmem(self): return self.op.startswith(("buffer_", "global_"))
    @property
    def is_salu(self): return self.op.startswith("s_")
    @property
    def states(self):
        if self.is_label or not self.op: return 0
        if self.op == "s_nop": return int(self.text.split()[1], 0) + 1
        return 1
    @property
    def cost(self):
        if self.is_label or not self.op: return 0
        if self.is_mfma: return 8
        if self.is_trans: return 8
        if self.op == "s_nop": return 4 * self.states
        return 4

    def __str__(self):
        if self.is_label: return self.text
        return "  " + self.text + (f"  ; {self.note}" if self.note else "")


def check(insts, name="", verbose=True):
    probs = []
    seq = [i for i in insts if not i.is_label and i.op]
    n = len(seq)
    pos = [0] * (n + 1)
    for i, x in enumerate(seq):
        pos[i + 1] = pos[i] + x.states

    def dist(i, j):
        return pos[j] - pos[i + 1]

    W = 40
    for j, y in enumerate(seq):
        ys, yd = set(y.src), set(y.dst)
        for i in range(j - 1, max(-1, j - W), -1):
            d = dist(i, j)
            if d >= 20:
                break
            x = seq[i]
            xd, xs = set(x.dst), set(x.src)
            need = 0; why = ""
            def req(k, w):
                nonlocal need, why
                if k > need: need, why = k, w
            vx = {r for r in xd if r[0] in "va"}
            if x.is_valu:
                if y.is_mfma and vx & ys: req(2, "VALU->MFMA src")
                if x.is_trans and y.is_valu and not y.is_trans and vx & ys: req(1, "trans->VALU")
                if x.is_trans and y.is_trans and vx & ys: req(1, "trans->trans(pad)")
                if y.op.startswith("v_permlane") and vx & ys: req(2, "VALU->permlane")
                if y.op.startswith(("v_readfirstlane", "v_readlane")) and vx & ys: req(1, "VALU->readlane")
                if "dpp" in y.text or "row_" in y.text:
                    if vx & ys: req(2, "VALU->DPP")
                sx = {r for r in xd if r[0] == "s" or r == ("x", "vcc")}
                if y.is_vmem and sx & ys: req(5, "VALU sgpr->VMEM")
                if y.is_valu and sx & ys: req(2, "VALU sgpr->VALU const")
                if ("x", "exec") in xd and y.is_mfma: req(4, "exec->MFMA")
            if x.is_mfma:
                p = x.passes
                t_c = {2: 4, 4: 6, 8: 10}[p]; t_ab = {2: 5, 4: 8, 8: 12}[p]; t_war = {2: 1, 4: 3, 8: 7}[p]
                if y.is_mfma:
                    if set(y.c) & xd and not (y.c == x.dst and y.passes == p): req(t_c, "MFMA D->MFMA C overlap")
                    if set(y.c) & xd and y.c == x.dst and p == 2: req(2, "MFMA chain 2pass")
                    if (set(y.a) | set(y.b)) & xd: req(t_ab, "MFMA D->MFMA A/B")
                    if set(y.dst) & xd and not (y.c == x.dst): req(t_ab, "MFMA D->MFMA D WAW(pad)")
                elif y.is_valu or y.is_ds or y.is_vmem:
                    if (ys | yd) & xd: req(t_ab, "MFMA D->VALU/mem")
                    if y.is_valu and yd & set(x.c): req(t_war, "MFMA C WAR")
            if x.is_salu and ("x", "m0") in xd and y.is_vmem and ("x", "m0") in ys: req(1, "M0->DMA")
            if x.is_salu and ("x", "exec") in xd and False: pass
            if x.is_vmem and "store" in x.op and ("x4" in x.op or "x3" in x.op):
                if yd & set(x.data): req(2 if y.is_valu else 1, "store data WAR")
            if need > d:
                probs.append(f"{name}: need {need} got {d} [{why}]\n    {x}\n    {y}")
    lg = []
    vm = []
    for j, y in enumerate(seq):
        if y.op == "s_waitcnt":
            m = re.search(r"lgkmcnt\((\d+)\)", y.text)
            if m:
                k = int(m.group(1)); lg = lg[len(lg) - k:] if k < len(lg) and k > 0 else ([] if k == 0 else lg)
            m = re.search(r"vmcnt\((\d+)\)", y.text)
            if m:
                k = int(m.group(1)); vm = vm[len(vm) - k:] if k < len(vm) and k > 0 else ([] if k == 0 else vm)
            continue
        touched = set(y.src) | set(y.dst)
        for o in lg + vm:
            if o & touched:
                probs.append(f"{name}: touches register with load in flight: {y}")
        if y.is_ds or y.op.startswith(("s_load", "s_memtime", "s_memrealtime")):
            lg.append(set(y.dst))
            if len(lg) > 15 and verbose:
                probs.append(f"{name}: note >15 lgkm outstanding at {y}")
        if y.is_vmem:
            vm.append(set(y.dst))
            if len(vm) > 63:
                probs.append(f"{name}: >63 vm outstanding at {y}")
    return probs
```

```python
import sys, struct, math, argparse
from asmlib import I, check

KNAME = "standalone__gqa_softmax__near_ridge_kernel"
CSC = math.log2(math.e) / math.sqrt(128.0)
def f2u(x): return struct.unpack("<I", struct.pack("<f", x))[0]
THR = f2u(2.0 ** 20)

def S(buf, qb): return 32 * buf + 16 * qb
def NEGM(qb): return 64 + 16 * qb
def KF(d): return 96 + 4 * d
def VF(f): return 128 + 4 * f
def KA(d): return 160 + d
def VA(db): return 168 + db
def KD(n): return 172 + n
VD = 176
def L(qb): return 177 + qb
def X(qb): return 179 + qb
T = 181
def Q(qb, d): return 192 + (qb * 8 + d) * 4
def O(db, qb): return (qb * 4 + db) * 16
def vr(b, n): return f"v[{b}:{b+n-1}]"
def ar(b, n): return f"a[{b}:{b+n-1}]"

SQ, SK, SV, SO = 12, 16, 20, 24
S_W = 28
S_KW = 29
S_G = 30
S_T0, S_T1, S_T2 = 31, 32, 33
S_PB = 34
S_CNT = 35
S_C = 36
S_WSO = 38
S_STAMP = 40
SWS = 44
def srd(b): return f"s[{b}:{b+3}]"


class Gen:
    def __init__(self, a):
        self.a = a
        self.out = []
        self.slow = []
        self.dma_log = []
        self.nstamp = 0

    def e(self, t, note=None):
        self.out.append(I(t, note))

    def stamp(self):
        if not self.a.stamp: return []
        k = self.nstamp; self.nstamp += 1
        r = [I(f"s_memtime s[{S_STAMP}:{S_STAMP+1}]"), I(f"s_memrealtime s[{S_STAMP+2}:{S_STAMP+3}]"),
             I("s_waitcnt lgkmcnt(0)")]
        return r + [I(f"v_writelane_b32 v{T+9}, s{S_STAMP}, {k}"), I(f"v_writelane_b32 v{T+10}, s{S_STAMP+2}, {k}")]

    def dma_tile(self, which, t, looped=False):
        base = (0 if which == "K" else 65536)
        r = []
        if looped:
            m0 = I(f"s_add_u32 m0, s{S_PB}, {base + (t % 2) * 16384}")
        else:
            m0 = I(f"s_add_u32 m0, s{S_KW}, {base + (t % 4) * 16384}")
        for n in range(4):
            vo = KD(n) if which == "K" else VD
            sr = SK if which == "K" else SV
            ld = I(f"buffer_load_dwordx4 v{vo}, {srd(sr)}, s{S_G} offen offset:{n*1024} {self.a.kvmod} lds".replace("  ", " "),
                   f"DMA {which}{t}.{n}")
            ld.dma = f"{which}{t}"
            r.append(ld)
        return m0, r

    def vm_needed(self, names):
        last = max(i for i, n in enumerate(self.dma_log) if n in names)
        return len(self.dma_log) - 1 - last

    def emit(self, ins):
        for i in ins:
            if hasattr(i, "dma"):
                self.dma_log.append(i.dma)
            self.out.append(i)

    def qk_mfmas(self, buf, zero_c=False):
        order = [(d, q) for d in range(6) for q in range(2)] + [(6, 0), (7, 0), (6, 1), (7, 1)]
        r = []
        for d, q in order:
            c = vr(S(buf, q), 16)
            if d == 0:
                c = "0" if zero_c else vr(NEGM(q), 16)
            r.append(I(f"v_mfma_f32_32x32x16_bf16 {vr(S(buf,q),16)}, {vr(KF(d),4)}, {vr(Q(q,d),4)}, {c}"))
        return r

    def pv_mfmas(self, buf, first=False):
        r = []
        for s in range(2):
            for db in range(4):
                for q in range(2):
                    c = "0" if (first and s == 0) else ar(O(db, q), 16)
                    r.append(I(f"v_mfma_f32_32x32x16_bf16 {ar(O(db,q),16)}, {vr(VF(s*4+db),4)}, {vr(S(buf,q)+8*s,4)}, {c}"))
        return r

    def k_reads(self, u, looped=False, areg=KA):
        t, kb = u // 2, u % 2
        off = ((t % 2) if looped else (t % 4)) * 16384 + kb * 8192
        return [I(f"ds_read_b128 {vr(KF(d),4)}, v{areg(d)} offset:{off}") for d in range(8)]

    def v_reads(self, u, looped=False):
        t, kb = u // 2, u % 2
        off = ((t % 2) if looped else (t % 4)) * 16384 + kb * 8192
        r = []
        for s in range(2):
            for db in range(4):
                for tt in range(2):
                    b = VF(s * 4 + db) + 2 * tt
                    r.append(I(f"ds_read_b64_tr_b16 {vr(b,2)}, v{VA(db)} offset:{off + s*4096 + tt*2048}"))
        return r

    def sm_stream(self, buf):
        r = []
        def post(e):
            q, i = e // 16, e % 16
            b = S(buf, q)
            if i == 0: return
            if i == 1:
                r.append((e, I(f"v_add_f32 v{X(q)}, v{b}, v{b+1}")))
            else:
                r.append((e, I(f"v_add_f32 v{X(q)}, v{X(q)}, v{b+i}")))
            if i % 2 == 1:
                s, jj = i // 8, (i % 8) // 2
                r.append((e, I(f"v_cvt_pk_bf16_f32 v{b+8*s+jj}, v{b+i-1}, v{b+i}")))
        for e in range(32):
            q, i = e // 16, e % 16
            r.append((e, I(f"v_exp_f32 v{S(buf,q)+i}, v{S(buf,q)+i}")))
            if e >= 1: post(e - 1)
        r.append((31, I("s_nop 0")))
        post(31)
        return r

    def maxfix(self, buf, other_buf, first):
        r = []
        t0, t1, t2 = T, T + 1, T + 2
        for q in range(2):
            b = S(buf, q)
            r.append(I(f"v_max3_f32 v{t0}, v{b}, v{b+1}, v{b+2}"))
            r.append(I(f"v_max3_f32 v{t1}, v{b+3}, v{b+4}, v{b+5}"))
            for i in (6, 10):
                r.append(I(f"v_max3_f32 v{t0}, v{t0}, v{b+i}, v{b+i+1}"))
                r.append(I(f"v_max3_f32 v{t1}, v{t1}, v{b+i+2}, v{b+i+3}"))
            r.append(I(f"v_max3_f32 v{t0}, v{t0}, v{b+14}, v{b+15}"))
            r.append(I(f"v_max_f32 v{t0}, v{t0}, v{t1}"))
            r.append(I(f"v_mov_b32 v{t1}, v{t0}"))
            r.append(I("s_nop 1"))
            r.append(I(f"v_permlane32_swap_b32 v{t0}, v{t1}"))
            r.append(I("s_nop 1"))
            if first:
                r.append(I(f"v_max_f32 v{t0}, v{t0}, v{t1}"))
                r.append(I(f"v_sub_f32 v{NEGM(q)}, 0, v{t0}"))
                for i in range(1, 16):
                    r.append(I(f"v_mov_b32 v{NEGM(q)+i}, v{NEGM(q)}"))
            else:
                r.append(I(f"v_max3_f32 v{t0}, v{t0}, v{t1}, 0"))
                r.append(I(f"v_exp_f32 v{t2}, -v{t0}"))
                for i in range(16):
                    r.append(I(f"v_sub_f32 v{NEGM(q)+i}, v{NEGM(q)+i}, v{t0}"))
                r.append(I(f"v_mul_f32 v{L(q)}, v{L(q)}, v{t2}"))
                if other_buf is not None:
                    for i in range(16):
                        r.append(I(f"v_sub_f32 v{S(other_buf,q)+i}, v{S(other_buf,q)+i}, v{t0}"))
                for db in range(4):
                    for i in range(0, 16, 4):
                        for k in range(4):
                            r.append(I(f"v_accvgpr_read_b32 v{T+3+k}, a{O(db,q)+i+k}"))
                        for k in range(4):
                            r.append(I(f"v_mul_f32 v{T+3+k}, v{T+3+k}, v{t2}"))
                        for k in range(4):
                            r.append(I(f"v_accvgpr_write_b32 a{O(db,q)+i+k}, v{T+3+k}"))
            for i in range(16):
                r.append(I(f"v_sub_f32 v{b+i}, v{b+i}, v{t0}"))
        return r

    def slow_path(self, u, label, looped, has_next, xored):
        cur, nxt = u % 2, (u + 1) % 2
        r = [I(f"{label}:")]
        if xored:
            for d in range(8): r.append(I(f"v_xor_b32 v{KA(d)}, 0x8000, v{KA(d)}"))
        r += self.k_reads(u, looped)
        if xored:
            for d in range(8): r.append(I(f"v_xor_b32 v{KA(d)}, 0x8000, v{KA(d)}"))
        r.append(I("s_waitcnt lgkmcnt(0)"))
        r += self.qk_mfmas(cur)
        r.append(I("s_nop 15"))
        if u == 0 and not looped:
            pass
        r += self.maxfix(cur, nxt if has_next else None, False)
        r += [x for _, x in self.sm_stream(cur)]
        r.append(I("s_nop 1"))
        r.append(I(f"s_branch {label}_ret"))
        return r

    def schedule(self, mfmas, pinned, stream, pre=None, frac=(0.0, 1.0), total=None, last_gap=None):
        G = len(mfmas)
        out = list(pre or [])
        if last_gap is None: last_gap = G - 1
        pc = sum(i.cost for g in range(G) for i in pinned.get(g, []))
        sc = sum(i.cost for i in stream) if total is None else total
        tot = pc + sc
        cum = 0
        for g in range(G):
            out.append(mfmas[g])
            for i in pinned.get(g, []):
                out.append(i); cum += i.cost
            target = tot * min(1.0, (g + 1) / (last_gap + 1))
            while stream and sc > 0 and cum + stream[0].cost / 2 <= target + 1e-6:
                i = stream.pop(0); out.append(i); cum += i.cost; sc -= i.cost
            if g == last_gap:
                while stream and sc > 0:
                    i = stream.pop(0); out.append(i); cum += i.cost; sc -= i.cost
        return out

    def phaseA(self, u, rest, looped=False, has_qk=True, xor_k=False, xor_v=False):
        a = self.a
        cur, nxt = u % 2, (u + 1) % 2
        vreads = self.v_reads(u, looped)
        label = f"L_slow_{u}" + ("_l" if looped else "")
        chk = [I(f"v_max_f32 v{T}, v{X(0)}, v{X(1)}"), I(f"v_cmp_lt_f32 vcc, {THR:#x}, v{T}")]
        stream = list(rest) + chk
        if has_qk:
            pinned = {}
            plan = a.vplan
            k = 0
            for g, n in enumerate(plan):
                pinned[g] = vreads[k:k + n]; k += n
            assert k == 16
            if xor_k:
                for d in range(8):
                    pinned.setdefault(8 + d, []).append(I(f"v_xor_b32 v{KA(d)}, 0x8000, v{KA(d)}"))
            if xor_v:
                for db in range(4):
                    pinned.setdefault(12 + db, []).append(I(f"v_xor_b32 v{VA(db)}, 0x8000, v{VA(db)}"))
            o = self.schedule(self.qk_mfmas(nxt), pinned, stream, pre=[I("s_waitcnt lgkmcnt(0)")], last_gap=a.a_last)
        else:
            o = []
            k = 0
            for i in stream:
                o.append(i)
                if k < 16 and i.is_trans:
                    o += vreads[k:k + 2]; k += 2
            o += vreads[k:]
        o.append(I(f"s_cbranch_vccnz {label}"))
        o.append(I(f"{label}_ret:"))
        self.emit(o)
        self.slow += self.slow_path(u, label, looped, has_qk, xor_k or getattr(self, "k_xored", False))

    def phaseB(self, u, looped=False, has_next=True, has_kreads=True, dma=None, barrier=None, extra=None):
        a = self.a
        cur, nxt = u % 2, (u + 1) % 2
        pinned = {}
        if barrier is not None:
            pinned.setdefault(a.bar_gap, []).extend([I(f"s_waitcnt vmcnt({barrier})"), I("s_barrier")])
        if has_kreads:
            kr = self.k_reads(u + 2, looped)
            for d, g in enumerate(a.kplan):
                pinned.setdefault(g, []).append(kr[d])
        if dma is not None:
            m0, lds, post = dma
            gs = a.dplan
            pinned.setdefault(gs[0] - 1, []).append(m0)
            for n in range(4):
                pinned.setdefault(gs[n], []).append(lds[n])
            pinned.setdefault(gs[3] + 1, []).extend(post)
        for g, ins in (extra or {}).items():
            pinned.setdefault(g, []).extend(ins)
        stream = [I(f"v_add_f32 v{L(0)}, v{L(0)}, v{X(0)}"), I(f"v_add_f32 v{L(1)}, v{L(1)}, v{X(1)}")]
        rest = []
        if has_next:
            sm = self.sm_stream(nxt)
            idx = next(i for i, (e, x) in enumerate(sm) if e == a.split and x.is_trans)
            stream += [x for _, x in sm[:idx]]
            rest = [x for _, x in sm[idx:]]
        o = self.schedule(self.pv_mfmas(cur, first=(u == 0 and not looped and False)), pinned, stream,
                          pre=[I("s_waitcnt lgkmcnt(0)")])
        self.emit(o)
        return rest

    def prologue(self):
        e = self.e
        a = self.a
        e("s_cmp_ge_u32 s2, 256"); e("s_cbranch_scc1 L_end")
        e("s_load_dwordx4 s[4:7], s[0:1], 0"); e("s_load_dwordx4 s[8:11], s[0:1], 16")
        if a.stamp:
            e(f"s_load_dwordx2 s[{SWS}:{SWS+1}], s[0:1], 40")
        vl, vg, vt, vu = T, T + 1, T + 2, T + 3
        e(f"v_lshrrev_b32 v{vt}, 6, v0")
        e(f"v_and_b32 v{vl}, 63, v0", "lane")
        e(f"v_readfirstlane_b32 s{S_W}, v{vt}")
        e(f"s_and_b32 s{S_T0}, s2, 7"); e(f"s_lshr_b32 s{S_T1}, s2, 3")
        e(f"s_lshl_b32 s{S_T0}, s{S_T0}, 4"); e(f"s_lshr_b32 s{S_T2}, s{S_T1}, 1")
        e(f"s_add_u32 s{S_T0}, s{S_T0}, s{S_T2}", "kv head index")
        e(f"s_and_b32 s{S_T1}, s{S_T1}, 1"); e(f"s_lshl_b32 s{S_T2}, s{S_T0}, 1")
        e(f"s_add_u32 s{S_T1}, s{S_T1}, s{S_T2}", "q head index")
        e(f"s_lshl_b32 s{S_T0}, s{S_T0}, 18"); e(f"s_lshl_b32 s{S_T1}, s{S_T1}, 16")
        e(f"s_lshl_b32 s{S_KW}, s{S_W}, 12")
        e(f"v_lshrrev_b32 v{vg}, 4, v{vl}", "g = lane>>4")
        e(f"v_and_b32 v{vt}, 15, v{vl}")
        e(f"v_xor_b32 v{vu}, v{vt}, v{vg}")
        e(f"v_lshlrev_b32 v{vu}, 4, v{vu}")
        e(f"v_lshl_add_u32 v{vu}, v{vg}, 8, v{vu}")
        e(f"v_add_u32 v{KD(0)}, s{S_KW}, v{vu}")
        for n in range(1, 4): e(f"v_xor_b32 v{KD(n)}, {n<<6:#x}, v{KD(0)}")
        e(f"v_lshlrev_b32 v{vu}, 2, v{vg}")
        e(f"v_xor_b32 v{vu}, v{vt}, v{vu}")
        e(f"v_lshlrev_b32 v{vu}, 4, v{vu}")
        e(f"v_lshl_add_u32 v{vu}, v{vg}, 8, v{vu}")
        e(f"v_add_u32 v{VD}, s{S_KW}, v{vu}")
        e("s_waitcnt lgkmcnt(0)")
        for sr, p, off, n in ((SQ, 4, S_T1, 65536), (SK, 6, S_T0, 262144), (SV, 8, S_T0, 262144), (SO, 10, S_T1, 65536)):
            e(f"s_add_u32 s{sr}, s{p}, s{off}"); e(f"s_addc_u32 s{sr+1}, s{p+1}, 0")
            e(f"s_mov_b32 s{sr+2}, {n}"); e(f"s_mov_b32 s{sr+3}, 0x20000")
        e(f"s_lshl_b32 s{S_T0}, s{S_W}, 14")
        e(f"s_cmp_lt_u32 s{S_W}, 2"); e(f"s_cselect_b32 s{S_T1}, 0x20000, 0")
        e(f"s_add_u32 s{S_T0}, s{S_T0}, s{S_T1}", "q lds base")
        e(f"s_mul_i32 s{S_T1}, s{S_W}, 12288")
        for grp in range(4):
            e(f"s_add_u32 m0, s{S_T0}, {grp*4096}")
            if grp: e(f"s_add_u32 s{S_T1}, s{S_T1}, 4096")
            else: e("s_nop 0")
            for n in range(4):
                ld = I(f"buffer_load_dwordx4 v{KD(n)}, {srd(SQ)}, s{S_T1} offen offset:{n*1024} {a.qmod} lds".replace("  ", " "))
                ld.dma = f"Q{grp//2}"
                self.emit([ld])
        def tile(which, t):
            e(f"s_mov_b32 s{S_G}, {t*16384}")
            m0, lds = self.dma_tile(which, t)
            self.emit([m0, I("s_nop 0")] + lds)
        tile("K", 0); tile("V", 0); tile("K", 1); tile("V", 1)
        if a.stamp:
            e(f"s_mov_b32 s{SWS+2}, 0x1000000"); e(f"s_mov_b32 s{SWS+3}, 0x20000")
            e(f"s_lshl_b32 s{S_WSO}, s2, 2"); e(f"s_add_u32 s{S_WSO}, s{S_WSO}, s{S_W}"); e(f"s_lshl_b32 s{S_WSO}, s{S_WSO}, 9")
            e(f"v_mov_b32 v{T+9}, 0"); e(f"v_mov_b32 v{T+10}, 0")
            self.emit(self.stamp())
        e(f"v_and_b32 v{vt}, 31, v{vl}", "r")
        e(f"v_lshrrev_b32 v{vu}, 5, v{vl}", "h")
        e(f"v_and_b32 v{KA(1)}, 15, v{vl}")
        e(f"v_xor_b32 v{KA(1)}, v{KA(1)}, v{vu}")
        e(f"v_lshlrev_b32 v{KA(1)}, 4, v{KA(1)}")
        e(f"v_lshl_add_u32 v{KA(0)}, v{vt}, 8, v{KA(1)}")
        for d in range(1, 8): e(f"v_xor_b32 v{KA(d)}, {d<<5:#x}, v{KA(0)}")
        e(f"v_bfe_u32 v{vt}, v{vl}, 2, 2", "r4")
        e(f"v_lshl_add_u32 v{VA(0)}, v{vu}, 2, v{vt}")
        e(f"v_lshlrev_b32 v{VA(0)}, 8, v{VA(0)}")
        e(f"v_lshl_add_u32 v{VA(0)}, v{vt}, 6, v{VA(0)}")
        e(f"v_and_b32 v{vt}, 1, v{vg}")
        e(f"v_lshl_add_u32 v{VA(0)}, v{vt}, 5, v{VA(0)}")
        e(f"v_and_b32 v{vt}, 3, v{vl}")
        e(f"v_lshl_add_u32 v{VA(0)}, v{vt}, 3, v{VA(0)}")
        e(f"v_add_u32 v{VA(0)}, 0x10000, v{VA(0)}")
        for db in range(1, 4): e(f"v_xor_b32 v{VA(db)}, {db<<6:#x}, v{VA(0)}")
        for d in range(8): e(f"v_add_u32 v{32+d}, s{S_T0}, v{KA(d)}")
        e(f"s_mov_b32 s{S_C}, {f2u(CSC):#x}"); e(f"s_mov_b32 s{S_C+1}, {f2u(CSC):#x}")
        e(f"v_mov_b32 v{L(0)}, 0"); e(f"v_mov_b32 v{L(1)}, 0")
        for i in range(128): e(f"v_accvgpr_write_b32 a{i}, 0")
        for q in range(2):
            e(f"s_waitcnt vmcnt({self.vm_needed([f'Q{q}'])})")
            for d in range(8):
                e(f"ds_read_b128 {vr(Q(q,d),4)}, v{32+d} offset:{q*8192}")
            for d in range(8):
                e(f"s_waitcnt lgkmcnt({7-d})")
                for k in range(4):
                    r = Q(q, d) + k
                    t = 40 + 2 * k
                    e(f"v_lshlrev_b32 v{t}, 16, v{r}")
                    e(f"v_and_b32 v{t+1}, 0xffff0000, v{r}")
                for k in range(4):
                    t = 40 + 2 * k
                    e(f"v_pk_mul_f32 {vr(t,2)}, {vr(t,2)}, s[{S_C}:{S_C+1}]")
                for k in range(4):
                    t = 40 + 2 * k
                    e(f"v_cvt_pk_bf16_f32 v{Q(q,d)+k}, v{t}, v{t+1}")
        self.emit(self.stamp())
        e(f"s_waitcnt vmcnt({self.vm_needed(['K0'])})")
        e("s_barrier")
        self.emit(self.k_reads(0))
        tile("K", 2); tile("V", 2); tile("K", 3); tile("V", 3)
        e(f"s_mov_b32 s{S_G}, {4*16384}")
        self.emit(self.stamp())
        e("s_waitcnt lgkmcnt(0)")
        self.emit(self.qk_mfmas(0, zero_c=True))
        self.emit(self.k_reads(1))
        e("s_nop 7")
        self.emit(self.maxfix(0, None, True))
        sm = self.sm_stream(0)
        idx = next(i for i, (ee, x) in enumerate(sm) if ee == a.split and x.is_trans)
        self.emit([x for _, x in sm[:idx]])
        e(f"s_waitcnt vmcnt({self.vm_needed(['V0','K1'])})")
        e("s_barrier")
        self.emit(self.stamp())
        return [x for _, x in sm[idx:]]

    def epilogue(self):
        e = self.e
        a = self.a
        self.emit(self.stamp())
        t0 = T
        al = [T + 3, T + 5]
        for q in range(2):
            e(f"v_mov_b32 v{t0+q}, v{L(q)}")
        e("s_nop 1")
        for q in range(2):
            e(f"v_permlane32_swap_b32 v{t0+q}, v{L(q)}")
        e("s_nop 1")
        for q in range(2):
            e(f"v_add_f32 v{L(q)}, v{L(q)}, v{t0+q}")
        inv = [184, 186]
        for q in range(2):
            e(f"v_rcp_f32 v{inv[q]}, v{L(q)}")
        va = 188
        e(f"v_mbcnt_lo_u32_b32 v{va}, -1, 0"); e(f"v_mbcnt_hi_u32_b32 v{va}, -1, v{va}")
        e(f"v_lshrrev_b32 v{va+1}, 5, v{va}"); e(f"v_and_b32 v{va}, 31, v{va}")
        e(f"v_lshlrev_b32 v{va}, 8, v{va}"); e(f"v_lshl_add_u32 v{va}, v{va+1}, 4, v{va}")
        e(f"s_lshl_b32 s{S_T0}, s{S_W}, 14"); e(f"s_add_u32 s{S_T1}, s{S_T0}, 8192")
        e("s_nop 4")
        blk = 0
        for q in range(2):
            for db in range(4):
                tb = 16 * (blk % 8)
                pb = 128 + 8 * (blk % 4)
                blk += 1
                for i in range(16): e(f"v_accvgpr_read_b32 v{tb+i}, a{O(db,q)+i}")
                for i in range(0, 16, 2):
                    e(f"v_pk_mul_f32 {vr(tb+i,2)}, {vr(tb+i,2)}, {vr(inv[q],2)} op_sel_hi:[1,0]")
                for i in range(8): e(f"v_cvt_pk_bf16_f32 v{pb+i}, v{tb+2*i}, v{tb+2*i+1}")
                e("s_nop 0")
                for g in (0, 2):
                    e(f"v_permlane32_swap_b32 v{pb+2*g}, v{pb+2*g+2}")
                    e(f"v_permlane32_swap_b32 v{pb+2*g+1}, v{pb+2*g+3}")
                for g in (0, 2):
                    e(f"buffer_store_dwordx4 {vr(pb+2*g,4)}, v{va}, {srd(SO)}, s{S_T0+q} offen offset:{db*64+g*16} {a.omod}".strip())
        self.emit(self.stamp())
        if a.stamp:
            e("s_waitcnt vmcnt(0)")
            self.emit(self.stamp())
            e(f"v_mbcnt_lo_u32_b32 v0, -1, 0"); e(f"v_mbcnt_hi_u32_b32 v0, -1, v0"); e("v_lshlrev_b32 v0, 2, v0")
            e(f"buffer_store_dword v{T+9}, v0, {srd(SWS)}, s{S_WSO} offen")
            e(f"buffer_store_dword v{T+10}, v0, {srd(SWS)}, s{S_WSO} offen offset:256")
        e("L_end:")
        e("s_endpgm")

    def body_unrolled(self, rest):
        for u in range(32):
            t = u // 2
            self.phaseA(u, rest, has_qk=(u < 31))
            dma = None; barrier = None
            if u % 2 == 1:
                if t < 15:
                    need = [f"V{t+1}"] + ([f"K{t+2}"] if t + 2 <= 15 else [])
                    barrier = self.vm_needed(need)
                if t + 4 <= 15:
                    m0, lds = self.dma_tile("K", t + 4); dma = (m0, lds, [])
            else:
                if t >= 1 and t + 3 <= 15:
                    m0, lds = self.dma_tile("V", t + 3); dma = (m0, lds, [I(f"s_add_u32 s{S_G}, s{S_G}, 16384")])
            rest = self.phaseB(u, has_next=(u < 31), has_kreads=(u + 2 < 32), dma=dma, barrier=barrier)
            if self.a.stamp and u % 4 == 3 and u < 31:
                self.emit(self.stamp())

    def body_looped(self, rest):
        e = self.e
        raise NotImplementedError

    def build(self):
        rest = self.prologue()
        n0 = len(self.out)
        self.body_unrolled(rest)
        if self.a.drop:
            pats = self.a.drop.split(",")
            body = [i for i in self.out[n0:] if not any(i.op.startswith(p) for p in pats)]
            self.out = self.out[:n0] + body
        self.epilogue()
        probs = check(self.out, "main")
        hdr = open("standalone__gqa_softmax__near_ridge.s.ref").read().split("; Override")[0]
        probs += check(self.slow, "slow", verbose=False)
        txt = hdr + "; @launch grid=(256,1,1) block=(256,1,1) lds=163840\n"
        txt += '.amdgcn_target "amdgcn-amd-amdhsa--gfx950"\n.text\n'
        txt += f".globl {KNAME}\n.p2align 8\n.type {KNAME},@function\n{KNAME}:\n"
        txt += "\n".join(str(i) for i in self.out) + "\n"
        txt += "\n".join(str(i) for i in self.slow) + "\n"
        txt += f""".section .rodata,"a"
.p2align 6
.amdhsa_kernel {KNAME}
  .amdhsa_next_free_vgpr 384
  .amdhsa_next_free_sgpr 64
  .amdhsa_accum_offset 256
  .amdhsa_group_segment_fixed_size 0
  .amdhsa_kernarg_size 48
  .amdhsa_user_sgpr_count 2
  .amdhsa_user_sgpr_kernarg_segment_ptr 1
  .amdhsa_system_sgpr_workgroup_id_x 1
.end_amdhsa_kernel
"""
        return txt, probs


def get_args(argv=None):
    p = argparse.ArgumentParser()
    p.add_argument("-o", default="k.s")
    p.add_argument("--stamp", action="store_true")
    p.add_argument("--split", type=int, default=17)
    p.add_argument("--a_last", type=int, default=14)
    p.add_argument("--bar_gap", type=int, default=0)
    p.add_argument("--vplan", default="2,2,2,2,1,1,1,1,1,1,1,1")
    p.add_argument("--kplan", default="1,2,3,4,6,7,9,10")
    p.add_argument("--dplan", default="5,8,11,13")
    p.add_argument("--drop", default="")
    p.add_argument("--kvmod", default="")
    p.add_argument("--qmod", default="")
    p.add_argument("--omod", default="")
    a = p.parse_args(argv)
    a.vplan = [int(x) for x in a.vplan.split(",")]
    a.kplan = [int(x) for x in a.kplan.split(",")]
    a.dplan = [int(x) for x in a.dplan.split(",")]
    return a


if __name__ == "__main__":
    a = get_args()
    g = Gen(a)
    txt, probs = g.build()
    open(a.o, "w").write(txt)
    for p in probs: print(p)
    print(f"wrote {a.o}: {len(g.out)} main insts, {len(g.slow)} slow insts, {len(probs)} problems")
```

```python
import sys, struct, math, argparse
from asmlib import I, check

KNAME = "standalone__gqa_softmax__near_ridge_kernel"
CSC = math.log2(math.e) / math.sqrt(128.0)
def f2u(x): return struct.unpack("<I", struct.pack("<f", x))[0]
THR = f2u(2.0 ** 20)

def S(buf, qb): return 32 * buf + 16 * qb
def NEGM(qb): return 64 + 16 * qb
def KF(d): return 96 + 4 * d
def VF(f): return 128 + 4 * f
def KA(d): return 160 + d
def VA(db): return 168 + db
def KD(n): return 172 + n
VD = 176
def L(qb): return 177 + qb
def X(qb): return 179 + qb
T = 181
def Q(qb, d): return 192 + (qb * 8 + d) * 4
def O(db, qb): return (qb * 4 + db) * 16
def vr(b, n): return f"v[{b}:{b+n-1}]"
def ar(b, n): return f"a[{b}:{b+n-1}]"

SQ, SK, SV, SO = 12, 16, 20, 24
S_W = 28
S_KW = 29
S_G = 30
S_T0, S_T1, S_T2 = 31, 32, 33
S_PB = 34
S_CNT = 35
S_C = 36
S_WSO = 38
S_SI = 39
S_STAMP = 40
SWS = 44
def srd(b): return f"s[{b}:{b+3}]"


class Gen:
    def __init__(self, a):
        self.a = a
        self.out = []
        self.slow = []
        self.dma_log = []
        self.nstamp = 0

    def e(self, t, note=None):
        self.out.append(I(t, note))

    def stamp(self):
        if not self.a.stamp: return []
        k = self.nstamp; self.nstamp += 1
        r = [I(f"s_memtime s[{S_STAMP}:{S_STAMP+1}]"), I(f"s_memrealtime s[{S_STAMP+2}:{S_STAMP+3}]"),
             I("s_waitcnt lgkmcnt(0)")]
        return r + [I(f"v_writelane_b32 v{T+9}, s{S_STAMP}, s{S_SI}"), I(f"v_writelane_b32 v{T+10}, s{S_STAMP+2}, s{S_SI}"),
                    I(f"s_add_u32 s{S_SI}, s{S_SI}, 1")]

    def dma_tile(self, which, t, looped=False):
        base = (0 if which == "K" else 65536)
        r = []
        if looped:
            m0 = I(f"s_add_u32 m0, s{S_PB}, {base + (t % 2) * 16384}")
        else:
            m0 = I(f"s_add_u32 m0, s{S_KW}, {base + (t % 4) * 16384}")
        for n in range(4):
            vo = KD(n) if which == "K" else VD
            sr = SK if which == "K" else SV
            ld = I(f"buffer_load_dwordx4 v{vo}, {srd(sr)}, s{S_G} offen offset:{n*1024} {self.a.kvmod} lds".replace("  ", " "),
                   f"DMA {which}{t}.{n}")
            ld.dma = f"{which}{t}"
            r.append(ld)
        return m0, r

    def vm_needed(self, names):
        last = max(i for i, n in enumerate(self.dma_log) if n in names)
        return len(self.dma_log) - 1 - last

    def emit(self, ins):
        for i in ins:
            if hasattr(i, "dma"):
                self.dma_log.append(i.dma)
            self.out.append(i)

    def qk_mfmas(self, buf, zero_c=False):
        order = [(d, q) for d in range(6) for q in range(2)] + [(6, 0), (7, 0), (6, 1), (7, 1)]
        r = []
        for d, q in order:
            c = vr(S(buf, q), 16)
            if d == 0:
                c = "0" if zero_c else vr(NEGM(q), 16)
            r.append(I(f"v_mfma_f32_32x32x16_bf16 {vr(S(buf,q),16)}, {vr(KF(d),4)}, {vr(Q(q,d),4)}, {c}"))
        return r

    def pv_mfmas(self, buf, first=False):
        r = []
        for s in range(2):
            for db in range(4):
                for q in range(2):
                    c = "0" if (first and s == 0) else ar(O(db, q), 16)
                    r.append(I(f"v_mfma_f32_32x32x16_bf16 {ar(O(db,q),16)}, {vr(VF(s*4+db),4)}, {vr(S(buf,q)+8*s,4)}, {c}"))
        return r

    def k_reads(self, u, looped=False, areg=KA):
        t, kb = u // 2, u % 2
        off = ((t % 2) if looped else (t % 4)) * 16384 + kb * 8192
        return [I(f"ds_read_b128 {vr(KF(d),4)}, v{areg(d)} offset:{off}") for d in range(8)]

    def v_reads(self, u, looped=False):
        t, kb = u // 2, u % 2
        off = ((t % 2) if looped else (t % 4)) * 16384 + kb * 8192
        r = []
        for s in range(2):
            for db in range(4):
                for tt in range(2):
                    b = VF(s * 4 + db) + 2 * tt
                    r.append(I(f"ds_read_b64_tr_b16 {vr(b,2)}, v{VA(db)} offset:{off + s*4096 + tt*2048}"))
        return r

    def sm_stream(self, buf):
        r = []
        def post(e):
            q, i = e // 16, e % 16
            b = S(buf, q)
            if i == 0: return
            if i == 1:
                r.append((e, I(f"v_add_f32 v{X(q)}, v{b}, v{b+1}")))
            else:
                r.append((e, I(f"v_add_f32 v{X(q)}, v{X(q)}, v{b+i}")))
            if i % 2 == 1:
                s, jj = i // 8, (i % 8) // 2
                r.append((e, I(f"v_cvt_pk_bf16_f32 v{b+8*s+jj}, v{b+i-1}, v{b+i}")))
        for e in range(32):
            q, i = e // 16, e % 16
            r.append((e, I(f"v_exp_f32 v{S(buf,q)+i}, v{S(buf,q)+i}")))
            if e >= 1: post(e - 1)
        r.append((31, I("s_nop 0")))
        post(31)
        return r

    def maxfix(self, buf, other_buf, first):
        r = []
        t0, t1, t2 = T, T + 1, T + 2
        for q in range(2):
            b = S(buf, q)
            r.append(I(f"v_max3_f32 v{t0}, v{b}, v{b+1}, v{b+2}"))
            r.append(I(f"v_max3_f32 v{t1}, v{b+3}, v{b+4}, v{b+5}"))
            for i in (6, 10):
                r.append(I(f"v_max3_f32 v{t0}, v{t0}, v{b+i}, v{b+i+1}"))
                r.append(I(f"v_max3_f32 v{t1}, v{t1}, v{b+i+2}, v{b+i+3}"))
            r.append(I(f"v_max3_f32 v{t0}, v{t0}, v{b+14}, v{b+15}"))
            r.append(I(f"v_max_f32 v{t0}, v{t0}, v{t1}"))
            r.append(I(f"v_mov_b32 v{t1}, v{t0}"))
            r.append(I("s_nop 1"))
            r.append(I(f"v_permlane32_swap_b32 v{t0}, v{t1}"))
            r.append(I("s_nop 1"))
            if first:
                r.append(I(f"v_max_f32 v{t0}, v{t0}, v{t1}"))
                r.append(I(f"v_sub_f32 v{NEGM(q)}, 0, v{t0}"))
                for i in range(1, 16):
                    r.append(I(f"v_mov_b32 v{NEGM(q)+i}, v{NEGM(q)}"))
            else:
                r.append(I(f"v_max3_f32 v{t0}, v{t0}, v{t1}, 0"))
                r.append(I(f"v_exp_f32 v{t2}, -v{t0}"))
                for i in range(16):
                    r.append(I(f"v_sub_f32 v{NEGM(q)+i}, v{NEGM(q)+i}, v{t0}"))
                r.append(I(f"v_mul_f32 v{L(q)}, v{L(q)}, v{t2}"))
                if other_buf is not None:
                    for i in range(16):
                        r.append(I(f"v_sub_f32 v{S(other_buf,q)+i}, v{S(other_buf,q)+i}, v{t0}"))
                for db in range(4):
                    for i in range(0, 16, 4):
                        for k in range(4):
                            r.append(I(f"v_accvgpr_read_b32 v{T+3+k}, a{O(db,q)+i+k}"))
                        for k in range(4):
                            r.append(I(f"v_mul_f32 v{T+3+k}, v{T+3+k}, v{t2}"))
                        for k in range(4):
                            r.append(I(f"v_accvgpr_write_b32 a{O(db,q)+i+k}, v{T+3+k}"))
            for i in range(16):
                r.append(I(f"v_sub_f32 v{b+i}, v{b+i}, v{t0}"))
        return r

    def slow_path(self, u, label, looped, has_next, xored):
        cur, nxt = u % 2, (u + 1) % 2
        r = [I(f"{label}:")]
        if xored:
            for d in range(8): r.append(I(f"v_xor_b32 v{KA(d)}, 0x8000, v{KA(d)}"))
        r += self.k_reads(u, looped)
        if xored:
            for d in range(8): r.append(I(f"v_xor_b32 v{KA(d)}, 0x8000, v{KA(d)}"))
        r.append(I("s_waitcnt lgkmcnt(0)"))
        r += self.qk_mfmas(cur)
        r.append(I("s_nop 15"))
        if u == 0 and not looped:
            pass
        r += self.maxfix(cur, nxt if has_next else None, False)
        r += [x for _, x in self.sm_stream(cur)]
        r.append(I("s_nop 1"))
        r.append(I(f"s_branch {label}_ret"))
        return r

    def schedule(self, mfmas, pinned, stream, pre=None, frac=(0.0, 1.0), total=None, last_gap=None):
        G = len(mfmas)
        out = list(pre or [])
        if last_gap is None: last_gap = G - 1
        pc = sum(i.cost for g in range(G) for i in pinned.get(g, []))
        sc = sum(i.cost for i in stream) if total is None else total
        tot = pc + sc
        cum = 0
        for g in range(G):
            out.append(mfmas[g])
            for i in pinned.get(g, []):
                out.append(i); cum += i.cost
            target = tot * min(1.0, (g + 1) / (last_gap + 1))
            while stream and sc > 0 and cum + stream[0].cost / 2 <= target + 1e-6:
                i = stream.pop(0); out.append(i); cum += i.cost; sc -= i.cost
            if g == last_gap:
                while stream and sc > 0:
                    i = stream.pop(0); out.append(i); cum += i.cost; sc -= i.cost
        return out

    def phaseA(self, u, rest, looped=False, has_qk=True, xor_k=False, xor_v=False):
        a = self.a
        cur, nxt = u % 2, (u + 1) % 2
        vreads = self.v_reads(u, looped)
        label = f"L_slow_{u}" + ("_l" if looped else "")
        chk = [I(f"v_max_f32 v{T}, v{X(0)}, v{X(1)}"), I(f"v_cmp_lt_f32 vcc, {THR:#x}, v{T}")]
        stream = list(rest) + chk
        if has_qk:
            pinned = {}
            plan = a.vplan
            k = 0
            for g, n in enumerate(plan):
                pinned[g] = vreads[k:k + n]; k += n
            assert k == 16
            if xor_k:
                for d in range(8):
                    pinned.setdefault(8 + d, []).append(I(f"v_xor_b32 v{KA(d)}, 0x8000, v{KA(d)}"))
            if xor_v:
                for db in range(4):
                    pinned.setdefault(12 + db, []).append(I(f"v_xor_b32 v{VA(db)}, 0x8000, v{VA(db)}"))
            o = self.schedule(self.qk_mfmas(nxt), pinned, stream, pre=[I("s_waitcnt lgkmcnt(0)")], last_gap=a.a_last)
        else:
            o = []
            k = 0
            for i in stream:
                o.append(i)
                if k < 16 and i.is_trans:
                    o += vreads[k:k + 2]; k += 2
            o += vreads[k:]
        o.append(I(f"s_cbranch_vccnz {label}"))
        o.append(I(f"{label}_ret:"))
        self.emit(o)
        self.slow += self.slow_path(u, label, looped, has_qk, xor_k or getattr(self, "k_xored", False))

    def phaseB(self, u, looped=False, has_next=True, has_kreads=True, dma=None, barrier=None, extra=None):
        a = self.a
        cur, nxt = u % 2, (u + 1) % 2
        pinned = {}
        if barrier is not None:
            pinned.setdefault(a.bar_gap, []).extend([I(f"s_waitcnt vmcnt({barrier})"), I("s_barrier")])
        if has_kreads:
            kr = self.k_reads(u + 2, looped)
            for d, g in enumerate(a.kplan):
                pinned.setdefault(g, []).append(kr[d])
        if dma is not None:
            m0, lds, post = dma
            gs = a.dplan
            pinned.setdefault(gs[0] - 1, []).append(m0)
            for n in range(4):
                pinned.setdefault(gs[n], []).append(lds[n])
            pinned.setdefault(gs[3] + 1, []).extend(post)
        for g, ins in (extra or {}).items():
            pinned.setdefault(g, []).extend(ins)
        stream = [I(f"v_add_f32 v{L(0)}, v{L(0)}, v{X(0)}"), I(f"v_add_f32 v{L(1)}, v{L(1)}, v{X(1)}")]
        rest = []
        if has_next:
            sm = self.sm_stream(nxt)
            idx = next(i for i, (e, x) in enumerate(sm) if e == a.split and x.is_trans)
            stream += [x for _, x in sm[:idx]]
            rest = [x for _, x in sm[idx:]]
        o = self.schedule(self.pv_mfmas(cur, first=(u == 0 and not looped and False)), pinned, stream,
                          pre=[I("s_waitcnt lgkmcnt(0)")])
        self.emit(o)
        return rest

    def prologue(self):
        e = self.e
        a = self.a
        e("s_cmp_ge_u32 s2, 256"); e("s_cbranch_scc1 L_end")
        e("s_load_dwordx4 s[4:7], s[0:1], 0"); e("s_load_dwordx4 s[8:11], s[0:1], 16")
        if a.stamp:
            e(f"s_load_dwordx2 s[{SWS}:{SWS+1}], s[0:1], 40")
        vl, vg, vt, vu = T, T + 1, T + 2, T + 3
        e(f"v_lshrrev_b32 v{vt}, 6, v0")
        e(f"v_and_b32 v{vl}, 63, v0", "lane")
        e(f"v_readfirstlane_b32 s{S_W}, v{vt}")
        e(f"s_and_b32 s{S_T0}, s2, 7"); e(f"s_lshr_b32 s{S_T1}, s2, 3")
        e(f"s_lshl_b32 s{S_T0}, s{S_T0}, 4"); e(f"s_lshr_b32 s{S_T2}, s{S_T1}, 1")
        e(f"s_add_u32 s{S_T0}, s{S_T0}, s{S_T2}", "kv head index")
        e(f"s_and_b32 s{S_T1}, s{S_T1}, 1"); e(f"s_lshl_b32 s{S_T2}, s{S_T0}, 1")
        e(f"s_add_u32 s{S_T1}, s{S_T1}, s{S_T2}", "q head index")
        e(f"s_lshl_b32 s{S_T0}, s{S_T0}, 18"); e(f"s_lshl_b32 s{S_T1}, s{S_T1}, 16")
        e(f"s_lshl_b32 s{S_KW}, s{S_W}, 12")
        e(f"v_lshrrev_b32 v{vg}, 4, v{vl}", "g = lane>>4")
        e(f"v_and_b32 v{vt}, 15, v{vl}")
        e(f"v_xor_b32 v{vu}, v{vt}, v{vg}")
        e(f"v_lshlrev_b32 v{vu}, 4, v{vu}")
        e(f"v_lshl_add_u32 v{vu}, v{vg}, 8, v{vu}")
        e(f"v_add_u32 v{KD(0)}, s{S_KW}, v{vu}")
        for n in range(1, 4): e(f"v_xor_b32 v{KD(n)}, {n<<6:#x}, v{KD(0)}")
        e(f"v_lshlrev_b32 v{vu}, 2, v{vg}")
        e(f"v_xor_b32 v{vu}, v{vt}, v{vu}")
        e(f"v_lshlrev_b32 v{vu}, 4, v{vu}")
        e(f"v_lshl_add_u32 v{vu}, v{vg}, 8, v{vu}")
        e(f"v_add_u32 v{VD}, s{S_KW}, v{vu}")
        e("s_waitcnt lgkmcnt(0)")
        for sr, p, off, n in ((SQ, 4, S_T1, 65536), (SK, 6, S_T0, 262144), (SV, 8, S_T0, 262144), (SO, 10, S_T1, 65536)):
            e(f"s_add_u32 s{sr}, s{p}, s{off}"); e(f"s_addc_u32 s{sr+1}, s{p+1}, 0")
            e(f"s_mov_b32 s{sr+2}, {n}"); e(f"s_mov_b32 s{sr+3}, 0x20000")
        e(f"s_lshl_b32 s{S_T0}, s{S_W}, 14")
        e(f"s_cmp_lt_u32 s{S_W}, 2"); e(f"s_cselect_b32 s{S_T1}, 0x20000, 0")
        e(f"s_add_u32 s{S_T0}, s{S_T0}, s{S_T1}", "q lds base")
        e(f"s_mul_i32 s{S_T1}, s{S_W}, 12288")
        for grp in range(4):
            e(f"s_add_u32 m0, s{S_T0}, {grp*4096}")
            if grp: e(f"s_add_u32 s{S_T1}, s{S_T1}, 4096")
            else: e("s_nop 0")
            for n in range(4):
                ld = I(f"buffer_load_dwordx4 v{KD(n)}, {srd(SQ)}, s{S_T1} offen offset:{n*1024} {a.qmod} lds".replace("  ", " "))
                ld.dma = f"Q{grp//2}"
                self.emit([ld])
        def tile(which, t):
            e(f"s_mov_b32 s{S_G}, {t*16384}")
            m0, lds = self.dma_tile(which, t)
            self.emit([m0, I("s_nop 0")] + lds)
        tile("K", 0); tile("V", 0); tile("K", 1); tile("V", 1)
        if a.stamp:
            e(f"s_mov_b32 s{SWS+2}, 0x1000000"); e(f"s_mov_b32 s{SWS+3}, 0x20000")
            e(f"s_lshl_b32 s{S_WSO}, s2, 2"); e(f"s_add_u32 s{S_WSO}, s{S_WSO}, s{S_W}"); e(f"s_lshl_b32 s{S_WSO}, s{S_WSO}, 9")
            e(f"v_mov_b32 v{T+9}, 0"); e(f"v_mov_b32 v{T+10}, 0"); e(f"s_mov_b32 s{S_SI}, 0")
            self.emit(self.stamp())
        e(f"v_and_b32 v{vt}, 31, v{vl}", "r")
        e(f"v_lshrrev_b32 v{vu}, 5, v{vl}", "h")
        e(f"v_and_b32 v{KA(1)}, 15, v{vl}")
        e(f"v_xor_b32 v{KA(1)}, v{KA(1)}, v{vu}")
        e(f"v_lshlrev_b32 v{KA(1)}, 4, v{KA(1)}")
        e(f"v_lshl_add_u32 v{KA(0)}, v{vt}, 8, v{KA(1)}")
        for d in range(1, 8): e(f"v_xor_b32 v{KA(d)}, {d<<5:#x}, v{KA(0)}")
        e(f"v_bfe_u32 v{vt}, v{vl}, 2, 2", "r4")
        e(f"v_lshl_add_u32 v{VA(0)}, v{vu}, 2, v{vt}")
        e(f"v_lshlrev_b32 v{VA(0)}, 8, v{VA(0)}")
        e(f"v_lshl_add_u32 v{VA(0)}, v{vt}, 6, v{VA(0)}")
        e(f"v_and_b32 v{vt}, 1, v{vg}")
        e(f"v_lshl_add_u32 v{VA(0)}, v{vt}, 5, v{VA(0)}")
        e(f"v_and_b32 v{vt}, 3, v{vl}")
        e(f"v_lshl_add_u32 v{VA(0)}, v{vt}, 3, v{VA(0)}")
        e(f"v_add_u32 v{VA(0)}, 0x10000, v{VA(0)}")
        for db in range(1, 4): e(f"v_xor_b32 v{VA(db)}, {db<<6:#x}, v{VA(0)}")
        for d in range(8): e(f"v_add_u32 v{32+d}, s{S_T0}, v{KA(d)}")
        e(f"s_mov_b32 s{S_C}, {f2u(CSC):#x}"); e(f"s_mov_b32 s{S_C+1}, {f2u(CSC):#x}")
        e(f"v_mov_b32 v{L(0)}, 0"); e(f"v_mov_b32 v{L(1)}, 0")
        for i in range(128): e(f"v_accvgpr_write_b32 a{i}, 0")
        for q in range(2):
            e(f"s_waitcnt vmcnt({self.vm_needed([f'Q{q}'])})")
            for d in range(8):
                e(f"ds_read_b128 {vr(Q(q,d),4)}, v{32+d} offset:{q*8192}")
            for d in range(8):
                e(f"s_waitcnt lgkmcnt({7-d})")
                for k in range(4):
                    r = Q(q, d) + k
                    t = 40 + 2 * k
                    e(f"v_lshlrev_b32 v{t}, 16, v{r}")
                    e(f"v_and_b32 v{t+1}, 0xffff0000, v{r}")
                for k in range(4):
                    t = 40 + 2 * k
                    e(f"v_pk_mul_f32 {vr(t,2)}, {vr(t,2)}, s[{S_C}:{S_C+1}]")
                for k in range(4):
                    t = 40 + 2 * k
                    e(f"v_cvt_pk_bf16_f32 v{Q(q,d)+k}, v{t}, v{t+1}")
        self.emit(self.stamp())
        e(f"s_waitcnt vmcnt({self.vm_needed(['K0'])})")
        e("s_barrier")
        self.emit(self.k_reads(0))
        tile("K", 2); tile("V", 2); tile("K", 3)
        if not a.loop:
            tile("V", 3)
            e(f"s_mov_b32 s{S_G}, {4*16384}")
        else:
            e(f"s_add_u32 s{S_PB}, s{S_KW}, 0x8000")
            e(f"s_mov_b32 s{S_CNT}, 8")
        self.emit(self.stamp())
        e("s_waitcnt lgkmcnt(0)")
        self.emit(self.qk_mfmas(0, zero_c=True))
        self.emit(self.k_reads(1))
        e("s_nop 7")
        self.emit(self.maxfix(0, None, True))
        sm = self.sm_stream(0)
        idx = next(i for i, (ee, x) in enumerate(sm) if ee == a.split and x.is_trans)
        self.emit([x for _, x in sm[:idx]])
        e(f"s_waitcnt vmcnt({self.vm_needed(['V0','K1'])})")
        e("s_barrier")
        self.emit(self.stamp())
        return [x for _, x in sm[idx:]]

    def epilogue(self):
        e = self.e
        a = self.a
        self.emit(self.stamp())
        t0 = T
        al = [T + 3, T + 5]
        for q in range(2):
            e(f"v_mov_b32 v{t0+q}, v{L(q)}")
        e("s_nop 1")
        for q in range(2):
            e(f"v_permlane32_swap_b32 v{t0+q}, v{L(q)}")
        e("s_nop 1")
        for q in range(2):
            e(f"v_add_f32 v{L(q)}, v{L(q)}, v{t0+q}")
        inv = [184, 186]
        for q in range(2):
            e(f"v_rcp_f32 v{inv[q]}, v{L(q)}")
        va = 188
        e(f"v_mbcnt_lo_u32_b32 v{va}, -1, 0"); e(f"v_mbcnt_hi_u32_b32 v{va}, -1, v{va}")
        e(f"v_lshrrev_b32 v{va+1}, 5, v{va}"); e(f"v_and_b32 v{va}, 31, v{va}")
        e(f"v_lshlrev_b32 v{va}, 8, v{va}"); e(f"v_lshl_add_u32 v{va}, v{va+1}, 4, v{va}")
        e(f"s_lshl_b32 s{S_T0}, s{S_W}, 14"); e(f"s_add_u32 s{S_T1}, s{S_T0}, 8192")
        e("s_nop 4")
        blk = 0
        for q in range(2):
            for db in range(4):
                tb = 16 * (blk % 8)
                pb = 128 + 8 * (blk % 4)
                blk += 1
                for i in range(16): e(f"v_accvgpr_read_b32 v{tb+i}, a{O(db,q)+i}")
                for i in range(0, 16, 2):
                    e(f"v_pk_mul_f32 {vr(tb+i,2)}, {vr(tb+i,2)}, {vr(inv[q],2)} op_sel_hi:[1,0]")
                for i in range(8): e(f"v_cvt_pk_bf16_f32 v{pb+i}, v{tb+2*i}, v{tb+2*i+1}")
                e("s_nop 0")
                for g in (0, 2):
                    e(f"v_permlane32_swap_b32 v{pb+2*g}, v{pb+2*g+2}")
                    e(f"v_permlane32_swap_b32 v{pb+2*g+1}, v{pb+2*g+3}")
                for g in (0, 2):
                    e(f"buffer_store_dwordx4 {vr(pb+2*g,4)}, v{va}, {srd(SO)}, s{S_T0+q} offen offset:{db*64+g*16} {a.omod}".strip())
        self.emit(self.stamp())
        if a.stamp:
            e("s_waitcnt vmcnt(0)")
            self.emit(self.stamp())
            e(f"v_mbcnt_lo_u32_b32 v0, -1, 0"); e(f"v_mbcnt_hi_u32_b32 v0, -1, v0"); e("v_lshlrev_b32 v0, 2, v0")
            e(f"buffer_store_dword v{T+9}, v0, {srd(SWS)}, s{S_WSO} offen")
            e(f"buffer_store_dword v{T+10}, v0, {srd(SWS)}, s{S_WSO} offen offset:256")
        e("L_end:")
        e("s_endpgm")

    def body_unrolled(self, rest):
        for u in range(32):
            t = u // 2
            self.phaseA(u, rest, has_qk=(u < 31))
            dma = None; barrier = None
            if u % 2 == 1:
                if t < 15:
                    need = [f"V{t+1}"] + ([f"K{t+2}"] if t + 2 <= 15 else [])
                    barrier = self.vm_needed(need)
                if t + 4 <= 15:
                    m0, lds = self.dma_tile("K", t + 4); dma = (m0, lds, [])
            else:
                if t >= 1 and t + 3 <= 15:
                    m0, lds = self.dma_tile("V", t + 3); dma = (m0, lds, [I(f"s_add_u32 s{S_G}, s{S_G}, 16384")])
            rest = self.phaseB(u, has_next=(u < 31), has_kreads=(u + 2 < 32), dma=dma, barrier=barrier)
            if self.a.stamp and u % 4 == 3 and u < 31:
                self.emit(self.stamp())

    def body_looped(self, rest):
        e = self.e
        a = self.a
        if a.align: e(f".p2align {a.align}")
        e("L_loop:")
        n0 = len(self.out)
        rest0 = [I(x.text) for x in rest]
        for u in range(4):
            t = u // 2
            self.k_xored = (u == 3)
            self.phaseA(u, rest, looped=True, xor_k=(u == 2))
            extra = {}
            if u % 2 == 1:
                barrier = 12
                m0, lds = self.dma_tile("K", t + 4, True); dma = (m0, lds, [])
            else:
                barrier = None
                m0, lds = self.dma_tile("V", t + 3, True); dma = (m0, lds, [I(f"s_add_u32 s{S_G}, s{S_G}, 16384")])
            if u == 0:
                dma[2].append(I(f"s_xor_b32 s{S_PB}, s{S_PB}, 0x8000"))
            if u == 2:
                extra[12] = [I(f"s_sub_u32 s{S_CNT}, s{S_CNT}, 1")]
            if u == 3:
                for db, g in enumerate((0, 12, 14, 15) if False else (12, 12, 14, 15)):
                    extra.setdefault(g, []).append(I(f"v_xor_b32 v{VA(db)}, 0x8000, v{VA(db)}"))
            rest = self.phaseB(u, looped=True, dma=dma, barrier=barrier, extra=extra)
            if u == 2:
                e(f"s_cmp_eq_u32 s{S_CNT}, 0")
                e("s_cbranch_scc1 L_tail")
                rest_tail = [I(x.text) for x in rest]
                n_exit = len(self.out)
        if a.stamp: self.emit(self.stamp())
        e("s_branch L_loop")
        n1 = len(self.out)
        assert [x.text for x in rest] == [x.text for x in rest0]
        e("L_tail:")
        self.k_xored = True
        self.phaseA(31, rest_tail, looped=True, has_qk=False)
        self.phaseB(31, looped=True, has_next=False, has_kreads=False)
        self.check_seq = lambda: self.out[:n1] + self.out[n0:n_exit] + self.out[n1:]

    def build(self):
        rest = self.prologue()
        n0 = len(self.out)
        self.check_seq = lambda: self.out
        if self.a.loop: self.body_looped(rest)
        else: self.body_unrolled(rest)
        if self.a.drop:
            pats = self.a.drop.split(",")
            body = [i for i in self.out[n0:] if not any(i.op.startswith(p) for p in pats)]
            self.out = self.out[:n0] + body
        self.epilogue()
        probs = check(self.check_seq(), "main", verbose=False)
        hdr = open("standalone__gqa_softmax__near_ridge.s.ref").read().split("; Override")[0]
        probs += check(self.slow, "slow", verbose=False)
        txt = hdr + "; @launch grid=(256,1,1) block=(256,1,1) lds=163840\n"
        txt += '.amdgcn_target "amdgcn-amd-amdhsa--gfx950"\n.text\n'
        txt += f".globl {KNAME}\n.p2align 8\n.type {KNAME},@function\n{KNAME}:\n"
        txt += "\n".join(str(i) for i in self.out) + "\n"
        txt += "\n".join(str(i) for i in self.slow) + "\n"
        txt += f""".section .rodata,"a"
.p2align 6
.amdhsa_kernel {KNAME}
  .amdhsa_next_free_vgpr 384
  .amdhsa_next_free_sgpr 64
  .amdhsa_accum_offset 256
  .amdhsa_group_segment_fixed_size 0
  .amdhsa_kernarg_size 48
  .amdhsa_user_sgpr_count 2
  .amdhsa_user_sgpr_kernarg_segment_ptr 1
  .amdhsa_system_sgpr_workgroup_id_x 1
.end_amdhsa_kernel
"""
        return txt, probs


def get_args(argv=None):
    p = argparse.ArgumentParser()
    p.add_argument("-o", default="k.s")
    p.add_argument("--stamp", action="store_true")
    p.add_argument("--split", type=int, default=17)
    p.add_argument("--a_last", type=int, default=14)
    p.add_argument("--bar_gap", type=int, default=0)
    p.add_argument("--vplan", default="2,2,2,2,1,1,1,1,1,1,1,1")
    p.add_argument("--kplan", default="1,2,3,4,6,7,9,10")
    p.add_argument("--dplan", default="5,8,11,13")
    p.add_argument("--drop", default="")
    p.add_argument("--loop", type=int, default=1)
    p.add_argument("--align", type=int, default=6)
    p.add_argument("--kvmod", default="")
    p.add_argument("--qmod", default="")
    p.add_argument("--omod", default="")
    a = p.parse_args(argv)
    a.vplan = [int(x) for x in a.vplan.split(",")]
    a.kplan = [int(x) for x in a.kplan.split(",")]
    a.dplan = [int(x) for x in a.dplan.split(",")]
    return a


if __name__ == "__main__":
    a = get_args()
    g = Gen(a)
    txt, probs = g.build()
    open(a.o, "w").write(txt)
    for p in probs: print(p)
    print(f"wrote {a.o}: {len(g.out)} main insts, {len(g.slow)} slow insts, {len(probs)} problems")
```

```python
import sys, struct, math, argparse
from asmlib import I, check

KNAME = "standalone__gqa_softmax__near_ridge_kernel"
CSC = math.log2(math.e) / math.sqrt(128.0)
def f2u(x): return struct.unpack("<I", struct.pack("<f", x))[0]
THR = f2u(2.0 ** 20)

def S(buf, qb): return 32 * buf + 16 * qb
def NEGM(qb): return 64 + 16 * qb
def KF(d): return 96 + 4 * d
def VF(f): return 128 + 4 * f
def KA(d): return 160 + d
def VA(db): return 168 + db
def KD(n): return 172 + n
VD = 176
def L(qb): return 177 + qb
def X(qb): return 179 + qb
T = 181
def Q(qb, d): return 192 + (qb * 8 + d) * 4
def O(db, qb): return (qb * 4 + db) * 16
def vr(b, n): return f"v[{b}:{b+n-1}]"
def ar(b, n): return f"a[{b}:{b+n-1}]"

SQ, SK, SV, SO = 12, 16, 20, 24
S_W = 28
S_KW = 29
S_G = 30
S_T0, S_T1, S_T2 = 31, 32, 33
S_PB = 34
S_CNT = 35
S_C = 36
S_WSO = 38
S_SI = 39
S_STAMP = 40
SWS = 44
def srd(b): return f"s[{b}:{b+3}]"


class Gen:
    def __init__(self, a):
        self.a = a
        self.out = []
        self.slow = []
        self.dma_log = []
        self.nstamp = 0

    def e(self, t, note=None):
        self.out.append(I(t, note))

    def stamp(self):
        if not self.a.stamp: return []
        k = self.nstamp; self.nstamp += 1
        r = [I(f"s_memtime s[{S_STAMP}:{S_STAMP+1}]"), I(f"s_memrealtime s[{S_STAMP+2}:{S_STAMP+3}]"),
             I("s_waitcnt lgkmcnt(0)")]
        return r + [I(f"s_lshl_b64 exec, 1, s{S_SI}"), I(f"v_mov_b32 v{T+9}, s{S_STAMP}"), I(f"v_mov_b32 v{T+10}, s{S_STAMP+2}"),
                    I("s_mov_b64 exec, -1"), I(f"s_add_u32 s{S_SI}, s{S_SI}, 1")]

    def dma_tile(self, which, t, looped=False):
        base = (0 if which == "K" else 65536)
        r = []
        if looped:
            m0 = I(f"s_add_u32 m0, s{S_PB}, {base + (t % 2) * 16384}")
        else:
            m0 = I(f"s_add_u32 m0, s{S_KW}, {base + (t % 4) * 16384}")
        for n in range(4):
            vo = KD(n) if which == "K" else VD
            sr = SK if which == "K" else SV
            ld = I(f"buffer_load_dwordx4 v{vo}, {srd(sr)}, s{S_G} offen offset:{n*1024} {self.a.kvmod} lds".replace("  ", " "),
                   f"DMA {which}{t}.{n}")
            ld.dma = f"{which}{t}"
            r.append(ld)
        return m0, r

    def vm_needed(self, names):
        last = max(i for i, n in enumerate(self.dma_log) if n in names)
        return len(self.dma_log) - 1 - last

    def emit(self, ins):
        for i in ins:
            if hasattr(i, "dma"):
                self.dma_log.append(i.dma)
            self.out.append(i)

    def qk_mfmas(self, buf, zero_c=False):
        order = [(d, q) for d in range(6) for q in range(2)] + [(6, 0), (7, 0), (6, 1), (7, 1)]
        r = []
        for d, q in order:
            c = vr(S(buf, q), 16)
            if d == 0:
                c = "0" if zero_c else vr(NEGM(q), 16)
            r.append(I(f"v_mfma_f32_32x32x16_bf16 {vr(S(buf,q),16)}, {vr(KF(d),4)}, {vr(Q(q,d),4)}, {c}"))
        return r

    def pv_mfmas(self, buf, first=False):
        r = []
        for s in range(2):
            for db in range(4):
                for q in range(2):
                    c = "0" if (first and s == 0) else ar(O(db, q), 16)
                    r.append(I(f"v_mfma_f32_32x32x16_bf16 {ar(O(db,q),16)}, {vr(VF(s*4+db),4)}, {vr(S(buf,q)+8*s,4)}, {c}"))
        return r

    def k_reads(self, u, looped=False, areg=KA):
        t, kb = u // 2, u % 2
        off = ((t % 2) if looped else (t % 4)) * 16384 + kb * 8192
        return [I(f"ds_read_b128 {vr(KF(d),4)}, v{areg(d)} offset:{off}") for d in range(8)]

    def v_reads(self, u, looped=False):
        t, kb = u // 2, u % 2
        off = ((t % 2) if looped else (t % 4)) * 16384 + kb * 8192
        r = []
        for s in range(2):
            for db in range(4):
                for tt in range(2):
                    b = VF(s * 4 + db) + 2 * tt
                    r.append(I(f"ds_read_b64_tr_b16 {vr(b,2)}, v{VA(db)} offset:{off + s*4096 + tt*2048}"))
        return r

    def sm_stream(self, buf):
        r = []
        def post(e):
            q, i = e // 16, e % 16
            b = S(buf, q)
            if i == 0: return
            if i == 1:
                r.append((e, I(f"v_add_f32 v{X(q)}, v{b}, v{b+1}")))
            else:
                r.append((e, I(f"v_add_f32 v{X(q)}, v{X(q)}, v{b+i}")))
            if i % 2 == 1:
                s, jj = i // 8, (i % 8) // 2
                r.append((e, I(f"v_cvt_pk_bf16_f32 v{b+8*s+jj}, v{b+i-1}, v{b+i}")))
        for e in range(32):
            q, i = e // 16, e % 16
            r.append((e, I(f"v_exp_f32 v{S(buf,q)+i}, v{S(buf,q)+i}")))
            if e >= 1: post(e - 1)
        r.append((31, I("s_nop 0")))
        post(31)
        return r

    def maxfix(self, buf, other_buf, first):
        r = []
        t0, t1, t2 = T, T + 1, T + 2
        for q in range(2):
            b = S(buf, q)
            r.append(I(f"v_max3_f32 v{t0}, v{b}, v{b+1}, v{b+2}"))
            r.append(I(f"v_max3_f32 v{t1}, v{b+3}, v{b+4}, v{b+5}"))
            for i in (6, 10):
                r.append(I(f"v_max3_f32 v{t0}, v{t0}, v{b+i}, v{b+i+1}"))
                r.append(I(f"v_max3_f32 v{t1}, v{t1}, v{b+i+2}, v{b+i+3}"))
            r.append(I(f"v_max3_f32 v{t0}, v{t0}, v{b+14}, v{b+15}"))
            r.append(I(f"v_max_f32 v{t0}, v{t0}, v{t1}"))
            r.append(I(f"v_mov_b32 v{t1}, v{t0}"))
            r.append(I("s_nop 1"))
            r.append(I(f"v_permlane32_swap_b32 v{t0}, v{t1}"))
            r.append(I("s_nop 1"))
            if first:
                r.append(I(f"v_max_f32 v{t0}, v{t0}, v{t1}"))
                r.append(I(f"v_sub_f32 v{NEGM(q)}, 0, v{t0}"))
                for i in range(1, 16):
                    r.append(I(f"v_mov_b32 v{NEGM(q)+i}, v{NEGM(q)}"))
            else:
                r.append(I(f"v_max3_f32 v{t0}, v{t0}, v{t1}, 0"))
                r.append(I(f"v_exp_f32 v{t2}, -v{t0}"))
                for i in range(16):
                    r.append(I(f"v_sub_f32 v{NEGM(q)+i}, v{NEGM(q)+i}, v{t0}"))
                r.append(I(f"v_mul_f32 v{L(q)}, v{L(q)}, v{t2}"))
                if other_buf is not None:
                    for i in range(16):
                        r.append(I(f"v_sub_f32 v{S(other_buf,q)+i}, v{S(other_buf,q)+i}, v{t0}"))
                for db in range(4):
                    for i in range(0, 16, 4):
                        for k in range(4):
                            r.append(I(f"v_accvgpr_read_b32 v{T+3+k}, a{O(db,q)+i+k}"))
                        for k in range(4):
                            r.append(I(f"v_mul_f32 v{T+3+k}, v{T+3+k}, v{t2}"))
                        for k in range(4):
                            r.append(I(f"v_accvgpr_write_b32 a{O(db,q)+i+k}, v{T+3+k}"))
            for i in range(16):
                r.append(I(f"v_sub_f32 v{b+i}, v{b+i}, v{t0}"))
        return r

    def slow_path(self, u, label, looped, has_next, xored):
        cur, nxt = u % 2, (u + 1) % 2
        r = [I(f"{label}:")]
        if xored:
            for d in range(8): r.append(I(f"v_xor_b32 v{KA(d)}, 0x8000, v{KA(d)}"))
        r += self.k_reads(u, looped)
        if xored:
            for d in range(8): r.append(I(f"v_xor_b32 v{KA(d)}, 0x8000, v{KA(d)}"))
        r.append(I("s_waitcnt lgkmcnt(0)"))
        r += self.qk_mfmas(cur)
        r.append(I("s_nop 15"))
        if u == 0 and not looped:
            pass
        r += self.maxfix(cur, nxt if has_next else None, False)
        r += [x for _, x in self.sm_stream(cur)]
        r.append(I("s_nop 1"))
        r.append(I(f"s_branch {label}_ret"))
        return r

    def schedule(self, mfmas, pinned, stream, pre=None, frac=(0.0, 1.0), total=None, last_gap=None):
        G = len(mfmas)
        out = list(pre or [])
        if last_gap is None: last_gap = G - 1
        pc = sum(i.cost for g in range(G) for i in pinned.get(g, []))
        sc = sum(i.cost for i in stream) if total is None else total
        tot = pc + sc
        cum = 0
        for g in range(G):
            out.append(mfmas[g])
            for i in pinned.get(g, []):
                out.append(i); cum += i.cost
            target = tot * min(1.0, (g + 1) / (last_gap + 1))
            while stream and sc > 0 and cum + stream[0].cost / 2 <= target + 1e-6:
                i = stream.pop(0); out.append(i); cum += i.cost; sc -= i.cost
            if g == last_gap:
                while stream and sc > 0:
                    i = stream.pop(0); out.append(i); cum += i.cost; sc -= i.cost
        return out

    def phaseA(self, u, rest, looped=False, has_qk=True, xor_k=False, xor_v=False):
        a = self.a
        cur, nxt = u % 2, (u + 1) % 2
        vreads = self.v_reads(u, looped)
        label = f"L_slow_{u}" + ("_l" if looped else "")
        chk = [I(f"v_max_f32 v{T}, v{X(0)}, v{X(1)}"), I(f"v_cmp_lt_f32 vcc, {THR:#x}, v{T}")]
        stream = list(rest) + chk
        if has_qk:
            pinned = {}
            plan = a.vplan
            k = 0
            for g, n in enumerate(plan):
                pinned[g] = vreads[k:k + n]; k += n
            assert k == 16
            if xor_k:
                for d in range(8):
                    pinned.setdefault(8 + d, []).append(I(f"v_xor_b32 v{KA(d)}, 0x8000, v{KA(d)}"))
            if xor_v:
                for db in range(4):
                    pinned.setdefault(12 + db, []).append(I(f"v_xor_b32 v{VA(db)}, 0x8000, v{VA(db)}"))
            o = self.schedule(self.qk_mfmas(nxt), pinned, stream, pre=[I("s_waitcnt lgkmcnt(0)")], last_gap=a.a_last)
        else:
            o = []
            k = 0
            for i in stream:
                o.append(i)
                if k < 16 and i.is_trans:
                    o += vreads[k:k + 2]; k += 2
            o += vreads[k:]
        o.append(I(f"s_cbranch_vccnz {label}"))
        o.append(I(f"{label}_ret:"))
        self.emit(o)
        self.slow += self.slow_path(u, label, looped, has_qk, xor_k or getattr(self, "k_xored", False))

    def phaseB(self, u, looped=False, has_next=True, has_kreads=True, dma=None, barrier=None, extra=None):
        a = self.a
        cur, nxt = u % 2, (u + 1) % 2
        pinned = {}
        if barrier is not None:
            pinned.setdefault(a.bar_gap, []).extend([I(f"s_waitcnt vmcnt({barrier})"), I("s_barrier")])
        if has_kreads:
            kr = self.k_reads(u + 2, looped)
            for d, g in enumerate(a.kplan):
                pinned.setdefault(g, []).append(kr[d])
        if dma is not None:
            m0, lds, post = dma
            gs = a.dplan
            pinned.setdefault(gs[0] - 1, []).append(m0)
            for n in range(4):
                pinned.setdefault(gs[n], []).append(lds[n])
            pinned.setdefault(gs[3] + 1, []).extend(post)
        for g, ins in (extra or {}).items():
            pinned.setdefault(g, []).extend(ins)
        stream = [I(f"v_add_f32 v{L(0)}, v{L(0)}, v{X(0)}"), I(f"v_add_f32 v{L(1)}, v{L(1)}, v{X(1)}")]
        rest = []
        if has_next:
            sm = self.sm_stream(nxt)
            idx = next(i for i, (e, x) in enumerate(sm) if e == a.split and x.is_trans)
            stream += [x for _, x in sm[:idx]]
            rest = [x for _, x in sm[idx:]]
        o = self.schedule(self.pv_mfmas(cur, first=(u == 0 and not looped and False)), pinned, stream,
                          pre=[I("s_waitcnt lgkmcnt(0)")])
        self.emit(o)
        return rest

    def prologue(self):
        e = self.e
        a = self.a
        if a.stamp:
            e("s_memtime s[48:49]"); e("s_memrealtime s[50:51]")
        e("s_cmp_ge_u32 s2, 256"); e("s_cbranch_scc1 L_end")
        e("s_load_dwordx4 s[4:7], s[0:1], 0"); e("s_load_dwordx4 s[8:11], s[0:1], 16")
        if a.stamp:
            e(f"s_load_dwordx2 s[{SWS}:{SWS+1}], s[0:1], 40")
        vl, vg, vt, vu = T, T + 1, T + 2, T + 3
        e(f"v_lshrrev_b32 v{vt}, 6, v0")
        e(f"v_and_b32 v{vl}, 63, v0", "lane")
        e(f"v_readfirstlane_b32 s{S_W}, v{vt}")
        e(f"s_and_b32 s{S_T0}, s2, 7"); e(f"s_lshr_b32 s{S_T1}, s2, 3")
        e(f"s_lshl_b32 s{S_T0}, s{S_T0}, 4"); e(f"s_lshr_b32 s{S_T2}, s{S_T1}, 1")
        e(f"s_add_u32 s{S_T0}, s{S_T0}, s{S_T2}", "kv head index")
        e(f"s_and_b32 s{S_T1}, s{S_T1}, 1"); e(f"s_lshl_b32 s{S_T2}, s{S_T0}, 1")
        e(f"s_add_u32 s{S_T1}, s{S_T1}, s{S_T2}", "q head index")
        e(f"s_lshl_b32 s{S_T0}, s{S_T0}, 18"); e(f"s_lshl_b32 s{S_T1}, s{S_T1}, 16")
        e(f"s_lshl_b32 s{S_KW}, s{S_W}, 12")
        e(f"v_lshrrev_b32 v{vg}, 4, v{vl}", "g = lane>>4")
        e(f"v_and_b32 v{vt}, 15, v{vl}")
        e(f"v_xor_b32 v{vu}, v{vt}, v{vg}")
        e(f"v_lshlrev_b32 v{vu}, 4, v{vu}")
        e(f"v_lshl_add_u32 v{vu}, v{vg}, 8, v{vu}")
        e(f"v_add_u32 v{KD(0)}, s{S_KW}, v{vu}")
        for n in range(1, 4): e(f"v_xor_b32 v{KD(n)}, {n<<6:#x}, v{KD(0)}")
        e(f"v_lshlrev_b32 v{vu}, 2, v{vg}")
        e(f"v_xor_b32 v{vu}, v{vt}, v{vu}")
        e(f"v_lshlrev_b32 v{vu}, 4, v{vu}")
        e(f"v_lshl_add_u32 v{vu}, v{vg}, 8, v{vu}")
        e(f"v_add_u32 v{VD}, s{S_KW}, v{vu}")
        e("s_waitcnt lgkmcnt(0)")
        if a.stamp:
            e("s_memtime s[52:53]"); e("s_memrealtime s[54:55]"); e("s_waitcnt lgkmcnt(0)")
        for sr, p, off, n in ((SQ, 4, S_T1, 65536), (SK, 6, S_T0, 262144), (SV, 8, S_T0, 262144), (SO, 10, S_T1, 65536)):
            e(f"s_add_u32 s{sr}, s{p}, s{off}"); e(f"s_addc_u32 s{sr+1}, s{p+1}, 0")
            e(f"s_mov_b32 s{sr+2}, {n}"); e(f"s_mov_b32 s{sr+3}, 0x20000")
        e(f"s_lshl_b32 s{S_T0}, s{S_W}, 14")
        e(f"s_cmp_lt_u32 s{S_W}, 2"); e(f"s_cselect_b32 s{S_T1}, 0x20000, 0")
        e(f"s_add_u32 s{S_T0}, s{S_T0}, s{S_T1}", "q lds base")
        e(f"s_mul_i32 s{S_T1}, s{S_W}, 12288")
        for grp in range(4):
            e(f"s_add_u32 m0, s{S_T0}, {grp*4096}")
            if grp: e(f"s_add_u32 s{S_T1}, s{S_T1}, 4096")
            else: e("s_nop 0")
            for n in range(4):
                ld = I(f"buffer_load_dwordx4 v{KD(n)}, {srd(SQ)}, s{S_T1} offen offset:{n*1024} {a.qmod} lds".replace("  ", " "))
                ld.dma = f"Q{grp//2}"
                self.emit([ld])
        def tile(which, t):
            e(f"s_mov_b32 s{S_G}, {t*16384}")
            m0, lds = self.dma_tile(which, t)
            self.emit([m0, I("s_nop 0")] + lds)
        tile("K", 0); tile("V", 0); tile("K", 1); tile("V", 1)
        if a.stamp:
            e(f"s_mov_b32 s{SWS+2}, 0x1000000"); e(f"s_mov_b32 s{SWS+3}, 0x20000")
            e(f"s_lshl_b32 s{S_WSO}, s2, 2"); e(f"s_add_u32 s{S_WSO}, s{S_WSO}, s{S_W}"); e(f"s_lshl_b32 s{S_WSO}, s{S_WSO}, 9")
            e(f"v_mov_b32 v{T+9}, 0"); e(f"v_mov_b32 v{T+10}, 0"); e(f"s_mov_b32 s{S_SI}, 2")
            e(f"v_writelane_b32 v{T+9}, s48, 0"); e(f"v_writelane_b32 v{T+10}, s50, 0")
            e(f"v_writelane_b32 v{T+9}, s52, 1"); e(f"v_writelane_b32 v{T+10}, s54, 1")
            self.emit(self.stamp())
        e(f"v_and_b32 v{vt}, 31, v{vl}", "r")
        e(f"v_lshrrev_b32 v{vu}, 5, v{vl}", "h")
        e(f"v_and_b32 v{KA(1)}, 15, v{vl}")
        e(f"v_xor_b32 v{KA(1)}, v{KA(1)}, v{vu}")
        e(f"v_lshlrev_b32 v{KA(1)}, 4, v{KA(1)}")
        e(f"v_lshl_add_u32 v{KA(0)}, v{vt}, 8, v{KA(1)}")
        for d in range(1, 8): e(f"v_xor_b32 v{KA(d)}, {d<<5:#x}, v{KA(0)}")
        e(f"v_bfe_u32 v{vt}, v{vl}, 2, 2", "r4")
        e(f"v_lshl_add_u32 v{VA(0)}, v{vu}, 2, v{vt}")
        e(f"v_lshlrev_b32 v{VA(0)}, 8, v{VA(0)}")
        e(f"v_lshl_add_u32 v{VA(0)}, v{vt}, 6, v{VA(0)}")
        e(f"v_and_b32 v{vt}, 1, v{vg}")
        e(f"v_lshl_add_u32 v{VA(0)}, v{vt}, 5, v{VA(0)}")
        e(f"v_and_b32 v{vt}, 3, v{vl}")
        e(f"v_lshl_add_u32 v{VA(0)}, v{vt}, 3, v{VA(0)}")
        e(f"v_add_u32 v{VA(0)}, 0x10000, v{VA(0)}")
        for db in range(1, 4): e(f"v_xor_b32 v{VA(db)}, {db<<6:#x}, v{VA(0)}")
        for d in range(8): e(f"v_add_u32 v{32+d}, s{S_T0}, v{KA(d)}")
        e(f"s_mov_b32 s{S_C}, {f2u(CSC):#x}"); e(f"s_mov_b32 s{S_C+1}, {f2u(CSC):#x}")
        e(f"v_mov_b32 v{L(0)}, 0"); e(f"v_mov_b32 v{L(1)}, 0")
        for i in range(128): e(f"v_accvgpr_write_b32 a{i}, 0")
        for q in range(2):
            e(f"s_waitcnt vmcnt({self.vm_needed([f'Q{q}'])})")
            for d in range(8):
                e(f"ds_read_b128 {vr(Q(q,d),4)}, v{32+d} offset:{q*8192}")
            for d in range(8):
                e(f"s_waitcnt lgkmcnt({7-d})")
                for k in range(4):
                    r = Q(q, d) + k
                    t = 40 + 2 * k
                    e(f"v_lshlrev_b32 v{t}, 16, v{r}")
                    e(f"v_and_b32 v{t+1}, 0xffff0000, v{r}")
                for k in range(4):
                    t = 40 + 2 * k
                    e(f"v_pk_mul_f32 {vr(t,2)}, {vr(t,2)}, s[{S_C}:{S_C+1}]")
                for k in range(4):
                    t = 40 + 2 * k
                    e(f"v_cvt_pk_bf16_f32 v{Q(q,d)+k}, v{t}, v{t+1}")
        self.emit(self.stamp())
        e(f"s_waitcnt vmcnt({self.vm_needed(['K0'])})")
        e("s_barrier")
        self.emit(self.k_reads(0))
        tile("K", 2); tile("V", 2); tile("K", 3)
        if not a.loop:
            tile("V", 3)
            e(f"s_mov_b32 s{S_G}, {4*16384}")
        else:
            e(f"s_add_u32 s{S_PB}, s{S_KW}, 0x8000")
            e(f"s_mov_b32 s{S_CNT}, 8")
        self.emit(self.stamp())
        e("s_waitcnt lgkmcnt(0)")
        self.emit(self.qk_mfmas(0, zero_c=True))
        self.emit(self.k_reads(1))
        e("s_nop 7")
        self.emit(self.maxfix(0, None, True))
        sm = self.sm_stream(0)
        idx = next(i for i, (ee, x) in enumerate(sm) if ee == a.split and x.is_trans)
        self.emit([x for _, x in sm[:idx]])
        e(f"s_waitcnt vmcnt({self.vm_needed(['V0','K1'])})")
        e("s_barrier")
        self.emit(self.stamp())
        return [x for _, x in sm[idx:]]

    def epilogue(self):
        e = self.e
        a = self.a
        self.emit(self.stamp())
        t0 = T
        al = [T + 3, T + 5]
        for q in range(2):
            e(f"v_mov_b32 v{t0+q}, v{L(q)}")
        e("s_nop 1")
        for q in range(2):
            e(f"v_permlane32_swap_b32 v{t0+q}, v{L(q)}")
        e("s_nop 1")
        for q in range(2):
            e(f"v_add_f32 v{L(q)}, v{L(q)}, v{t0+q}")
        inv = [184, 186]
        for q in range(2):
            e(f"v_rcp_f32 v{inv[q]}, v{L(q)}")
        va = 188
        e(f"v_mbcnt_lo_u32_b32 v{va}, -1, 0"); e(f"v_mbcnt_hi_u32_b32 v{va}, -1, v{va}")
        e(f"v_lshrrev_b32 v{va+1}, 5, v{va}"); e(f"v_and_b32 v{va}, 31, v{va}")
        e(f"v_lshlrev_b32 v{va}, 8, v{va}"); e(f"v_lshl_add_u32 v{va}, v{va+1}, 4, v{va}")
        e(f"s_lshl_b32 s{S_T0}, s{S_W}, 14"); e(f"s_add_u32 s{S_T1}, s{S_T0}, 8192")
        e("s_nop 4")
        blk = 0
        for q in range(2):
            for db in range(4):
                tb = 16 * (blk % 8)
                pb = 128 + 8 * (blk % 4)
                blk += 1
                for i in range(16): e(f"v_accvgpr_read_b32 v{tb+i}, a{O(db,q)+i}")
                for i in range(0, 16, 2):
                    e(f"v_pk_mul_f32 {vr(tb+i,2)}, {vr(tb+i,2)}, {vr(inv[q],2)} op_sel_hi:[1,0]")
                for i in range(8): e(f"v_cvt_pk_bf16_f32 v{pb+i}, v{tb+2*i}, v{tb+2*i+1}")
                e("s_nop 0")
                for g in (0, 2):
                    e(f"v_permlane32_swap_b32 v{pb+2*g}, v{pb+2*g+2}")
                    e(f"v_permlane32_swap_b32 v{pb+2*g+1}, v{pb+2*g+3}")
                for g in (0, 2):
                    e(f"buffer_store_dwordx4 {vr(pb+2*g,4)}, v{va}, {srd(SO)}, s{S_T0+q} offen offset:{db*64+g*16} {a.omod}".strip())
        self.emit(self.stamp())
        if a.stamp:
            e("s_waitcnt vmcnt(0)")
            self.emit(self.stamp())
            e(f"v_mbcnt_lo_u32_b32 v0, -1, 0"); e(f"v_mbcnt_hi_u32_b32 v0, -1, v0"); e("v_lshlrev_b32 v0, 2, v0")
            e(f"buffer_store_dword v{T+9}, v0, {srd(SWS)}, s{S_WSO} offen")
            e(f"buffer_store_dword v{T+10}, v0, {srd(SWS)}, s{S_WSO} offen offset:256")
        e("L_end:")
        e("s_endpgm")

    def body_unrolled(self, rest):
        for u in range(32):
            t = u // 2
            self.phaseA(u, rest, has_qk=(u < 31))
            dma = None; barrier = None
            if u % 2 == 1:
                if t < 15:
                    need = [f"V{t+1}"] + ([f"K{t+2}"] if t + 2 <= 15 else [])
                    barrier = self.vm_needed(need)
                if t + 4 <= 15:
                    m0, lds = self.dma_tile("K", t + 4); dma = (m0, lds, [])
            else:
                if t >= 1 and t + 3 <= 15:
                    m0, lds = self.dma_tile("V", t + 3); dma = (m0, lds, [I(f"s_add_u32 s{S_G}, s{S_G}, 16384")])
            rest = self.phaseB(u, has_next=(u < 31), has_kreads=(u + 2 < 32), dma=dma, barrier=barrier)
            if self.a.stamp and u % 4 == 3 and u < 31:
                self.emit(self.stamp())

    def body_looped(self, rest):
        e = self.e
        a = self.a
        if a.align: e(f".p2align {a.align}")
        e("L_loop:")
        n0 = len(self.out)
        rest0 = [I(x.text) for x in rest]
        for u in range(4):
            t = u // 2
            self.k_xored = (u == 3)
            self.phaseA(u, rest, looped=True, xor_k=(u == 2))
            extra = {}
            if u % 2 == 1:
                barrier = 12
                m0, lds = self.dma_tile("K", t + 4, True); dma = (m0, lds, [])
            else:
                barrier = None
                m0, lds = self.dma_tile("V", t + 3, True); dma = (m0, lds, [I(f"s_add_u32 s{S_G}, s{S_G}, 16384")])
            if u == 0:
                dma[2].append(I(f"s_xor_b32 s{S_PB}, s{S_PB}, 0x8000"))
            if u == 2:
                extra[12] = [I(f"s_sub_u32 s{S_CNT}, s{S_CNT}, 1")]
            if u == 3:
                for db, g in enumerate((0, 12, 14, 15) if False else (12, 12, 14, 15)):
                    extra.setdefault(g, []).append(I(f"v_xor_b32 v{VA(db)}, 0x8000, v{VA(db)}"))
            rest = self.phaseB(u, looped=True, dma=dma, barrier=barrier, extra=extra)
            if u == 2:
                e(f"s_cmp_eq_u32 s{S_CNT}, 0")
                e("s_cbranch_scc1 L_tail")
                rest_tail = [I(x.text) for x in rest]
                n_exit = len(self.out)
        if a.stamp: self.emit(self.stamp())
        e("s_branch L_loop")
        n1 = len(self.out)
        assert [x.text for x in rest] == [x.text for x in rest0]
        e("L_tail:")
        self.k_xored = True
        self.phaseA(31, rest_tail, looped=True, has_qk=False)
        self.phaseB(31, looped=True, has_next=False, has_kreads=False)
        self.check_seq = lambda: self.out[:n1] + self.out[n0:n_exit] + self.out[n1:]

    def build(self):
        rest = self.prologue()
        n0 = len(self.out)
        self.check_seq = lambda: self.out
        if self.a.loop: self.body_looped(rest)
        else: self.body_unrolled(rest)
        if self.a.drop:
            pats = self.a.drop.split(",")
            body = [i for i in self.out[n0:] if not any(i.op.startswith(p) for p in pats)]
            self.out = self.out[:n0] + body
        self.epilogue()
        probs = check(self.check_seq(), "main", verbose=False)
        hdr = open("standalone__gqa_softmax__near_ridge.s.ref").read().split("; Override")[0]
        probs += check(self.slow, "slow", verbose=False)
        txt = hdr + "; @launch grid=(256,1,1) block=(256,1,1) lds=163840\n"
        txt += '.amdgcn_target "amdgcn-amd-amdhsa--gfx950"\n.text\n'
        txt += f".globl {KNAME}\n.p2align 8\n.type {KNAME},@function\n{KNAME}:\n"
        txt += "\n".join(str(i) for i in self.out) + "\n"
        txt += "\n".join(str(i) for i in self.slow) + "\n"
        txt += f""".section .rodata,"a"
.p2align 6
.amdhsa_kernel {KNAME}
  .amdhsa_next_free_vgpr 384
  .amdhsa_next_free_sgpr 64
  .amdhsa_accum_offset 256
  .amdhsa_group_segment_fixed_size 0
  .amdhsa_kernarg_size 48
  .amdhsa_user_sgpr_count 2
  .amdhsa_user_sgpr_kernarg_segment_ptr 1
  .amdhsa_system_sgpr_workgroup_id_x 1
.end_amdhsa_kernel
"""
        return txt, probs


def get_args(argv=None):
    p = argparse.ArgumentParser()
    p.add_argument("-o", default="k.s")
    p.add_argument("--stamp", action="store_true")
    p.add_argument("--split", type=int, default=17)
    p.add_argument("--a_last", type=int, default=14)
    p.add_argument("--bar_gap", type=int, default=0)
    p.add_argument("--vplan", default="2,2,2,2,1,1,1,1,1,1,1,1")
    p.add_argument("--kplan", default="1,2,3,4,6,7,9,10")
    p.add_argument("--dplan", default="5,8,11,13")
    p.add_argument("--drop", default="")
    p.add_argument("--loop", type=int, default=1)
    p.add_argument("--align", type=int, default=6)
    p.add_argument("--kvmod", default="")
    p.add_argument("--qmod", default="")
    p.add_argument("--omod", default="")
    a = p.parse_args(argv)
    a.vplan = [int(x) for x in a.vplan.split(",")]
    a.kplan = [int(x) for x in a.kplan.split(",")]
    a.dplan = [int(x) for x in a.dplan.split(",")]
    return a


if __name__ == "__main__":
    a = get_args()
    g = Gen(a)
    txt, probs = g.build()
    open(a.o, "w").write(txt)
    for p in probs: print(p)
    print(f"wrote {a.o}: {len(g.out)} main insts, {len(g.slow)} slow insts, {len(probs)} problems")
```

```python
import sys, struct, math, argparse
from asmlib import I, check

KNAME = "standalone__gqa_softmax__near_ridge_kernel"
CSC = math.log2(math.e) / math.sqrt(128.0)
def f2u(x): return struct.unpack("<I", struct.pack("<f", x))[0]
THR = f2u(2.0 ** 20)
MF = "v_mfma_f32_16x16x32_bf16"

def O(q, db): return (q * 8 + db) * 4
def S(buf, q): return 128 + 32 * buf + 8 * q
def NEGM(q): return 192 + 4 * q
def X(q): return 208 + 4 * q
def KA(ds): return 224 + ds
def VA(db): return 228 + db
def KD(n): return 236 + n
def VD(p): return 240 + p
def L(q): return 242 + q
T = 246
def Q(q, ds): return (q * 4 + ds) * 4
def KF(kb2, ds): return 64 + (kb2 * 4 + ds) * 4
def VF(db): return 96 + 4 * db
ONES = 128
ST0, ST1 = 132, 133
NAGPR = 136
def vr(b, n): return f"v[{b}:{b+n-1}]"
def ar(b, n): return f"a[{b}:{b+n-1}]"

SQ, SK, SV, SO = 12, 16, 20, 24
S_W, S_KW, S_G = 28, 29, 30
S_T0, S_T1, S_T2 = 31, 32, 33
S_PB, S_CNT = 34, 35
S_C = 36
S_WSO, S_SI, S_STAMP = 38, 39, 40
SWS = 44
S_QL, S_QG = 56, 57
def srd(b): return f"s[{b}:{b+3}]"


class Item:
    def __init__(self, ins, early=0, late=10**6):
        self.ins = ins if isinstance(ins, list) else [ins]
        self.early, self.late = early, late
    @property
    def cost(self): return sum(i.cost for i in self.ins)


class Gen:
    def __init__(self, a):
        self.a = a
        self.out, self.slow, self.dma_log = [], [], []

    def e(self, t, note=None): self.out.append(I(t, note))

    def emit(self, ins):
        for i in ins:
            if hasattr(i, "dma"): self.dma_log.append(i.dma)
            self.out.append(i)

    def stamp(self):
        if not self.a.stamp: return []
        return [I(f"s_memtime s[{S_STAMP}:{S_STAMP+1}]"), I(f"s_memrealtime s[{S_STAMP+2}:{S_STAMP+3}]"),
                I("s_waitcnt lgkmcnt(0)"), I(f"s_lshl_b64 exec, 1, s{S_SI}"),
                I(f"v_accvgpr_write_b32 a{ST0}, s{S_STAMP}"), I(f"v_accvgpr_write_b32 a{ST1}, s{S_STAMP+2}"),
                I("s_mov_b64 exec, -1"), I(f"s_add_u32 s{S_SI}, s{S_SI}, 1")]

    def slot(self, t): return t % self.a.unroll if self.a.unroll < 4 else t % 4

    def dma_tile(self, which, t, static=False):
        base = (0 if which == "K" else 65536)
        if static or self.a.unroll == 4:
            m0 = I(f"s_add_u32 m0, s{S_KW}, {base + (t % 4) * 16384}")
        else:
            m0 = I(f"s_add_u32 m0, s{S_PB}, {base + (t % 2) * 16384}")
        r = []
        for n in range(4):
            vo = KD(n) if which == "K" else VD(n & 1)
            sr = SK if which == "K" else SV
            ld = I(" ".join(f"buffer_load_dwordx4 v{vo}, {srd(sr)}, s{S_G} offen offset:{n*1024} {self.a.kvmod} lds".split()),
                   f"DMA {which}{t}.{n}")
            ld.dma = f"{which}{t}"
            r.append(ld)
        return m0, r

    def vm_needed(self, names):
        last = max(i for i, n in enumerate(self.dma_log) if n in names)
        return len(self.dma_log) - 1 - last

    def qk_mfmas(self, buf, zero_c=False, qs=range(4)):
        r = []
        for q in qs:
            for kb2 in range(2):
                d = vr(S(buf, q) + 4 * kb2, 4)
                for ds in range(4):
                    c = d
                    if ds == 0: c = "0" if zero_c else vr(NEGM(q), 4)
                    r.append(I(f"{MF} {d}, {ar(KF(kb2,ds),4)}, {ar(Q(q,ds),4)}, {c}"))
        return r

    def pv_mfmas(self, buf, qmajor=False):
        o = [(db, q) for db in range(8) for q in range(4)]
        if qmajor: o = [(db, q) for q in range(4) for db in range(8)]
        return [I(f"{MF} {vr(O(q,db),4)}, {ar(VF(db),4)}, {vr(S(buf,q),4)}, {vr(O(q,db),4)}") for db, q in o]

    def sum_mfma(self, buf, q):
        return I(f"{MF} {vr(X(q),4)}, {ar(ONES,4)}, {vr(S(buf,q),4)}, 0")

    def k_reads(self, u):
        t, kb = u // 2, u % 2
        off = self.slot(t) * 16384 + kb * 8192
        return [I(f"ds_read_b128 {ar(KF(kb2,ds),4)}, v{KA(ds)} offset:{off + kb2*4096}") for kb2 in range(2) for ds in range(4)]

    def v_reads(self, u):
        t, kb = u // 2, u % 2
        off = self.slot(t) * 16384 + kb * 8192
        return [I(f"ds_read_b64_tr_b16 {ar(VF(db)+2*tt,2)}, v{VA(db)} offset:{off + tt*4096}") for db in range(8) for tt in range(2)]

    def sm_stream(self, buf):
        r = []
        def post(e):
            q, i = e // 8, e % 8
            b = S(buf, q)
            if i % 2 == 1:
                r.append((e, I(f"v_cvt_pk_bf16_f32 v{b+i//2}, v{b+i-1}, v{b+i}")))
            if i == 7: r.append((e, ("SUM", buf, q)))
        for e in range(32):
            r.append((e, I(f"v_exp_f32 v{S(buf,0)+e}, v{S(buf,0)+e}")))
            if e >= 1: post(e - 1)
        post(31)
        return r

    def flat_stream(self, items):
        r = []
        for x in items:
            if isinstance(x, tuple):
                r += [I("s_nop 1"), self.sum_mfma(x[1], x[2])]
            else:
                if r and r[-1].is_trans and set(r[-1].dst) & set(x.src): r.append(I("s_nop 0"))
                r.append(x)
        return r

    def rowmax(self, b, t0, t1):
        return [I(f"v_max3_f32 v{t0}, v{b}, v{b+1}, v{b+2}"), I(f"v_max3_f32 v{t1}, v{b+3}, v{b+4}, v{b+5}"),
                I(f"v_max3_f32 v{t0}, v{t0}, v{b+6}, v{b+7}"), I(f"v_max_f32 v{t0}, v{t0}, v{t1}"),
                I(f"v_mov_b32 v{t1}, v{t0}"), I("s_nop 1"), I(f"v_permlane16_swap_b32 v{t0}, v{t1}"), I("s_nop 1"),
                I(f"v_max_f32 v{t0}, v{t0}, v{t1}"),
                I(f"v_mov_b32 v{t1}, v{t0}"), I("s_nop 1"), I(f"v_permlane32_swap_b32 v{t0}, v{t1}"), I("s_nop 1")]

    def maxfix_first(self, buf, qs):
        r = []
        ts = {q: (T + 2 * i, T + 2 * i + 1) for i, q in enumerate(qs)}
        def each(f):
            for q in qs: r.append(I(f(q, S(buf, q), *ts[q])))
        pad = [I("s_nop 1")] if len(qs) < 3 else []
        each(lambda q, b, t0, t1: f"v_max3_f32 v{t0}, v{b}, v{b+1}, v{b+2}")
        each(lambda q, b, t0, t1: f"v_max3_f32 v{t1}, v{b+3}, v{b+4}, v{b+5}")
        each(lambda q, b, t0, t1: f"v_max3_f32 v{t0}, v{t0}, v{b+6}, v{b+7}")
        each(lambda q, b, t0, t1: f"v_max_f32 v{t0}, v{t0}, v{t1}")
        for sw in ("v_permlane16_swap_b32", "v_permlane32_swap_b32"):
            each(lambda q, b, t0, t1: f"v_mov_b32 v{t1}, v{t0}")
            r += pad
            each(lambda q, b, t0, t1: f"{sw} v{t0}, v{t1}")
            r += pad
            each(lambda q, b, t0, t1: f"v_max_f32 v{t0}, v{t0}, v{t1}")
        for q in qs:
            t0 = ts[q][0]
            for i in range(4): r.append(I(f"v_sub_f32 v{NEGM(q)+i}, 0, v{t0}"))
            for i in range(8): r.append(I(f"v_sub_f32 v{S(buf,q)+i}, v{S(buf,q)+i}, v{t0}"))
        return r

    def slow_path(self, u, label, has_next, xored):
        cur, nxt = u % 2, (u + 1) % 2
        r = [I(f"{label}:")]
        x = [I(f"v_xor_b32 v{KA(ds)}, 0x8000, v{KA(ds)}") for ds in range(4)] if xored else []
        r += [I("s_nop 3")] + x + self.k_reads(u) + [I(i.text) for i in x]
        r.append(I("s_waitcnt lgkmcnt(0)"))
        r += self.qk_mfmas(cur)
        r.append(I("s_nop 7"))
        t0, t1, t2 = T, T + 1, T + 2
        for q in range(4):
            b = S(cur, q)
            r += self.rowmax(b, t0, t1)
            r.append(I(f"v_max3_f32 v{t0}, v{t0}, v{t1}, 0"))
            r.append(I(f"v_exp_f32 v{t2}, -v{t0}"))
            for i in range(4): r.append(I(f"v_sub_f32 v{NEGM(q)+i}, v{NEGM(q)+i}, v{t0}"))
            r.append(I(f"v_mul_f32 v{L(q)}, v{L(q)}, v{t2}"))
            if has_next:
                for i in range(8): r.append(I(f"v_sub_f32 v{S(nxt,q)+i}, v{S(nxt,q)+i}, v{t0}"))
            for i in range(32): r.append(I(f"v_mul_f32 v{O(q,0)+i}, v{O(q,0)+i}, v{t2}"))
            for i in range(8): r.append(I(f"v_sub_f32 v{b+i}, v{b+i}, v{t0}"))
        r += self.flat_stream([x for _, x in self.sm_stream(cur)])
        r.append(I("s_nop 7"))
        r.append(I(f"s_branch {label}_ret"))
        return r

    def schedule(self, mfmas, stream, others, tail=(), tail_lag=8, fin=(), nxt_stream=None):
        out = []
        M = list(mfmas); stream = list(stream); tail = list(tail)
        others = sorted(others, key=lambda x: (x.early, x.late))
        kind = lambda o: "s" if o.ins[0].is_salu else ("d" if o.ins[0].is_ds else ("m" if o.ins[0].is_vmem else "v"))
        pend = []
        last_sum_pos = None
        def states_since(idx): return sum(i.states for i in out[idx + 1:])
        g = -1
        def pop_markers():
            while stream and isinstance(stream[0], tuple):
                x = stream.pop(0); pend.append([self.sum_mfma(x[1], x[2]), len(out) - 1])
        def last_real():
            return out[-1]
        def ok(n):
            l = last_real()
            return not (l.is_trans and set(l.dst) & set(n.src))
        def take(k, overdue=False):
            for o in others:
                if kind(o) == k and (o.late <= g if overdue else o.early <= g):
                    others.remove(o); return o
            return None
        def small_v():
            pop_markers()
            o = take("v", True)
            if o: return o.ins
            if stream and stream[0].cost == 4 and ok(stream[0]): return [stream.pop(0)]
            if tail and not stream and not pend and (last_sum_pos is None or states_since(last_sum_pos) >= tail_lag):
                return [tail.pop(0)]
            o = take("v")
            if o: return o.ins
            return None
        while M or pend or any(isinstance(x, tuple) for x in stream):
            if pend and states_since(pend[0][1]) >= 2:
                out.append(pend.pop(0)[0]); last_sum_pos = len(out) - 1
            elif M:
                out.append(M.pop(0))
            elif pend:
                out.append(I("s_nop 1")); out.append(pend.pop(0)[0]); last_sum_pos = len(out) - 1
            else:
                while stream and not isinstance(stream[0], tuple): out.append(stream.pop(0))
                pop_markers(); continue
            g += 1
            is_last = not M and not pend and not any(isinstance(x, tuple) for x in stream)
            if is_last and fin: break
            o = take("s")
            if o: out += o.ins
            pop_markers()
            nxt_exp = bool(stream) and stream[0].cost == 8
            o = take("m", True) or take("d", True)
            if not o and not nxt_exp: o = take("d") or take("m")
            if o:
                out += o.ins
                if kind(o) == "d":
                    v = small_v()
                    if v: out += v
            elif nxt_exp:
                out.append(stream.pop(0))
            else:
                for _ in range(2):
                    v = small_v()
                    if v: out += v
            pop_markers()
        for x in stream: out.append(x)
        for o in others: out += o.ins
        if tail:
            if last_sum_pos is not None and states_since(last_sum_pos) < tail_lag:
                out.append(I(f"s_nop {tail_lag - states_since(last_sum_pos) - 1}"))
            out += tail
        out += list(fin)
        if fin and nxt_stream and not isinstance(nxt_stream[0], tuple):
            out.append(nxt_stream.pop(0))
        return out

    def insert_waits(self, seq, pending):
        out = []
        pend = list(pending)
        pend = [(p, -1) for p in pend]
        last_m = -1
        for x in seq:
            if x.op == "s_waitcnt" and "lgkmcnt" in x.text:
                import re
                k = int(re.search(r"lgkmcnt\((\d+)\)", x.text).group(1))
                pend = pend[len(pend) - k:] if 0 < k < len(pend) else ([] if k == 0 else pend)
            if x.is_mfma:
                need = [i for i, (p, _) in enumerate(pend) if p & set(x.src)]
                if need:
                    j = max(need)
                    pos = last_m + 1 if pend[j][1] <= last_m else len(out)
                    n = sum(1 for (p, q) in pend[j + 1:] if q < pos)
                    assert n <= 15
                    out.insert(pos, I(f"s_waitcnt lgkmcnt({n})"))
                    pend = [(p, q + (1 if q >= pos else 0)) for (p, q) in pend[j + 1:]]
                last_m = len(out)
            if x.is_ds: pend.append((set(x.dst), len(out)))
            out.append(x)
        return out, [p for p, _ in pend]

    def check_ins(self):
        return [I(f"v_max3_f32 v{T}, v{X(0)}, v{X(1)}, v{X(2)}"), I(f"v_max_f32 v{T}, v{T}, v{X(3)}"),
                I(f"v_cmp_lt_f32 vcc, {THR:#x}, v{T}")]

    def split_stream(self, buf):
        sm = self.sm_stream(buf)
        idx = next(i for i, (e, x) in enumerate(sm) if e == self.a.split and isinstance(x, I) and x.is_trans)
        return [x for _, x in sm[:idx]], [x for _, x in sm[idx:]]

    def phaseA(self, u, rest, has_qk=True, extra=(), xored=False, tag=""):
        a = self.a
        nxt = (u + 1) % 2
        vreads = self.v_reads(u)
        label = f"L_slow_{u}{tag}"
        others = [Item(v, g, g + a.v_slack) for v, g in zip(vreads, a.vplan)]
        others += list(extra)
        fin = [I(f"s_cbranch_vccnz {label}"), I(f"{label}_ret:")]
        if has_qk:
            first, nrest = self.split_stream(nxt)
            o = self.schedule(self.qk_mfmas(nxt), rest, others, tail=self.check_ins(), fin=fin, nxt_stream=first)
        else:
            first, nrest = [], []
            o = list(vreads[:8])
            fl = self.flat_stream(rest)
            o += fl[:4] + vreads[8:] + fl[4:] + [I("s_nop 7")] + self.check_ins() + fin
        self.slow += self.slow_path(u, label, has_qk, xored)
        return o, first, nrest

    def phaseB(self, u, stream, has_kreads=True, barrier=None, extra=(), last=False):
        a = self.a
        cur = u % 2
        others = []
        if barrier is not None:
            others.append(Item([I(f"s_waitcnt vmcnt({barrier})")], a.bar_gap, a.bar_gap))
            others.append(Item([I("s_barrier")], a.bar_gap + 1, a.bar_gap + 1))
        if has_kreads:
            others += [Item(k, g, g + a.k_slack) for k, g in zip(self.k_reads(u + 2), a.kplan)]
        for q in range(4):
            others.append(Item(I(f"v_add_f32 v{L(q)}, v{L(q)}, v{X(q)}"), 0, 9 + 3 * q))
        others += list(extra)
        return self.schedule(self.pv_mfmas(cur, qmajor=last), stream, others)

    def dma_items(self, which, t, post=(), static=False):
        a = self.a
        m0, lds = self.dma_tile(which, t, static)
        gs = [a.d_early + n * a.d_step for n in range(4)]
        its = [Item(m0, max(gs[0] - 2, 0), gs[0] - 1)]
        for n in range(4): its.append(Item(lds[n], gs[n], gs[n] + a.d_slack))
        for p in post: its.append(Item(p, gs[3] + a.d_slack + 1, gs[3] + a.d_slack + 3))
        return its

    def prologue(self):
        e, a = self.e, self.a
        if a.stamp:
            e("s_memtime s[48:49]"); e("s_memrealtime s[50:51]")
        e("s_cmp_ge_u32 s2, 256"); e("s_cbranch_scc1 L_end")
        e("s_load_dwordx4 s[4:7], s[0:1], 0"); e("s_load_dwordx4 s[8:11], s[0:1], 16")
        if a.stamp: e(f"s_load_dwordx2 s[{SWS}:{SWS+1}], s[0:1], 40")
        vl, vg, vt, vu = T, T + 1, T + 2, T + 3
        e(f"v_lshrrev_b32 v{vt}, 6, v0")
        e(f"v_and_b32 v{vl}, 63, v0", "lane")
        e(f"v_readfirstlane_b32 s{S_W}, v{vt}")
        e(f"s_and_b32 s{S_T0}, s2, 7"); e(f"s_lshr_b32 s{S_T1}, s2, 3")
        e(f"s_lshl_b32 s{S_T0}, s{S_T0}, 4"); e(f"s_lshr_b32 s{S_T2}, s{S_T1}, 1")
        e(f"s_add_u32 s{S_T0}, s{S_T0}, s{S_T2}", "kv head index")
        e(f"s_and_b32 s{S_T1}, s{S_T1}, 1"); e(f"s_lshl_b32 s{S_T2}, s{S_T0}, 1")
        e(f"s_add_u32 s{S_T1}, s{S_T1}, s{S_T2}", "q head index")
        e(f"s_lshl_b32 s{S_T0}, s{S_T0}, 18"); e(f"s_lshl_b32 s{S_T1}, s{S_T1}, 16")
        e(f"s_lshl_b32 s{S_KW}, s{S_W}, 12")
        e(f"v_lshrrev_b32 v{vg}, 4, v{vl}", "g = lane>>4")
        e(f"v_and_b32 v{vt}, 15, v{vl}", "i = lane&15")
        e(f"v_xor_b32 v{vu}, v{vt}, v{vg}")
        e(f"v_lshlrev_b32 v{vu}, 4, v{vu}")
        e(f"v_lshl_add_u32 v{KD(0)}, v{vg}, 8, v{vu}")
        e(f"v_add_u32 v{KD(0)}, s{S_KW}, v{KD(0)}")
        for n in range(1, 4): e(f"v_xor_b32 v{KD(n)}, {n<<6:#x}, v{KD(0)}")
        e(f"s_lshl_b32 s{S_QL}, s{S_W}, 14")
        e(f"s_cmp_lt_u32 s{S_W}, 2"); e(f"s_cselect_b32 s{S_QG}, 0x20000, 0")
        e(f"s_add_u32 s{S_QL}, s{S_QL}, s{S_QG}", "q lds base")
        e(f"s_mul_i32 s{S_QG}, s{S_W}, 12288")
        e(f"s_mov_b32 m0, s{S_QL}")
        e("s_waitcnt lgkmcnt(0)")
        if a.stamp:
            e("s_memtime s[52:53]"); e("s_memrealtime s[54:55]"); e("s_waitcnt lgkmcnt(0)")
        def mksrd(sr, p, off, n):
            e(f"s_add_u32 s{sr}, s{p}, s{off}"); e(f"s_addc_u32 s{sr+1}, s{p+1}, 0")
            e(f"s_mov_b32 s{sr+2}, {n}"); e(f"s_mov_b32 s{sr+3}, 0x20000")
        mksrd(SQ, 4, S_T1, 65536)
        def qgrp(grp):
            r = []
            if grp:
                r += [I(f"s_add_u32 m0, s{S_QL}, {grp*4096}"), I(f"s_add_u32 s{S_QG}, s{S_QG}, 4096")]
            for n in range(4):
                ld = I(" ".join(f"buffer_load_dwordx4 v{KD(n)}, {srd(SQ)}, s{S_QG} offen offset:{n*1024} {a.qmod} lds".split()))
                ld.dma = f"Q{grp}"
                r.append(ld)
            return r
        def tile(which, t):
            m0, lds = self.dma_tile(which, t, static=True)
            return [m0, I(f"s_mov_b32 s{S_G}, {t*16384}")] + lds
        self.emit(qgrp(0)); self.emit(qgrp(1))
        mksrd(SK, 6, S_T0, 262144)
        self.emit(tile("K", 0))
        mksrd(SV, 8, S_T0, 262144); mksrd(SO, 10, S_T1, 65536)
        e(f"v_lshlrev_b32 v{vu}, 1, v{vg}")
        e(f"v_xor_b32 v{vu}, v{vt}, v{vu}")
        e(f"v_lshlrev_b32 v{vu}, 4, v{vu}")
        e(f"v_lshl_add_u32 v{VD(0)}, v{vg}, 8, v{vu}")
        e(f"v_add_u32 v{VD(0)}, s{S_KW}, v{VD(0)}")
        e(f"v_xor_b32 v{VD(1)}, 0x80, v{VD(0)}")
        if a.stamp:
            e(f"s_mov_b32 s{SWS+2}, 0x1000000"); e(f"s_mov_b32 s{SWS+3}, 0x20000")
            e(f"s_lshl_b32 s{S_WSO}, s2, 2"); e(f"s_add_u32 s{S_WSO}, s{S_WSO}, s{S_W}"); e(f"s_lshl_b32 s{S_WSO}, s{S_WSO}, 9")
            e(f"v_accvgpr_write_b32 a{ST0}, 0"); e(f"v_accvgpr_write_b32 a{ST1}, 0"); e(f"s_mov_b32 s{S_SI}, 2")
            e("s_mov_b64 exec, 1"); e(f"v_accvgpr_write_b32 a{ST0}, s48"); e(f"v_accvgpr_write_b32 a{ST1}, s50")
            e("s_mov_b64 exec, 2"); e(f"v_accvgpr_write_b32 a{ST0}, s52"); e(f"v_accvgpr_write_b32 a{ST1}, s54")
            e("s_mov_b64 exec, -1")
            self.emit(self.stamp())
        e(f"v_xor_b32 v{vu}, v{vt}, v{vg}")
        e(f"v_lshlrev_b32 v{vu}, 4, v{vu}")
        e(f"v_lshl_add_u32 v{KA(0)}, v{vt}, 8, v{vu}")
        for ds in range(1, 4): e(f"v_xor_b32 v{KA(ds)}, {ds<<6:#x}, v{KA(0)}")
        e(f"v_lshrrev_b32 v{vu}, 2, v{vl}", "key = lane>>2")
        e(f"v_lshlrev_b32 v{VA(0)}, 8, v{vu}")
        e(f"v_and_b32 v{vu}, 7, v{vu}")
        e(f"v_lshl_add_u32 v{VA(0)}, v{vu}, 5, v{VA(0)}")
        e(f"v_and_b32 v{vu}, 3, v{vl}")
        e(f"v_lshl_add_u32 v{VA(0)}, v{vu}, 3, v{VA(0)}")
        e(f"v_add_u32 v{VA(0)}, 0x10000, v{VA(0)}")
        for db in range(1, 8): e(f"v_xor_b32 v{VA(db)}, {db<<5:#x}, v{VA(0)}")
        QA = X(0)
        for ds in range(4): e(f"v_add_u32 v{QA+ds}, s{S_QL}, v{KA(ds)}")
        e(f"s_mov_b32 s{S_C}, {f2u(CSC):#x}"); e(f"s_mov_b32 s{S_C+1}, {f2u(CSC):#x}")
        for q in range(4): e(f"v_mov_b32 v{L(q)}, 0")
        e(f"v_mov_b32 v{vu}, 0x3f803f80")
        for i in range(4): e(f"v_accvgpr_write_b32 a{ONES+i}, v{vu}")
        for i in range(128): e(f"v_mov_b32 v{i}, 0")
        self.emit(qgrp(2)); self.emit(qgrp(3))
        self.emit(self.stamp())
        RAW = S(1, 0); TMP = S(1, 2)
        def qproc(q, inter=()):
            inter = list(inter)
            e(f"s_waitcnt vmcnt({self.vm_needed([f'Q{q}'])})")
            for ds in range(4): e(f"ds_read_b128 {vr(RAW+4*ds,4)}, v{QA+ds} offset:{q*4096}")
            for ds in range(4):
                e(f"s_waitcnt lgkmcnt({3-ds})")
                for k in range(4):
                    e(f"v_lshlrev_b32 v{TMP+2*k}, 16, v{RAW+4*ds+k}")
                    e(f"v_and_b32 v{TMP+2*k+1}, 0xffff0000, v{RAW+4*ds+k}")
                for k in range(4): e(f"v_pk_mul_f32 {vr(TMP+2*k,2)}, {vr(TMP+2*k,2)}, s[{S_C}:{S_C+1}]")
                for k in range(4): e(f"v_cvt_pk_bf16_f32 v{TMP+8+k}, v{TMP+2*k}, v{TMP+2*k+1}")
                for k in range(4): e(f"v_accvgpr_write_b32 a{Q(q,ds)+k}, v{TMP+8+k}")
        qproc(0); qproc(1)
        self.emit(tile("V", 0))
        self.emit(self.stamp())
        e(f"s_waitcnt vmcnt({self.vm_needed(['K0'])})")
        e("s_barrier")
        self.emit(self.k_reads(0))
        self.emit(tile("K", 1))
        e("s_waitcnt lgkmcnt(0)")
        self.emit(self.qk_mfmas(0, zero_c=True, qs=(0, 1)))
        qproc(2)
        self.emit(tile("V", 1))
        self.emit(self.maxfix_first(0, (0, 1)))
        qproc(3)
        self.emit(self.stamp())
        e("s_nop 0")
        self.emit(self.qk_mfmas(0, zero_c=True, qs=(2, 3)))
        sm = self.sm_stream(0)
        idx = next(i for i, (ee, x) in enumerate(sm) if ee == a.split and isinstance(x, I) and x.is_trans)
        i16 = next(i for i, (ee, x) in enumerate(sm) if ee == 16 and isinstance(x, I) and x.is_trans)
        self.emit(self.k_reads(1))
        self.emit(self.flat_stream([x for _, x in sm[:i16]]))
        self.emit(self.maxfix_first(0, (2, 3)))
        self.emit(self.flat_stream([x for _, x in sm[i16:idx]]))
        e(f"s_waitcnt vmcnt({self.vm_needed(['V0','K1'])}) lgkmcnt(0)")
        e("s_barrier", "V0,K1 visible; Q staging slots free")
        self.emit(tile("K", 2)); self.emit(tile("V", 2)); self.emit(tile("K", 3))
        if a.unroll == 2: e(f"s_add_u32 s{S_PB}, s{S_KW}, 0x8000")
        e(f"s_mov_b32 s{S_CNT}, {16 // a.unroll}")
        self.emit(self.stamp())
        return [x for _, x in sm[idx:]]

    def epilogue(self):
        e, a = self.e, self.a
        self.emit(self.stamp())
        inv = [T, T + 2, T + 4, T + 6]
        va = T + 8
        for q in range(4): e(f"v_rcp_f32 v{inv[q]}, v{L(q)}")
        e(f"v_mbcnt_lo_u32_b32 v{va}, -1, 0"); e(f"v_mbcnt_hi_u32_b32 v{va}, -1, v{va}")
        e(f"v_bfe_u32 v{va+1}, v{va}, 4, 1"); e(f"v_lshrrev_b32 v{T+1}, 5, v{va}")
        e(f"v_and_b32 v{va}, 15, v{va}"); e(f"v_lshlrev_b32 v{va}, 8, v{va}")
        e(f"v_lshl_add_u32 v{va}, v{va+1}, 5, v{va}"); e(f"v_lshl_add_u32 v{va}, v{T+1}, 4, v{va}")
        e(f"s_lshl_b32 s{S_T0}, s{S_W}, 14")
        k = 0
        stores = []
        for q in range(4):
            for dp in range(4):
                b = O(q, 2 * dp)
                pb = S(0, 0) + 4 * (k % 16); k += 1
                for i in range(0, 8, 2):
                    if a.epi_mul:
                        e(f"v_mul_f32 v{b+i}, v{b+i}, v{inv[q]}"); e(f"v_mul_f32 v{b+i+1}, v{b+i+1}, v{inv[q]}")
                    else:
                        e(f"v_pk_mul_f32 {vr(b+i,2)}, {vr(b+i,2)}, {vr(inv[q],2)} op_sel_hi:[1,0]")
                for i in range(4): e(f"v_cvt_pk_bf16_f32 v{pb+i}, v{b+2*i}, v{b+2*i+1}")
                e("s_nop 0")
                e(f"v_permlane16_swap_b32 v{pb}, v{pb+2}")
                e(f"v_permlane16_swap_b32 v{pb+1}, v{pb+3}")
                st = [I(" ".join(f"buffer_store_dwordx4 {vr(pb,4)}, v{va}, {srd(SO)}, s{S_T0} offen offset:{dp*64} {a.omod}".split()))]
                if dp == 3 and q < 3: st.append(I(f"s_add_u32 s{S_T0}, s{S_T0}, 4096"))
                if a.epi_split: stores += st
                else: self.emit(st)
        if a.epi_split:
            self.emit(self.stamp())
            self.emit(stores)
        self.emit(self.stamp())
        if a.stamp:
            e("s_waitcnt vmcnt(0)")
            self.emit(self.stamp())
            e(f"v_mbcnt_lo_u32_b32 v0, -1, 0"); e(f"v_mbcnt_hi_u32_b32 v0, -1, v0"); e("v_lshlrev_b32 v0, 2, v0")
            e(f"buffer_store_dword a{ST0}, v0, {srd(SWS)}, s{S_WSO} offen")
            e(f"buffer_store_dword a{ST1}, v0, {srd(SWS)}, s{S_WSO} offen offset:256")
        e("L_end:")
        e("s_endpgm")

    def body(self, rest):
        e, a = self.e, self.a
        U = 2 * a.unroll
        txt = lambda r: [x if isinstance(x, tuple) else x.text for x in r]
        cp = lambda r: [x if isinstance(x, tuple) else I(x.text) for x in r]
        rest0 = txt(rest)
        inc = lambda: I(f"s_add_u32 s{S_G}, s{S_G}, 16384")
        seq = []
        for u in range(U):
            t = u // 2
            exA, exB = [], []
            if u % 2 == 1: exB += self.dma_items("K", t + 4)
            else: exB += self.dma_items("V", t + 3, [inc()] + ([I(f"s_xor_b32 s{S_PB}, s{S_PB}, 0x8000")] if (a.unroll == 2 and u == 0) else []))
            xored = False
            if a.unroll == 2:
                if u == 2:
                    exA += [Item(I(f"v_xor_b32 v{KA(ds)}, 0x8000, v{KA(ds)}"), 0, 31) for ds in range(4)]
                xored = u >= 2
                if u == 3:
                    for db in range(8):
                        g = a.vplan[2 * db + 1] + a.v_slack + 1
                        if g <= 31: exA.append(Item(I(f"v_xor_b32 v{VA(db)}, 0x8000, v{VA(db)}"), g, 99))
                        else: exB.append(Item(I(f"v_xor_b32 v{VA(db)}, 0x8000, v{VA(db)}"), 0, 31))
            if u == U - 2:
                exA.append(Item(I(f"s_sub_u32 s{S_CNT}, s{S_CNT}, 1"), 4, 31))
                exB.append(Item(I(f"s_cmp_eq_u32 s{S_CNT}, 0"), 31, 31))
            o, first, rest = self.phaseA(u, rest, extra=exA, xored=xored)
            seq += o
            seq += self.phaseB(u, first, barrier=(12 if u % 2 == 1 else None), extra=exB)
            if u == U - 2:
                seq.append(I("s_cbranch_scc1 L_tail"))
                rest_tail = cp(rest)
            if a.stamp and u % 4 == 3: seq += self.stamp()
        seq.append(I("s_branch L_loop"))
        assert txt(rest) == rest0
        _, pend = self.insert_waits(seq, [])
        seq2, pend2 = self.insert_waits(seq, pend)
        assert pend == pend2
        if a.align: e(f".p2align {a.align}")
        e("L_loop:")
        n0 = len(self.out)
        self.emit(seq2)
        n1 = len(self.out)
        n_exit = next(i for i in range(n0, n1) if "L_tail" in self.out[i].text) + 1
        e("L_tail:")
        o, _, _ = self.phaseA(U - 1, rest_tail, has_qk=False, xored=(a.unroll == 2), tag="_t")
        o = [I("s_waitcnt lgkmcnt(0)")] + o + self.phaseB(U - 1, [], has_kreads=False, last=True)
        o, _ = self.insert_waits(o, [])
        self.emit(o)
        self.check_seq = lambda: self.out[:n1] + self.out[n0:n_exit] + self.out[n1:]
        self.loop_range = (n0, n1)

    def build(self):
        rest = self.prologue()
        n0 = len(self.out)
        self.body(rest)
        if self.a.drop:
            pats = self.a.drop.split(",")
            self.out = self.out[:n0] + [i for i in self.out[n0:] if not any(i.op.startswith(p) for p in pats)]
        self.epilogue()
        probs = check(self.check_seq(), "main", verbose=False)
        probs += check(self.slow, "slow", verbose=False)
        hdr = open("standalone__gqa_softmax__near_ridge.s.ref").read().split("; Override")[0]
        txt = hdr + "; @launch grid=(256,1,1) block=(256,1,1) lds=163840\n"
        txt += '.amdgcn_target "amdgcn-amd-amdhsa--gfx950"\n.text\n'
        txt += f".globl {KNAME}\n.p2align 8\n.type {KNAME},@function\n{KNAME}:\n"
        txt += "\n".join(str(i) for i in self.out) + "\n"
        txt += "\n".join(str(i) for i in self.slow) + "\n"
        txt += f""".section .rodata,"a"
.p2align 6
.amdhsa_kernel {KNAME}
  .amdhsa_next_free_vgpr {256 + NAGPR}
  .amdhsa_next_free_sgpr 64
  .amdhsa_accum_offset 256
  .amdhsa_group_segment_fixed_size 0
  .amdhsa_kernarg_size 48
  .amdhsa_user_sgpr_count 2
  .amdhsa_user_sgpr_kernarg_segment_ptr 1
  .amdhsa_system_sgpr_workgroup_id_x 1
.end_amdhsa_kernel
"""
        return txt, probs

    def gap_report(self):
        n0, n1 = self.loop_range
        gaps = []; cur = None
        for i in self.out[n0:n1]:
            if i.is_label: continue
            if i.is_mfma:
                if cur is not None: gaps.append(cur)
                cur = ""
            elif cur is not None:
                cur += "E" if i.is_trans else ("v" if i.is_valu else ("d" if i.is_ds else ("M" if i.is_vmem else "s")))
        gaps.append(cur)
        def t(gp):
            tm = 4; prev = "m"
            for c in gp:
                if c == "s": tm += 4
                else:
                    tm = max(tm, 8)
                    if c in "dM" and prev in "vE": tm += 4
                    if c in "vE" and prev == "M": tm += 4
                    tm += 8 if c == "E" else 4
                prev = c
            if prev in "dM": tm += 4
            return max(16, tm)
        return gaps, sum(map(t, gaps))


def get_args(argv=None):
    p = argparse.ArgumentParser()
    p.add_argument("-o", default="k2.s")
    p.add_argument("--stamp", action="store_true")
    p.add_argument("--split", type=int, default=18)
    p.add_argument("--bar_gap", type=int, default=0)
    p.add_argument("--vplan", default="2,5,8,11,14,17,20,22,24,25,26,27,28,29,30,31")
    p.add_argument("--kplan", default="3,6,9,12,15,18,21,24")
    p.add_argument("--v_slack", type=int, default=1)
    p.add_argument("--k_slack", type=int, default=2)
    p.add_argument("--d_early", type=int, default=7)
    p.add_argument("--d_step", type=int, default=6)
    p.add_argument("--d_slack", type=int, default=1)
    p.add_argument("--dma_in", default="B")
    p.add_argument("--unroll", type=int, default=2)
    p.add_argument("--align", type=int, default=6)
    p.add_argument("--drop", default="")
    p.add_argument("--epi_split", type=int, default=0)
    p.add_argument("--epi_mul", type=int, default=0)
    p.add_argument("--kvmod", default="")
    p.add_argument("--qmod", default="")
    p.add_argument("--omod", default="")
    a = p.parse_args(argv)
    a.vplan = [int(x) for x in a.vplan.split(",")]
    a.kplan = [int(x) for x in a.kplan.split(",")]
    return a


if __name__ == "__main__":
    a = get_args()
    g = Gen(a)
    txt, probs = g.build()
    open(a.o, "w").write(txt)
    for p in probs: print(p)
    gaps, est = g.gap_report()
    print("gaps:", " ".join(x or "-" for x in gaps))
    print(f"wrote {a.o}: {len(g.out)} main insts, {len(g.slow)} slow insts, {len(probs)} problems; est cycles/subtile {est/(2*a.unroll):.0f}")
```

```python
import sys, struct, math, argparse
from asmlib import I, check

KNAME = "standalone__gqa_softmax__near_ridge_kernel"
CSC = math.log2(math.e) / math.sqrt(128.0)
def f2u(x): return struct.unpack("<I", struct.pack("<f", x))[0]
THR = f2u(2.0 ** 20)
MF = "v_mfma_f32_16x16x32_bf16"

def O(q, db): return (q * 8 + db) * 4
def S(buf, q): return 128 + 32 * buf + 8 * q
def NEGM(q): return 192 + 4 * q
def X(q): return 208 + 4 * q
def KA(ds): return 224 + ds
def VA(db): return 228 + db
def KD(n): return 236 + n
def VD(p): return 240 + p
def L(q): return 242 + q
T = 246
def Q(q, ds): return (q * 4 + ds) * 4
def KF(kb2, ds): return 64 + (kb2 * 4 + ds) * 4
def VF(db): return 96 + 4 * db
ONES = 128
ST0, ST1 = 132, 133
NAGPR = 136
def vr(b, n): return f"v[{b}:{b+n-1}]"
def ar(b, n): return f"a[{b}:{b+n-1}]"

SQ, SK, SV, SO = 12, 16, 20, 24
S_W, S_KW, S_G = 28, 29, 30
S_T0, S_T1, S_T2 = 31, 32, 33
S_PB, S_CNT = 34, 35
S_C = 36
S_WSO, S_SI, S_STAMP = 38, 39, 40
SWS = 44
S_QL, S_QG = 56, 57
def srd(b): return f"s[{b}:{b+3}]"


class Item:
    def __init__(self, ins, early=0, late=10**6):
        self.ins = ins if isinstance(ins, list) else [ins]
        self.early, self.late = early, late
    @property
    def cost(self): return sum(i.cost for i in self.ins)


class Gen:
    def __init__(self, a):
        self.a = a
        self.out, self.slow, self.dma_log = [], [], []

    def e(self, t, note=None): self.out.append(I(t, note))

    def emit(self, ins):
        for i in ins:
            if hasattr(i, "dma"): self.dma_log.append(i.dma)
            self.out.append(i)

    def stamp(self):
        if not self.a.stamp: return []
        return [I(f"s_memtime s[{S_STAMP}:{S_STAMP+1}]"), I(f"s_memrealtime s[{S_STAMP+2}:{S_STAMP+3}]"),
                I("s_waitcnt lgkmcnt(0)"), I(f"s_lshl_b64 exec, 1, s{S_SI}"),
                I(f"v_accvgpr_write_b32 a{ST0}, s{S_STAMP}"), I(f"v_accvgpr_write_b32 a{ST1}, s{S_STAMP+2}"),
                I("s_mov_b64 exec, -1"), I(f"s_add_u32 s{S_SI}, s{S_SI}, 1")]

    def slot(self, t): return t % self.a.unroll if self.a.unroll < 4 else t % 4

    def dma_tile(self, which, t, static=False):
        base = (0 if which == "K" else 65536)
        if static or self.a.unroll == 4:
            m0 = I(f"s_add_u32 m0, s{S_KW}, {base + (t % 4) * 16384}")
        else:
            m0 = I(f"s_add_u32 m0, s{S_PB}, {base + (t % 2) * 16384}")
        r = []
        for n in range(4):
            vo = KD(n) if which == "K" else VD(n & 1)
            sr = SK if which == "K" else SV
            ld = I(" ".join(f"buffer_load_dwordx4 v{vo}, {srd(sr)}, s{S_G} offen offset:{n*1024} {self.a.kvmod} lds".split()),
                   f"DMA {which}{t}.{n}")
            ld.dma = f"{which}{t}"
            r.append(ld)
        return m0, r

    def vm_needed(self, names):
        last = max(i for i, n in enumerate(self.dma_log) if n in names)
        return len(self.dma_log) - 1 - last

    def qk_mfmas(self, buf, zero_c=False, qs=range(4)):
        r = []
        for q in qs:
            for kb2 in range(2):
                d = vr(S(buf, q) + 4 * kb2, 4)
                for ds in range(4):
                    c = d
                    if ds == 0: c = "0" if zero_c else vr(NEGM(q), 4)
                    r.append(I(f"{MF} {d}, {ar(KF(kb2,ds),4)}, {ar(Q(q,ds),4)}, {c}"))
        return r

    def pv_mfmas(self, buf, qmajor=False):
        o = [(db, q) for db in range(8) for q in range(4)]
        if qmajor: o = [(db, q) for q in range(4) for db in range(8)]
        return [I(f"{MF} {vr(O(q,db),4)}, {ar(VF(db),4)}, {vr(S(buf,q),4)}, {vr(O(q,db),4)}") for db, q in o]

    def sum_mfma(self, buf, q):
        return I(f"{MF} {vr(X(q),4)}, {ar(ONES,4)}, {vr(S(buf,q),4)}, 0")

    def k_reads(self, u):
        t, kb = u // 2, u % 2
        off = self.slot(t) * 16384 + kb * 8192
        return [I(f"ds_read_b128 {ar(KF(kb2,ds),4)}, v{KA(ds)} offset:{off + kb2*4096}") for kb2 in range(2) for ds in range(4)]

    def v_reads(self, u):
        t, kb = u // 2, u % 2
        off = self.slot(t) * 16384 + kb * 8192
        return [I(f"ds_read_b64_tr_b16 {ar(VF(db)+2*tt,2)}, v{VA(db)} offset:{off + tt*4096}") for db in range(8) for tt in range(2)]

    def sm_stream(self, buf):
        r = []
        def post(e):
            q, i = e // 8, e % 8
            b = S(buf, q)
            if i % 2 == 1:
                r.append((e, I(f"v_cvt_pk_bf16_f32 v{b+i//2}, v{b+i-1}, v{b+i}")))
            if i == 7: r.append((e, ("SUM", buf, q)))
        for e in range(32):
            r.append((e, I(f"v_exp_f32 v{S(buf,0)+e}, v{S(buf,0)+e}")))
            if e >= 1: post(e - 1)
        post(31)
        return r

    def flat_stream(self, items):
        r = []
        for x in items:
            if isinstance(x, tuple):
                r += [I("s_nop 1"), self.sum_mfma(x[1], x[2])]
            else:
                if r and r[-1].is_trans and set(r[-1].dst) & set(x.src): r.append(I("s_nop 0"))
                r.append(x)
        return r

    def rowmax(self, b, t0, t1):
        return [I(f"v_max3_f32 v{t0}, v{b}, v{b+1}, v{b+2}"), I(f"v_max3_f32 v{t1}, v{b+3}, v{b+4}, v{b+5}"),
                I(f"v_max3_f32 v{t0}, v{t0}, v{b+6}, v{b+7}"), I(f"v_max_f32 v{t0}, v{t0}, v{t1}"),
                I(f"v_mov_b32 v{t1}, v{t0}"), I("s_nop 1"), I(f"v_permlane16_swap_b32 v{t0}, v{t1}"), I("s_nop 1"),
                I(f"v_max_f32 v{t0}, v{t0}, v{t1}"),
                I(f"v_mov_b32 v{t1}, v{t0}"), I("s_nop 1"), I(f"v_permlane32_swap_b32 v{t0}, v{t1}"), I("s_nop 1")]

    def maxfix_first(self, buf, qs):
        r = []
        ts = {q: (T + 2 * i, T + 2 * i + 1) for i, q in enumerate(qs)}
        def each(f):
            for q in qs: r.append(I(f(q, S(buf, q), *ts[q])))
        pad = [I("s_nop 1")] if len(qs) < 3 else []
        each(lambda q, b, t0, t1: f"v_max3_f32 v{t0}, v{b}, v{b+1}, v{b+2}")
        each(lambda q, b, t0, t1: f"v_max3_f32 v{t1}, v{b+3}, v{b+4}, v{b+5}")
        each(lambda q, b, t0, t1: f"v_max3_f32 v{t0}, v{t0}, v{b+6}, v{b+7}")
        each(lambda q, b, t0, t1: f"v_max_f32 v{t0}, v{t0}, v{t1}")
        for sw in ("v_permlane16_swap_b32", "v_permlane32_swap_b32"):
            each(lambda q, b, t0, t1: f"v_mov_b32 v{t1}, v{t0}")
            r += pad
            each(lambda q, b, t0, t1: f"{sw} v{t0}, v{t1}")
            r += pad
            each(lambda q, b, t0, t1: f"v_max_f32 v{t0}, v{t0}, v{t1}")
        for q in qs:
            t0 = ts[q][0]
            for i in range(4): r.append(I(f"v_sub_f32 v{NEGM(q)+i}, 0, v{t0}"))
            for i in range(8): r.append(I(f"v_sub_f32 v{S(buf,q)+i}, v{S(buf,q)+i}, v{t0}"))
        return r

    def slow_path(self, u, label, has_next, xored):
        cur, nxt = u % 2, (u + 1) % 2
        r = [I(f"{label}:")]
        x = [I(f"v_xor_b32 v{KA(ds)}, 0x8000, v{KA(ds)}") for ds in range(4)] if xored else []
        r += [I("s_nop 3")] + x + self.k_reads(u) + [I(i.text) for i in x]
        r.append(I("s_waitcnt lgkmcnt(0)"))
        r += self.qk_mfmas(cur)
        r.append(I("s_nop 7"))
        t0, t1, t2 = T, T + 1, T + 2
        for q in range(4):
            b = S(cur, q)
            r += self.rowmax(b, t0, t1)
            r.append(I(f"v_max3_f32 v{t0}, v{t0}, v{t1}, 0"))
            r.append(I(f"v_exp_f32 v{t2}, -v{t0}"))
            for i in range(4): r.append(I(f"v_sub_f32 v{NEGM(q)+i}, v{NEGM(q)+i}, v{t0}"))
            r.append(I(f"v_mul_f32 v{L(q)}, v{L(q)}, v{t2}"))
            if has_next:
                for i in range(8): r.append(I(f"v_sub_f32 v{S(nxt,q)+i}, v{S(nxt,q)+i}, v{t0}"))
            for i in range(32): r.append(I(f"v_mul_f32 v{O(q,0)+i}, v{O(q,0)+i}, v{t2}"))
            for i in range(8): r.append(I(f"v_sub_f32 v{b+i}, v{b+i}, v{t0}"))
        r += self.flat_stream([x for _, x in self.sm_stream(cur)])
        r.append(I("s_nop 7"))
        r.append(I(f"s_branch {label}_ret"))
        return r

    def schedule(self, mfmas, stream, others, tail=(), tail_lag=8, fin=(), nxt_stream=None):
        out = []
        M = list(mfmas); stream = list(stream); tail = list(tail)
        others = sorted(others, key=lambda x: (x.early, x.late))
        kind = lambda o: "s" if o.ins[0].is_salu else ("d" if o.ins[0].is_ds else ("m" if o.ins[0].is_vmem else "v"))
        pend = []
        last_sum_pos = None
        def states_since(idx): return sum(i.states for i in out[idx + 1:])
        g = -1
        def pop_markers():
            while stream and isinstance(stream[0], tuple):
                x = stream.pop(0); pend.append([self.sum_mfma(x[1], x[2]), len(out) - 1])
        def last_real():
            return out[-1]
        def ok(n):
            l = last_real()
            return not (l.is_trans and set(l.dst) & set(n.src))
        def take(k, overdue=False):
            for o in others:
                if kind(o) == k and (o.late <= g if overdue else o.early <= g):
                    others.remove(o); return o
            return None
        def small_v():
            pop_markers()
            o = take("v", True)
            if o: return o.ins
            if stream and stream[0].cost == 4 and ok(stream[0]): return [stream.pop(0)]
            if tail and not stream and not pend and (last_sum_pos is None or states_since(last_sum_pos) >= tail_lag):
                return [tail.pop(0)]
            o = take("v")
            if o: return o.ins
            return None
        while M or pend or any(isinstance(x, tuple) for x in stream):
            if pend and states_since(pend[0][1]) >= 2:
                out.append(pend.pop(0)[0]); last_sum_pos = len(out) - 1
            elif M:
                out.append(M.pop(0))
            elif pend:
                out.append(I("s_nop 1")); out.append(pend.pop(0)[0]); last_sum_pos = len(out) - 1
            else:
                while stream and not isinstance(stream[0], tuple): out.append(stream.pop(0))
                pop_markers(); continue
            g += 1
            is_last = not M and not pend and not any(isinstance(x, tuple) for x in stream)
            if is_last and fin: break
            o = take("s")
            if o: out += o.ins
            pop_markers()
            nxt_exp = bool(stream) and stream[0].cost == 8
            o = take("m", True) or take("d", True)
            if not o and not nxt_exp: o = take("d") or take("m")
            if o:
                out += o.ins
                if kind(o) == "d":
                    v = small_v()
                    if v: out += v
            elif nxt_exp:
                out.append(stream.pop(0))
            else:
                for _ in range(2):
                    v = small_v()
                    if v: out += v
            pop_markers()
        for x in stream: out.append(x)
        for o in others: out += o.ins
        if tail:
            if last_sum_pos is not None and states_since(last_sum_pos) < tail_lag:
                out.append(I(f"s_nop {tail_lag - states_since(last_sum_pos) - 1}"))
            out += tail
        out += list(fin)
        if fin and nxt_stream and not isinstance(nxt_stream[0], tuple):
            out.append(nxt_stream.pop(0))
        return out

    def insert_waits(self, seq, pending):
        out = []
        pend = list(pending)
        pend = [(p, -1) for p in pend]
        last_m = -1
        for x in seq:
            if x.op == "s_waitcnt" and "lgkmcnt" in x.text:
                import re
                k = int(re.search(r"lgkmcnt\((\d+)\)", x.text).group(1))
                pend = pend[len(pend) - k:] if 0 < k < len(pend) else ([] if k == 0 else pend)
            if x.is_mfma:
                need = [i for i, (p, _) in enumerate(pend) if p & set(x.src)]
                if need:
                    j = max(need)
                    pos = last_m + 1 if pend[j][1] <= last_m else len(out)
                    n = sum(1 for (p, q) in pend[j + 1:] if q < pos)
                    assert n <= 15
                    out.insert(pos, I(f"s_waitcnt lgkmcnt({n})"))
                    pend = [(p, q + (1 if q >= pos else 0)) for (p, q) in pend[j + 1:]]
                last_m = len(out)
            if x.is_ds: pend.append((set(x.dst), len(out)))
            out.append(x)
        return out, [p for p, _ in pend]

    def check_ins(self):
        return [I(f"v_max3_f32 v{T}, v{X(0)}, v{X(1)}, v{X(2)}"), I(f"v_max_f32 v{T}, v{T}, v{X(3)}"),
                I(f"v_cmp_lt_f32 vcc, {THR:#x}, v{T}")]

    def split_stream(self, buf):
        sm = self.sm_stream(buf)
        idx = next(i for i, (e, x) in enumerate(sm) if e == self.a.split and isinstance(x, I) and x.is_trans)
        return [x for _, x in sm[:idx]], [x for _, x in sm[idx:]]

    def phaseA(self, u, rest, has_qk=True, extra=(), xored=False, tag=""):
        a = self.a
        nxt = (u + 1) % 2
        vreads = self.v_reads(u)
        label = f"L_slow_{u}{tag}"
        others = [Item(v, g, g + a.v_slack) for v, g in zip(vreads, a.vplan)]
        others += list(extra)
        fin = [I(f"s_cbranch_vccnz {label}"), I(f"{label}_ret:")]
        if has_qk:
            first, nrest = self.split_stream(nxt)
            o = self.schedule(self.qk_mfmas(nxt), rest, others, tail=self.check_ins(), fin=fin, nxt_stream=first)
        else:
            first, nrest = [], []
            o = list(vreads[:8])
            fl = self.flat_stream(rest)
            o += fl[:4] + vreads[8:] + fl[4:] + [I("s_nop 7")] + self.check_ins() + fin
        self.slow += self.slow_path(u, label, has_qk, xored)
        return o, first, nrest

    def phaseB(self, u, stream, has_kreads=True, barrier=None, extra=(), last=False):
        a = self.a
        cur = u % 2
        others = []
        if barrier is not None:
            others.append(Item([I(f"s_waitcnt vmcnt({barrier})")], a.bar_gap, a.bar_gap))
            others.append(Item([I("s_barrier")], a.bar_gap + 1, a.bar_gap + 1))
        if has_kreads:
            others += [Item(k, g, g + a.k_slack) for k, g in zip(self.k_reads(u + 2), a.kplan)]
        for q in range(4):
            others.append(Item(I(f"v_add_f32 v{L(q)}, v{L(q)}, v{X(q)}"), 0, 9 + 3 * q))
        others += list(extra)
        return self.schedule(self.pv_mfmas(cur, qmajor=last), stream, others)

    def dma_items(self, which, t, post=(), static=False):
        a = self.a
        m0, lds = self.dma_tile(which, t, static)
        gs = [a.d_early + n * a.d_step for n in range(4)]
        its = [Item(m0, max(gs[0] - 2, 0), gs[0] - 1)]
        for n in range(4): its.append(Item(lds[n], gs[n], gs[n] + a.d_slack))
        for p in post: its.append(Item(p, gs[3] + a.d_slack + 1, gs[3] + a.d_slack + 3))
        return its

    def prologue(self):
        e, a = self.e, self.a
        if a.stamp:
            e("s_memtime s[48:49]"); e("s_memrealtime s[50:51]")
        e("s_cmp_ge_u32 s2, 256"); e("s_cbranch_scc1 L_end")
        e("s_load_dwordx4 s[4:7], s[0:1], 0"); e("s_load_dwordx4 s[8:11], s[0:1], 16")
        if a.stamp: e(f"s_load_dwordx2 s[{SWS}:{SWS+1}], s[0:1], 40")
        vl, vg, vt, vu = T, T + 1, T + 2, T + 3
        e(f"v_lshrrev_b32 v{vt}, 6, v0")
        e(f"v_and_b32 v{vl}, 63, v0", "lane")
        e(f"v_readfirstlane_b32 s{S_W}, v{vt}")
        e(f"s_and_b32 s{S_T0}, s2, 7"); e(f"s_lshr_b32 s{S_T1}, s2, 3")
        e(f"s_lshl_b32 s{S_T0}, s{S_T0}, 4"); e(f"s_lshr_b32 s{S_T2}, s{S_T1}, 1")
        e(f"s_add_u32 s{S_T0}, s{S_T0}, s{S_T2}", "kv head index")
        e(f"s_and_b32 s{S_T1}, s{S_T1}, 1"); e(f"s_lshl_b32 s{S_T2}, s{S_T0}, 1")
        e(f"s_add_u32 s{S_T1}, s{S_T1}, s{S_T2}", "q head index")
        e(f"s_lshl_b32 s{S_T0}, s{S_T0}, 18"); e(f"s_lshl_b32 s{S_T1}, s{S_T1}, 16")
        e(f"s_lshl_b32 s{S_KW}, s{S_W}, 12")
        e(f"v_lshrrev_b32 v{vg}, 4, v{vl}", "g = lane>>4")
        e(f"v_and_b32 v{vt}, 15, v{vl}", "i = lane&15")
        e(f"v_xor_b32 v{vu}, v{vt}, v{vg}")
        e(f"v_lshlrev_b32 v{vu}, 4, v{vu}")
        e(f"v_lshl_add_u32 v{KD(0)}, v{vg}, 8, v{vu}")
        e(f"v_add_u32 v{KD(0)}, s{S_KW}, v{KD(0)}")
        for n in range(1, 4): e(f"v_xor_b32 v{KD(n)}, {n<<6:#x}, v{KD(0)}")
        e(f"s_lshl_b32 s{S_QL}, s{S_W}, 14")
        e(f"s_cmp_lt_u32 s{S_W}, 2"); e(f"s_cselect_b32 s{S_QG}, 2, 1"); e(f"s_lshl_b32 s{S_QG}, s{S_QG}, 16")
        e(f"s_add_u32 s{S_QL}, s{S_QL}, s{S_QG}", "q lds base")
        e(f"s_mul_i32 s{S_QG}, s{S_W}, 12288")
        e(f"s_mov_b32 m0, s{S_QL}")
        e("s_waitcnt lgkmcnt(0)")
        if a.stamp:
            e("s_memtime s[52:53]"); e("s_memrealtime s[54:55]"); e("s_waitcnt lgkmcnt(0)")
        def mksrd(sr, p, off, n):
            e(f"s_add_u32 s{sr}, s{p}, s{off}"); e(f"s_addc_u32 s{sr+1}, s{p+1}, 0")
            e(f"s_mov_b32 s{sr+2}, {n}"); e(f"s_mov_b32 s{sr+3}, 0x20000")
        mksrd(SQ, 4, S_T1, 65536)
        def qgrp(grp):
            r = []
            if grp:
                r += [I(f"s_add_u32 m0, s{S_QL}, {grp*4096}"), I(f"s_add_u32 s{S_QG}, s{S_QG}, 4096")]
            for n in range(4):
                ld = I(" ".join(f"buffer_load_dwordx4 v{KD(n)}, {srd(SQ)}, s{S_QG} offen offset:{n*1024} {a.qmod} lds".split()))
                ld.dma = f"Q{grp}"
                r.append(ld)
            return r
        def tile(which, t):
            m0, lds = self.dma_tile(which, t, static=True)
            return [m0, I(f"s_mov_b32 s{S_G}, {t*16384}")] + lds
        self.emit(qgrp(0)); self.emit(qgrp(1))
        mksrd(SK, 6, S_T0, 262144)
        self.emit(tile("K", 0))
        mksrd(SV, 8, S_T0, 262144); mksrd(SO, 10, S_T1, 65536)
        e(f"v_lshlrev_b32 v{vu}, 1, v{vg}")
        e(f"v_xor_b32 v{vu}, v{vt}, v{vu}")
        e(f"v_lshlrev_b32 v{vu}, 4, v{vu}")
        e(f"v_lshl_add_u32 v{VD(0)}, v{vg}, 8, v{vu}")
        e(f"v_add_u32 v{VD(0)}, s{S_KW}, v{VD(0)}")
        e(f"v_xor_b32 v{VD(1)}, 0x80, v{VD(0)}")
        if a.stamp:
            e(f"s_mov_b32 s{SWS+2}, 0x1000000"); e(f"s_mov_b32 s{SWS+3}, 0x20000")
            e(f"s_lshl_b32 s{S_WSO}, s2, 2"); e(f"s_add_u32 s{S_WSO}, s{S_WSO}, s{S_W}"); e(f"s_lshl_b32 s{S_WSO}, s{S_WSO}, 9")
            e(f"v_accvgpr_write_b32 a{ST0}, 0"); e(f"v_accvgpr_write_b32 a{ST1}, 0"); e(f"s_mov_b32 s{S_SI}, 2")
            e("s_mov_b64 exec, 1"); e(f"v_accvgpr_write_b32 a{ST0}, s48"); e(f"v_accvgpr_write_b32 a{ST1}, s50")
            e("s_mov_b64 exec, 2"); e(f"v_accvgpr_write_b32 a{ST0}, s52"); e(f"v_accvgpr_write_b32 a{ST1}, s54")
            e("s_mov_b64 exec, -1")
            self.emit(self.stamp())
        e(f"v_xor_b32 v{vu}, v{vt}, v{vg}")
        e(f"v_lshlrev_b32 v{vu}, 4, v{vu}")
        e(f"v_lshl_add_u32 v{KA(0)}, v{vt}, 8, v{vu}")
        for ds in range(1, 4): e(f"v_xor_b32 v{KA(ds)}, {ds<<6:#x}, v{KA(0)}")
        e(f"v_lshrrev_b32 v{vu}, 2, v{vl}", "key = lane>>2")
        e(f"v_lshlrev_b32 v{VA(0)}, 8, v{vu}")
        e(f"v_and_b32 v{vu}, 7, v{vu}")
        e(f"v_lshl_add_u32 v{VA(0)}, v{vu}, 5, v{VA(0)}")
        e(f"v_and_b32 v{vu}, 3, v{vl}")
        e(f"v_lshl_add_u32 v{VA(0)}, v{vu}, 3, v{VA(0)}")
        e(f"v_add_u32 v{VA(0)}, 0x10000, v{VA(0)}")
        for db in range(1, 8): e(f"v_xor_b32 v{VA(db)}, {db<<5:#x}, v{VA(0)}")
        QA = X(3)
        for ds in range(4): e(f"v_add_u32 v{QA+ds}, s{S_QL}, v{KA(ds)}")
        e(f"s_mov_b32 s{S_C}, {f2u(CSC):#x}"); e(f"s_mov_b32 s{S_C+1}, {f2u(CSC):#x}")
        for q in range(4): e(f"v_mov_b32 v{L(q)}, 0")
        e(f"v_mov_b32 v{vu}, 0x3f803f80")
        for i in range(4): e(f"v_accvgpr_write_b32 a{ONES+i}, v{vu}")
        for i in range(128): e(f"v_mov_b32 v{i}, 0")
        self.emit(qgrp(2)); self.emit(qgrp(3))
        self.emit(self.stamp())
        RAW = S(1, 0); TMP = S(1, 2)
        def qproc(q, inter=()):
            inter = list(inter)
            e(f"s_waitcnt vmcnt({self.vm_needed([f'Q{q}'])})")
            for ds in range(4): e(f"ds_read_b128 {vr(RAW+4*ds,4)}, v{QA+ds} offset:{q*4096}")
            for ds in range(4):
                e(f"s_waitcnt lgkmcnt({3-ds})")
                for k in range(4):
                    e(f"v_lshlrev_b32 v{TMP+2*k}, 16, v{RAW+4*ds+k}")
                    e(f"v_and_b32 v{TMP+2*k+1}, 0xffff0000, v{RAW+4*ds+k}")
                for k in range(4): e(f"v_pk_mul_f32 {vr(TMP+2*k,2)}, {vr(TMP+2*k,2)}, s[{S_C}:{S_C+1}]")
                for k in range(4): e(f"v_cvt_pk_bf16_f32 v{TMP+8+k}, v{TMP+2*k}, v{TMP+2*k+1}")
                for k in range(4): e(f"v_accvgpr_write_b32 a{Q(q,ds)+k}, v{TMP+8+k}")
        sm = self.sm_stream(0)
        pos = lambda e0: next(i for i, (ee, x) in enumerate(sm) if ee == e0 and isinstance(x, I) and x.is_trans)
        part = lambda a0, a1: self.flat_stream([x for _, x in sm[a0:a1]])
        idx = pos(a.split)
        qproc(0)
        self.emit(tile("V", 0))
        qproc(1)
        self.emit(tile("K", 1))
        self.emit(self.stamp())
        e(f"s_waitcnt vmcnt({self.vm_needed(['K0'])})")
        e("s_barrier")
        self.emit(self.k_reads(0))
        e("s_waitcnt lgkmcnt(0)")
        self.emit(self.qk_mfmas(0, zero_c=True, qs=(0, 1)))
        self.emit(tile("V", 1))
        self.emit(self.maxfix_first(0, (0, 1)))
        self.emit(self.stamp())
        qproc(2)
        e("s_nop 0")
        self.emit(self.qk_mfmas(0, zero_c=True, qs=(2,)))
        self.emit(tile("K", 2))
        self.emit(part(0, pos(16)))
        self.emit(self.maxfix_first(0, (2,)))
        self.emit(part(pos(16), idx))
        self.emit(self.stamp())
        qproc(3)
        e("s_nop 0")
        self.emit(self.qk_mfmas(0, zero_c=True, qs=(3,)))
        self.emit(self.k_reads(1))
        e(f"s_waitcnt vmcnt({self.vm_needed(['V0','K1'])})")
        e("s_barrier", "V0,K1 visible; Q staging slots free")
        self.emit(tile("V", 2))
        self.emit(self.maxfix_first(0, (3,)))
        self.emit(tile("K", 3))
        if a.unroll == 2: e(f"s_add_u32 s{S_PB}, s{S_KW}, 0x8000")
        e(f"s_mov_b32 s{S_CNT}, {16 // a.unroll}")
        e("s_waitcnt lgkmcnt(0)")
        self.emit(self.stamp())
        return [x for _, x in sm[idx:]]

    def epilogue(self):
        e, a = self.e, self.a
        self.emit(self.stamp())
        inv = [T, T + 2, T + 4, T + 6]
        va = T + 8
        for q in range(4): e(f"v_rcp_f32 v{inv[q]}, v{L(q)}")
        stg = [0, 16384, 32768, 65536]
        vw, vrd, vo = T + 1, T + 3, T + 5
        e(f"v_mbcnt_lo_u32_b32 v{va}, -1, 0"); e(f"v_mbcnt_hi_u32_b32 v{va}, -1, v{va}")
        e(f"v_lshlrev_b32 v{vo}, 4, v{va}", "global voffset = lane*16")
        e(f"v_and_b32 v{va+1}, 15, v{va}"); e(f"v_lshrrev_b32 v{va}, 4, v{va}")
        e(f"v_lshlrev_b32 v{vw}, 3, v{va}")
        e(f"v_lshlrev_b32 v{vrd}, 4, v{va+1}")
        e(f"v_xor_b32 v{vw}, v{vw}, v{vrd}")
        e(f"v_lshl_add_u32 v{vw}, v{va+1}, 8, v{vw}")
        e(f"v_add_u32 v{vw}, s{S_KW}, v{vw}")
        WA = X(0)
        for db in range(8): e(f"v_xor_b32 v{WA+db}, {db*32:#x}, v{vw}")
        e(f"s_lshl_b32 s{S_T0}, s{S_W}, 14")
        e("s_waitcnt vmcnt(0)", "own (out-of-range) DMA writes have landed")
        PB = S(0, 0)
        def pack(q):
            for db in range(8):
                b = O(q, db); pb = PB + 16 * (q % 2) + 2 * db
                for i in (0, 2): e(f"v_pk_mul_f32 {vr(b+i,2)}, {vr(b+i,2)}, {vr(inv[q],2)} op_sel_hi:[1,0]")
                for i in range(2): e(f"v_cvt_pk_bf16_f32 v{pb+i}, v{b+2*i}, v{b+2*i+1}")
                off = stg[q]
                if off >= 65536:
                    e(f"v_add_u32 v{WA+db}, {off}, v{WA+db}"); off = 0
                e(f"ds_write_b64 v{WA+db}, {vr(pb,2)} offset:{off}")
        def rd(q):
            off = stg[q]
            for j in range(4):
                if off >= 65536: e(f"v_add_u32 v{KD(j)}, {off}, v{KD(j)}")
                e(f"ds_read_b128 {vr(PB+32+16*(q%2)+4*j,4)}, v{KD(j)} offset:{(off % 65536) + j*1024}")
        def st(q):
            for j in range(4):
                e(f"s_waitcnt lgkmcnt({3-j if q == 3 else 8 + 3 - j})")
                e(" ".join(f"buffer_store_dwordx4 {vr(PB+32+16*(q%2)+4*j,4)}, v{vo}, {srd(SO)}, s{S_T0} offen offset:{j*1024} {a.omod}".split()))
            if q < 3: e(f"s_add_u32 s{S_T0}, s{S_T0}, 4096")
        pack(0)
        for q in range(4):
            rd(q)
            if q < 3: pack(q + 1)
            st(q)
        self.emit(self.stamp())
        if a.stamp:
            e("s_waitcnt vmcnt(0)")
            self.emit(self.stamp())
            e(f"v_mbcnt_lo_u32_b32 v0, -1, 0"); e(f"v_mbcnt_hi_u32_b32 v0, -1, v0"); e("v_lshlrev_b32 v0, 2, v0")
            e(f"buffer_store_dword a{ST0}, v0, {srd(SWS)}, s{S_WSO} offen")
            e(f"buffer_store_dword a{ST1}, v0, {srd(SWS)}, s{S_WSO} offen offset:256")
        e("L_end:")
        e("s_endpgm")

    def body(self, rest):
        e, a = self.e, self.a
        U = 2 * a.unroll
        txt = lambda r: [x if isinstance(x, tuple) else x.text for x in r]
        cp = lambda r: [x if isinstance(x, tuple) else I(x.text) for x in r]
        rest0 = txt(rest)
        inc = lambda: I(f"s_add_u32 s{S_G}, s{S_G}, 16384")
        seq = []
        for u in range(U):
            t = u // 2
            exA, exB = [], []
            if u % 2 == 1: exB += self.dma_items("K", t + 4)
            else: exB += self.dma_items("V", t + 3, [inc()] + ([I(f"s_xor_b32 s{S_PB}, s{S_PB}, 0x8000")] if (a.unroll == 2 and u == 0) else []))
            xored = False
            if a.unroll == 2:
                if u == 2:
                    exA += [Item(I(f"v_xor_b32 v{KA(ds)}, 0x8000, v{KA(ds)}"), 0, 31) for ds in range(4)]
                xored = u >= 2
                if u == 3:
                    for db in range(8):
                        g = a.vplan[2 * db + 1] + a.v_slack + 1
                        if g <= 31: exA.append(Item(I(f"v_xor_b32 v{VA(db)}, 0x8000, v{VA(db)}"), g, 99))
                        else: exB.append(Item(I(f"v_xor_b32 v{VA(db)}, 0x8000, v{VA(db)}"), 0, 31))
            if u == U - 2:
                exA.append(Item(I(f"s_sub_u32 s{S_CNT}, s{S_CNT}, 1"), 4, 31))
                exB.append(Item(I(f"s_cmp_eq_u32 s{S_CNT}, 0"), 31, 31))
            o, first, rest = self.phaseA(u, rest, extra=exA, xored=xored)
            seq += o
            seq += self.phaseB(u, first, barrier=(12 if u % 2 == 1 else None), extra=exB)
            if u == U - 2:
                seq.append(I("s_cbranch_scc1 L_tail"))
                rest_tail = cp(rest)
            if a.stamp and u % 4 == 3: seq += self.stamp()
        seq.append(I("s_branch L_loop"))
        assert txt(rest) == rest0
        _, pend = self.insert_waits(seq, [])
        seq2, pend2 = self.insert_waits(seq, pend)
        assert pend == pend2
        if a.align: e(f".p2align {a.align}")
        e("L_loop:")
        n0 = len(self.out)
        self.emit(seq2)
        n1 = len(self.out)
        n_exit = next(i for i in range(n0, n1) if "L_tail" in self.out[i].text) + 1
        e("L_tail:")
        o, _, _ = self.phaseA(U - 1, rest_tail, has_qk=False, xored=(a.unroll == 2), tag="_t")
        o = [I("s_waitcnt lgkmcnt(0)")] + o + self.phaseB(U - 1, [], has_kreads=False, last=True)
        o, _ = self.insert_waits(o, [])
        self.emit(o)
        self.check_seq = lambda: self.out[:n1] + self.out[n0:n_exit] + self.out[n1:]
        self.loop_range = (n0, n1)

    def build(self):
        rest = self.prologue()
        n0 = len(self.out)
        self.body(rest)
        if self.a.drop:
            pats = self.a.drop.split(",")
            self.out = self.out[:n0] + [i for i in self.out[n0:] if not any(i.op.startswith(p) for p in pats)]
        self.epilogue()
        probs = check(self.check_seq(), "main", verbose=False)
        probs += check(self.slow, "slow", verbose=False)
        hdr = open("standalone__gqa_softmax__near_ridge.s.ref").read().split("; Override")[0]
        txt = hdr + "; @launch grid=(256,1,1) block=(256,1,1) lds=163840\n"
        txt += '.amdgcn_target "amdgcn-amd-amdhsa--gfx950"\n.text\n'
        txt += f".globl {KNAME}\n.p2align 8\n.type {KNAME},@function\n{KNAME}:\n"
        txt += "\n".join(str(i) for i in self.out) + "\n"
        txt += "\n".join(str(i) for i in self.slow) + "\n"
        txt += f""".section .rodata,"a"
.p2align 6
.amdhsa_kernel {KNAME}
  .amdhsa_next_free_vgpr {256 + NAGPR}
  .amdhsa_next_free_sgpr 64
  .amdhsa_accum_offset 256
  .amdhsa_group_segment_fixed_size 0
  .amdhsa_kernarg_size 48
  .amdhsa_user_sgpr_count 2
  .amdhsa_user_sgpr_kernarg_segment_ptr 1
  .amdhsa_system_sgpr_workgroup_id_x 1
.end_amdhsa_kernel
"""
        return txt, probs

    def gap_report(self):
        n0, n1 = self.loop_range
        gaps = []; cur = None
        for i in self.out[n0:n1]:
            if i.is_label: continue
            if i.is_mfma:
                if cur is not None: gaps.append(cur)
                cur = ""
            elif cur is not None:
                cur += "E" if i.is_trans else ("v" if i.is_valu else ("d" if i.is_ds else ("M" if i.is_vmem else "s")))
        gaps.append(cur)
        def t(gp):
            tm = 4; prev = "m"
            for c in gp:
                if c == "s": tm += 4
                else:
                    tm = max(tm, 8)
                    if c in "dM" and prev in "vE": tm += 4
                    if c in "vE" and prev == "M": tm += 4
                    tm += 8 if c == "E" else 4
                prev = c
            if prev in "dM": tm += 4
            return max(16, tm)
        return gaps, sum(map(t, gaps))


def get_args(argv=None):
    p = argparse.ArgumentParser()
    p.add_argument("-o", default="k2.s")
    p.add_argument("--stamp", action="store_true")
    p.add_argument("--split", type=int, default=18)
    p.add_argument("--bar_gap", type=int, default=0)
    p.add_argument("--vplan", default="2,5,8,11,14,17,20,22,24,25,26,27,28,29,30,31")
    p.add_argument("--kplan", default="3,6,9,12,15,18,21,24")
    p.add_argument("--v_slack", type=int, default=1)
    p.add_argument("--k_slack", type=int, default=2)
    p.add_argument("--d_early", type=int, default=7)
    p.add_argument("--d_step", type=int, default=6)
    p.add_argument("--d_slack", type=int, default=1)
    p.add_argument("--dma_in", default="B")
    p.add_argument("--unroll", type=int, default=2)
    p.add_argument("--align", type=int, default=6)
    p.add_argument("--drop", default="")
    p.add_argument("--epi_split", type=int, default=0)
    p.add_argument("--epi_mul", type=int, default=0)
    p.add_argument("--kvmod", default="")
    p.add_argument("--qmod", default="")
    p.add_argument("--omod", default="")
    a = p.parse_args(argv)
    a.vplan = [int(x) for x in a.vplan.split(",")]
    a.kplan = [int(x) for x in a.kplan.split(",")]
    return a


if __name__ == "__main__":
    a = get_args()
    g = Gen(a)
    txt, probs = g.build()
    open(a.o, "w").write(txt)
    for p in probs: print(p)
    gaps, est = g.gap_report()
    print("gaps:", " ".join(x or "-" for x in gaps))
    print(f"wrote {a.o}: {len(g.out)} main insts, {len(g.slow)} slow insts, {len(probs)} problems; est cycles/subtile {est/(2*a.unroll):.0f}")
```

```python
import sys, struct, math, argparse
from asmlib import I, check

KNAME = "standalone__gqa_softmax__near_ridge_kernel"
CSC = math.log2(math.e) / math.sqrt(128.0)
def f2u(x): return struct.unpack("<I", struct.pack("<f", x))[0]
THR = f2u(2.0 ** 20)
MF = "v_mfma_f32_16x16x32_bf16"

def O(q, db): return (q * 8 + db) * 4
def S(buf, q): return 128 + 32 * buf + 8 * q
def NEGM(q): return 192 + 4 * q
def X(q): return 208 + 4 * q
def KA(ds): return 224 + ds
def VA(db): return 228 + db
def KD(n): return 236 + n
def VD(p): return 240 + p
def L(q): return 242 + q
T = 246
def Q(q, ds): return (q * 4 + ds) * 4
def KF(kb2, ds): return 64 + (kb2 * 4 + ds) * 4
def VF(db): return 96 + 4 * db
ONES = 128
ST0, ST1 = 132, 133
NAGPR = 136
def vr(b, n): return f"v[{b}:{b+n-1}]"
def ar(b, n): return f"a[{b}:{b+n-1}]"

SQ, SK, SV, SO = 12, 16, 20, 24
S_W, S_KW, S_G = 28, 29, 30
S_T0, S_T1, S_T2 = 31, 32, 33
S_PB, S_CNT = 34, 35
S_C = 36
S_WSO, S_SI, S_STAMP = 38, 39, 40
SWS = 44
S_QL, S_QG = 56, 57
S_GV, S_PB2 = 58, 59
def srd(b): return f"s[{b}:{b+3}]"


class Item:
    def __init__(self, ins, early=0, late=10**6):
        self.ins = ins if isinstance(ins, list) else [ins]
        self.early, self.late = early, late
    @property
    def cost(self): return sum(i.cost for i in self.ins)


class Gen:
    def __init__(self, a):
        self.a = a
        self.out, self.slow, self.dma_log = [], [], []

    def e(self, t, note=None): self.out.append(I(t, note))

    def emit(self, ins):
        for i in ins:
            if hasattr(i, "dma"): self.dma_log.append(i.dma)
            self.out.append(i)

    def stamp(self):
        if not self.a.stamp: return []
        return [I(f"s_memtime s[{S_STAMP}:{S_STAMP+1}]"), I(f"s_memrealtime s[{S_STAMP+2}:{S_STAMP+3}]"),
                I("s_waitcnt lgkmcnt(0)"), I(f"s_lshl_b64 exec, 1, s{S_SI}"),
                I(f"v_accvgpr_write_b32 a{ST0}, s{S_STAMP}"), I(f"v_accvgpr_write_b32 a{ST1}, s{S_STAMP+2}"),
                I("s_mov_b64 exec, -1"), I(f"s_add_u32 s{S_SI}, s{S_SI}, 1")]

    def spin(self, n, lab):
        for t in (f"{lab}:", "s_memrealtime s[62:63]", "s_waitcnt lgkmcnt(0)", "s_sub_u32 s62, s62, s60", f"s_cmp_lt_u32 s62, {n}", f"s_cbranch_scc1 {lab}"):
            self.e(t)

    def slot(self, t): return t % self.a.unroll if self.a.unroll < 4 else t % 4

    def dma_tile(self, which, t, static=False):
        base = (0 if which == "K" else 65536)
        if static or self.a.unroll == 4:
            m0 = I(f"s_add_u32 m0, s{S_KW}, {base + (t % 4) * 16384}")
        else:
            m0 = I(f"s_add_u32 m0, s{S_PB if which == 'K' else S_PB2}, {base + (t % 2) * 16384}")
        r = []
        for n in range(4):
            vo = KD(n) if which == "K" else VD(n & 1)
            sr = SK if which == "K" else SV
            sg = S_G if which == "K" else S_GV
            ld = I(" ".join(f"buffer_load_dwordx4 v{vo}, {srd(sr)}, s{sg} offen offset:{n*1024} {self.a.kvmod} lds".split()),
                   f"DMA {which}{t}.{n}")
            ld.dma = f"{which}{t}"
            r.append(ld)
        return m0, r

    def vm_needed(self, names):
        last = max(i for i, n in enumerate(self.dma_log) if n in names)
        return len(self.dma_log) - 1 - last

    def qk_mfmas(self, buf, zero_c=False, qs=range(4)):
        r = []
        for q in qs:
            for kb2 in range(2):
                d = vr(S(buf, q) + 4 * kb2, 4)
                for ds in range(4):
                    c = d
                    if ds == 0: c = "0" if zero_c else vr(NEGM(q), 4)
                    r.append(I(f"{MF} {d}, {ar(KF(kb2,ds),4)}, {ar(Q(q,ds),4)}, {c}"))
        return r

    def pv_mfmas(self, buf, qmajor=False):
        o = [(db, q) for db in range(8) for q in range(4)]
        if qmajor: o = [(db, q) for q in range(4) for db in range(8)]
        return [I(f"{MF} {vr(O(q,db),4)}, {ar(VF(db),4)}, {vr(S(buf,q),4)}, {vr(O(q,db),4)}") for db, q in o]

    def sum_mfma(self, buf, q):
        return I(f"{MF} {vr(X(q),4)}, {ar(ONES,4)}, {vr(S(buf,q),4)}, 0")

    def k_reads(self, u):
        t, kb = u // 2, u % 2
        off = self.slot(t) * 16384 + kb * 8192
        return [I(f"ds_read_b128 {ar(KF(kb2,ds),4)}, v{KA(ds)} offset:{off + kb2*4096}") for kb2 in range(2) for ds in range(4)]

    def v_reads(self, u):
        t, kb = u // 2, u % 2
        off = self.slot(t) * 16384 + kb * 8192
        return [I(f"ds_read_b64_tr_b16 {ar(VF(db)+2*tt,2)}, v{VA(db)} offset:{off + tt*4096}") for db in range(8) for tt in range(2)]

    def sm_stream(self, buf):
        r = []
        def post(e):
            q, i = e // 8, e % 8
            b = S(buf, q)
            if q in self.a.vsum:
                if i == 1: r.append((e, I(f"v_add_f32 v{X(q)}, v{b}, v{b+1}")))
                elif i > 1: r.append((e, I(f"v_add_f32 v{X(q)}, v{X(q)}, v{b+i}")))
            if i % 2 == 1:
                r.append((e, I(f"v_cvt_pk_bf16_f32 v{b+i//2}, v{b+i-1}, v{b+i}")))
            if i == 7 and q not in self.a.vsum: r.append((e, ("SUM", buf, q)))
        for e in range(32):
            r.append((e, I(f"v_exp_f32 v{S(buf,0)+e}, v{S(buf,0)+e}")))
            if e >= 1: post(e - 1)
        post(31)
        return r

    def flat_stream(self, items):
        r = []
        for x in items:
            if isinstance(x, tuple):
                r += [I("s_nop 1"), self.sum_mfma(x[1], x[2])]
            else:
                if r and r[-1].is_trans and set(r[-1].dst) & set(x.src): r.append(I("s_nop 0"))
                r.append(x)
        return r

    def rowmax(self, b, t0, t1):
        return [I(f"v_max3_f32 v{t0}, v{b}, v{b+1}, v{b+2}"), I(f"v_max3_f32 v{t1}, v{b+3}, v{b+4}, v{b+5}"),
                I(f"v_max3_f32 v{t0}, v{t0}, v{b+6}, v{b+7}"), I(f"v_max_f32 v{t0}, v{t0}, v{t1}"),
                I(f"v_mov_b32 v{t1}, v{t0}"), I("s_nop 1"), I(f"v_permlane16_swap_b32 v{t0}, v{t1}"), I("s_nop 1"),
                I(f"v_max_f32 v{t0}, v{t0}, v{t1}"),
                I(f"v_mov_b32 v{t1}, v{t0}"), I("s_nop 1"), I(f"v_permlane32_swap_b32 v{t0}, v{t1}"), I("s_nop 1")]

    def maxfix_first(self, buf, qs):
        r = []
        ts = {q: (T + 2 * i, T + 2 * i + 1) for i, q in enumerate(qs)}
        def each(f):
            for q in qs: r.append(I(f(q, S(buf, q), *ts[q])))
        pad = [I("s_nop 1")] if len(qs) < 3 else []
        each(lambda q, b, t0, t1: f"v_max3_f32 v{t0}, v{b}, v{b+1}, v{b+2}")
        each(lambda q, b, t0, t1: f"v_max3_f32 v{t1}, v{b+3}, v{b+4}, v{b+5}")
        each(lambda q, b, t0, t1: f"v_max3_f32 v{t0}, v{t0}, v{b+6}, v{b+7}")
        each(lambda q, b, t0, t1: f"v_max_f32 v{t0}, v{t0}, v{t1}")
        for sw in ("v_permlane16_swap_b32", "v_permlane32_swap_b32"):
            each(lambda q, b, t0, t1: f"v_mov_b32 v{t1}, v{t0}")
            r += pad
            each(lambda q, b, t0, t1: f"{sw} v{t0}, v{t1}")
            r += pad
            each(lambda q, b, t0, t1: f"v_max_f32 v{t0}, v{t0}, v{t1}")
        for q in qs:
            t0 = ts[q][0]
            for i in range(4): r.append(I(f"v_sub_f32 v{NEGM(q)+i}, 0, v{t0}"))
            for i in range(8): r.append(I(f"v_sub_f32 v{S(buf,q)+i}, v{S(buf,q)+i}, v{t0}"))
        return r

    def slow_path(self, u, label, has_next, xored):
        cur, nxt = u % 2, (u + 1) % 2
        r = [I(f"{label}:")]
        x = [I(f"v_xor_b32 v{KA(ds)}, 0x8000, v{KA(ds)}") for ds in range(4)] if xored else []
        r += [I("s_nop 3")] + x + self.k_reads(u) + [I(i.text) for i in x]
        r.append(I("s_waitcnt lgkmcnt(0)"))
        r += self.qk_mfmas(cur)
        r.append(I("s_nop 7"))
        t0, t1, t2 = T, T + 1, T + 2
        for q in range(4):
            b = S(cur, q)
            r += self.rowmax(b, t0, t1)
            r.append(I(f"v_max3_f32 v{t0}, v{t0}, v{t1}, 0"))
            r.append(I(f"v_exp_f32 v{t2}, -v{t0}"))
            for i in range(4): r.append(I(f"v_sub_f32 v{NEGM(q)+i}, v{NEGM(q)+i}, v{t0}"))
            r.append(I(f"v_mul_f32 v{L(q)}, v{L(q)}, v{t2}"))
            if has_next:
                for i in range(8): r.append(I(f"v_sub_f32 v{S(nxt,q)+i}, v{S(nxt,q)+i}, v{t0}"))
            for i in range(32): r.append(I(f"v_mul_f32 v{O(q,0)+i}, v{O(q,0)+i}, v{t2}"))
            for i in range(8): r.append(I(f"v_sub_f32 v{b+i}, v{b+i}, v{t0}"))
        r += self.flat_stream([x for _, x in self.sm_stream(cur)])
        r.append(I("s_nop 7"))
        r.append(I(f"s_branch {label}_ret"))
        return r

    def schedule(self, mfmas, stream, others, tail=(), tail_lag=8, fin=(), nxt_stream=None):
        out = []
        M = list(mfmas); stream = list(stream); tail = list(tail)
        others = sorted(others, key=lambda x: (x.early, x.late))
        kind = lambda o: "s" if o.ins[0].is_salu else ("d" if o.ins[0].is_ds else ("m" if o.ins[0].is_vmem else "v"))
        pend = []
        last_sum_pos = None
        def states_since(idx): return sum(i.states for i in out[idx + 1:])
        g = -1
        def pop_markers():
            while stream and isinstance(stream[0], tuple):
                x = stream.pop(0); pend.append([self.sum_mfma(x[1], x[2]), len(out) - 1])
        def last_real():
            return out[-1]
        def ok(n):
            l = last_real()
            return not (l.is_trans and set(l.dst) & set(n.src))
        def take(k, overdue=False):
            for o in others:
                if kind(o) == k and (o.late <= g if overdue else o.early <= g):
                    others.remove(o); return o
            return None
        def small_v():
            pop_markers()
            o = take("v", True)
            if o: return o.ins
            if stream and stream[0].cost == 4 and ok(stream[0]): return [stream.pop(0)]
            if tail and not stream and not pend and (last_sum_pos is None or states_since(last_sum_pos) >= tail_lag):
                return [tail.pop(0)]
            o = take("v")
            if o: return o.ins
            return None
        while M or pend or any(isinstance(x, tuple) for x in stream):
            if pend and states_since(pend[0][1]) >= 2:
                out.append(pend.pop(0)[0]); last_sum_pos = len(out) - 1
            elif M:
                out.append(M.pop(0))
            elif pend:
                out.append(I("s_nop 1")); out.append(pend.pop(0)[0]); last_sum_pos = len(out) - 1
            else:
                while stream and not isinstance(stream[0], tuple): out.append(stream.pop(0))
                pop_markers(); continue
            g += 1
            is_last = not M and not pend and not any(isinstance(x, tuple) for x in stream)
            if is_last and fin: break
            o = take("s")
            if o: out += o.ins
            pop_markers()
            nxt_exp = bool(stream) and stream[0].cost == 8
            o = take("m", True) or take("d", True)
            if not o and not nxt_exp: o = take("d") or take("m")
            if o:
                out += o.ins
                if kind(o) == "d":
                    v = small_v()
                    if v: out += v
            elif nxt_exp:
                out.append(stream.pop(0))
            else:
                for _ in range(2):
                    v = small_v()
                    if v: out += v
            pop_markers()
        for x in stream: out.append(x)
        for o in others: out += o.ins
        if tail:
            if last_sum_pos is not None and states_since(last_sum_pos) < tail_lag:
                out.append(I(f"s_nop {tail_lag - states_since(last_sum_pos) - 1}"))
            out += tail
        out += list(fin)
        if fin and nxt_stream and not isinstance(nxt_stream[0], tuple):
            out.append(nxt_stream.pop(0))
        return out

    def insert_waits(self, seq, pending):
        out = []
        pend = list(pending)
        pend = [(p, -1) for p in pend]
        last_m = -1
        for x in seq:
            if x.op == "s_waitcnt" and "lgkmcnt" in x.text:
                import re
                k = int(re.search(r"lgkmcnt\((\d+)\)", x.text).group(1))
                pend = pend[len(pend) - k:] if 0 < k < len(pend) else ([] if k == 0 else pend)
            if x.is_mfma:
                need = [i for i, (p, _) in enumerate(pend) if p & set(x.src)]
                if need:
                    j = max(need)
                    pos = last_m + 1 if pend[j][1] <= last_m else len(out)
                    n = sum(1 for (p, q) in pend[j + 1:] if q < pos)
                    assert n <= 15
                    out.insert(pos, I(f"s_waitcnt lgkmcnt({n})"))
                    pend = [(p, q + (1 if q >= pos else 0)) for (p, q) in pend[j + 1:]]
                last_m = len(out)
            if x.is_ds: pend.append((set(x.dst), len(out)))
            out.append(x)
        return out, [p for p, _ in pend]

    def check_ins(self):
        return [I(f"v_max3_f32 v{T}, v{X(0)}, v{X(1)}, v{X(2)}"), I(f"v_max_f32 v{T}, v{T}, v{X(3)}"),
                I(f"v_cmp_lt_f32 vcc, {THR:#x}, v{T}")]

    def split_stream(self, buf):
        sm = self.sm_stream(buf)
        idx = next(i for i, (e, x) in enumerate(sm) if e == self.a.split and isinstance(x, I) and x.is_trans)
        return [x for _, x in sm[:idx]], [x for _, x in sm[idx:]]

    def phaseA(self, u, rest, has_qk=True, extra=(), xored=False, tag=""):
        a = self.a
        nxt = (u + 1) % 2
        vreads = self.v_reads(u)
        label = f"L_slow_{u}{tag}"
        others = [Item(v, g, g + a.v_slack) for v, g in zip(vreads, a.vplan)]
        others += list(extra)
        fin = [I(f"s_cbranch_vccnz {label}"), I(f"{label}_ret:")]
        if has_qk:
            first, nrest = self.split_stream(nxt)
            o = self.schedule(self.qk_mfmas(nxt), rest, others, tail=self.check_ins(), fin=fin, nxt_stream=first)
        else:
            first, nrest = [], []
            o = list(vreads[:8])
            fl = self.flat_stream(rest)
            o += fl[:4] + vreads[8:] + fl[4:] + [I("s_nop 7")] + self.check_ins() + fin
        self.slow += self.slow_path(u, label, has_qk, xored)
        return o, first, nrest

    def phaseB(self, u, stream, has_kreads=True, barrier=None, extra=(), last=False):
        a = self.a
        cur = u % 2
        others = []
        if barrier is not None:
            others.append(Item([I(f"s_waitcnt vmcnt({barrier})")], a.bar_gap, a.bar_gap))
            others.append(Item([I("s_barrier")], a.bar_gap + 1, a.bar_gap + 1))
        if has_kreads:
            others += [Item(k, g, g + a.k_slack) for k, g in zip(self.k_reads(u + 2), a.kplan)]
        for q in range(4):
            others.append(Item(I(f"v_add_f32 v{L(q)}, v{L(q)}, v{X(q)}"), 0, 9 + 3 * q))
        others += list(extra)
        return self.schedule(self.pv_mfmas(cur, qmajor=last), stream, others)

    def dma_items(self, which, t, post=(), static=False):
        a = self.a
        m0, lds = self.dma_tile(which, t, static)
        gs = [a.d_early + n * a.d_step for n in range(4)]
        its = [Item(m0, max(gs[0] - 2, 0), gs[0] - 1)]
        for n in range(4): its.append(Item(lds[n], gs[n], gs[n] + a.d_slack))
        for p in post: its.append(Item(p, gs[3] + a.d_slack + 1, gs[3] + a.d_slack + 3))
        return its

    def prologue(self):
        e, a = self.e, self.a
        if a.stamp:
            e("s_memtime s[48:49]"); e("s_memrealtime s[50:51]")
        if a.spin_end or a.spin_loop or a.spin_epi: e("s_memrealtime s[60:61]")
        e("s_cmp_ge_u32 s2, 256"); e("s_cbranch_scc1 L_end")
        e("s_load_dwordx4 s[4:7], s[0:1], 0"); e("s_load_dwordx4 s[8:11], s[0:1], 16")
        if a.stamp: e(f"s_load_dwordx2 s[{SWS}:{SWS+1}], s[0:1], 40")
        vl, vg, vt, vu = T, T + 1, T + 2, T + 3
        if a.cpf:
            e("s_getpc_b64 s[62:63]")
            e("L_pc0:")
            e(f"v_lshlrev_b32 v{T+9}, 7, v0")
            e(f"v_cmp_gt_u32 vcc, L_end-L_pc0, v{T+9}")
            e("s_and_saveexec_b64 s[60:61], vcc")
            e("s_cbranch_execz L_cpf_skip")
            e(f"global_load_dword v{T+8}, v{T+9}, s[62:63]")
            e("L_cpf_skip:")
            e("s_mov_b64 exec, s[60:61]")
        e(f"v_lshrrev_b32 v{vt}, 6, v0")
        e(f"v_and_b32 v{vl}, 63, v0", "lane")
        e(f"v_readfirstlane_b32 s{S_W}, v{vt}")
        e(f"s_and_b32 s{S_T0}, s2, 7"); e(f"s_lshr_b32 s{S_T1}, s2, 3")
        e(f"s_lshl_b32 s{S_T0}, s{S_T0}, 4"); e(f"s_lshr_b32 s{S_T2}, s{S_T1}, 1")
        e(f"s_add_u32 s{S_T0}, s{S_T0}, s{S_T2}", "kv head index")
        e(f"s_and_b32 s{S_T1}, s{S_T1}, 1"); e(f"s_lshl_b32 s{S_T2}, s{S_T0}, 1")
        e(f"s_add_u32 s{S_T1}, s{S_T1}, s{S_T2}", "q head index")
        e(f"s_lshl_b32 s{S_T0}, s{S_T0}, 18"); e(f"s_lshl_b32 s{S_T1}, s{S_T1}, 16")
        e(f"s_lshl_b32 s{S_KW}, s{S_W}, 12")
        e(f"v_lshrrev_b32 v{vg}, 4, v{vl}", "g = lane>>4")
        e(f"v_and_b32 v{vt}, 15, v{vl}", "i = lane&15")
        e(f"v_xor_b32 v{vu}, v{vt}, v{vg}")
        e(f"v_lshlrev_b32 v{vu}, 4, v{vu}")
        e(f"v_lshl_add_u32 v{KD(0)}, v{vg}, 8, v{vu}")
        e(f"v_add_u32 v{KD(0)}, s{S_KW}, v{KD(0)}")
        for n in range(1, 4): e(f"v_xor_b32 v{KD(n)}, {n<<6:#x}, v{KD(0)}")
        e(f"s_lshl_b32 s{S_QL}, s{S_W}, 14")
        e(f"s_cmp_lt_u32 s{S_W}, 2"); e(f"s_cselect_b32 s{S_QG}, 2, 1"); e(f"s_lshl_b32 s{S_QG}, s{S_QG}, 16")
        e(f"s_add_u32 s{S_QL}, s{S_QL}, s{S_QG}", "q lds base")
        e(f"s_mul_i32 s{S_QG}, s{S_W}, 12288")
        e("s_waitcnt lgkmcnt(0)")
        if a.stamp:
            e("s_memtime s[52:53]"); e("s_memrealtime s[54:55]"); e("s_waitcnt lgkmcnt(0)")
        def mksrd(sr, p, off, n):
            e(f"s_add_u32 s{sr}, s{p}, s{off}"); e(f"s_addc_u32 s{sr+1}, s{p+1}, 0")
            e(f"s_mov_b32 s{sr+2}, {n}"); e(f"s_mov_b32 s{sr+3}, 0x20000")
        def vd_setup():
            e(f"v_lshlrev_b32 v{vu}, 1, v{vg}")
            e(f"v_xor_b32 v{vu}, v{vt}, v{vu}")
            e(f"v_lshlrev_b32 v{vu}, 4, v{vu}")
            e(f"v_lshl_add_u32 v{VD(0)}, v{vg}, 8, v{vu}")
            e(f"v_add_u32 v{VD(0)}, s{S_KW}, v{VD(0)}")
            e(f"v_xor_b32 v{VD(1)}, 0x80, v{VD(0)}")
        def qgrp(grp):
            r = [I(f"s_add_u32 m0, s{S_QL}, {grp*4096}"), I(f"s_add_u32 s{S_T2}, s{S_QG}, {grp*4096}")]
            for n in range(4):
                ld = I(" ".join(f"buffer_load_dwordx4 v{KD(n)}, {srd(SQ)}, s{S_T2} offen offset:{n*1024} {a.qmod} lds".split()))
                ld.dma = f"Q{grp}"
                r.append(ld)
            return r
        def tile(which, t):
            m0, lds = self.dma_tile(which, t, static=True)
            return [m0, I(f"s_mov_b32 s{S_G if which == 'K' else S_GV}, {t*16384}")] + lds
        QA = X(3)
        def setup():
            if a.stamp:
                e(f"s_mov_b32 s{SWS+2}, 0x1000000"); e(f"s_mov_b32 s{SWS+3}, 0x20000")
                e(f"s_lshl_b32 s{S_WSO}, s2, 2"); e(f"s_add_u32 s{S_WSO}, s{S_WSO}, s{S_W}"); e(f"s_lshl_b32 s{S_WSO}, s{S_WSO}, 9")
                e(f"v_accvgpr_write_b32 a{ST0}, 0"); e(f"v_accvgpr_write_b32 a{ST1}, 0"); e(f"s_mov_b32 s{S_SI}, 2")
                e("s_mov_b64 exec, 1"); e(f"v_accvgpr_write_b32 a{ST0}, s48"); e(f"v_accvgpr_write_b32 a{ST1}, s50")
                e("s_mov_b64 exec, 2"); e(f"v_accvgpr_write_b32 a{ST0}, s52"); e(f"v_accvgpr_write_b32 a{ST1}, s54")
                e("s_mov_b64 exec, -1")
                self.emit(self.stamp())
            e(f"v_xor_b32 v{vu}, v{vt}, v{vg}")
            e(f"v_lshlrev_b32 v{vu}, 4, v{vu}")
            e(f"v_lshl_add_u32 v{KA(0)}, v{vt}, 8, v{vu}")
            for ds in range(1, 4): e(f"v_xor_b32 v{KA(ds)}, {ds<<6:#x}, v{KA(0)}")
            e(f"v_lshrrev_b32 v{vu}, 2, v{vl}", "key = lane>>2")
            e(f"v_lshlrev_b32 v{VA(0)}, 8, v{vu}")
            e(f"v_and_b32 v{vu}, 7, v{vu}")
            e(f"v_lshl_add_u32 v{VA(0)}, v{vu}, 5, v{VA(0)}")
            e(f"v_and_b32 v{vu}, 3, v{vl}")
            e(f"v_lshl_add_u32 v{VA(0)}, v{vu}, 3, v{VA(0)}")
            e(f"v_add_u32 v{VA(0)}, 0x10000, v{VA(0)}")
            for db in range(1, 8): e(f"v_xor_b32 v{VA(db)}, {db<<5:#x}, v{VA(0)}")
            for ds in range(4): e(f"v_add_u32 v{QA+ds}, s{S_QL}, v{KA(ds)}")
            e(f"s_mov_b32 s{S_C}, {f2u(CSC):#x}"); e(f"s_mov_b32 s{S_C+1}, {f2u(CSC):#x}")
            for q in range(4): e(f"v_mov_b32 v{L(q)}, 0")
            e(f"v_mov_b32 v{vu}, 0x3f803f80")
            for i in range(4): e(f"v_accvgpr_write_b32 a{ONES+i}, v{vu}")
            for i in range(128): e(f"v_mov_b32 v{i}, 0")
            if a.unroll == 2:
                e(f"s_mov_b32 s{S_PB}, s{S_KW}"); e(f"s_add_u32 s{S_PB2}, s{S_KW}, 0x8000")
            e(f"s_mov_b32 s{S_CNT}, {16 // a.unroll}")
        RAW = S(1, 0); TMP = S(1, 2)
        def qproc(q, early=(), mid=()):
            e(f"s_waitcnt vmcnt({self.vm_needed([f'Q{q}'])})")
            for ds in range(4): e(f"ds_read_b128 {vr(RAW+4*ds,4)}, v{QA+ds} offset:{q*4096}")
            self.emit(early)
            for ds in range(4):
                if ds == 2: self.emit(mid)
                e(f"s_waitcnt lgkmcnt({3-ds})")
                for k in range(4):
                    e(f"v_lshlrev_b32 v{TMP+2*k}, 16, v{RAW+4*ds+k}")
                    e(f"v_and_b32 v{TMP+2*k+1}, 0xffff0000, v{RAW+4*ds+k}")
                for k in range(4): e(f"v_pk_mul_f32 {vr(TMP+2*k,2)}, {vr(TMP+2*k,2)}, s[{S_C}:{S_C+1}]")
                for k in range(4): e(f"v_cvt_pk_bf16_f32 v{TMP+8+k}, v{TMP+2*k}, v{TMP+2*k+1}")
                for k in range(4): e(f"v_accvgpr_write_b32 a{Q(q,ds)+k}, v{TMP+8+k}")
        sm = self.sm_stream(0)
        pos = lambda e0: next(i for i, (ee, x) in enumerate(sm) if ee == e0 and isinstance(x, I) and x.is_trans)
        part = lambda a0, a1: self.flat_stream([x if isinstance(x, tuple) else I(x.text) for _, x in sm[a0:a1]])
        idx = pos(a.split)
        qk = lambda *qs: self.emit([I("s_nop 0")] + self.qk_mfmas(0, zero_c=True, qs=qs))

        def variantA():
            mksrd(SQ, 4, S_T1, 65536)
            self.emit(qgrp(0)); self.emit(qgrp(1))
            mksrd(SK, 6, S_T0, 262144)
            mksrd(SV, 8, S_T0, 262144); mksrd(SO, 10, S_T1, 65536)
            vd_setup(); setup()
            queue = [tile("K", 0), qgrp(2), qgrp(3), tile("V", 0), tile("K", 1), tile("K", 2), tile("V", 1)]
            flat = []
            for grp in queue:
                lds = [x for x in grp if x.is_vmem]; hd = [x for x in grp if not x.is_vmem]
                for n, x in enumerate(lds): flat.append((hd if n == 0 else []) + [x])
            def take(n):
                r = []
                for _ in range(n):
                    if flat: r += flat.pop(0)
                return r
            self.emit(take(a.ahead))
            self.emit(self.stamp())
            h = a.mid
            qproc(0, take(4 - h), take(h))
            qproc(1, take(4 - h), take(h))
            self.emit(self.stamp())
            e(f"s_waitcnt vmcnt({self.vm_needed(['K0'])})")
            self.emit(take(4 - h))
            e("s_barrier")
            self.emit(self.k_reads(0))
            e("s_waitcnt lgkmcnt(0)")
            qk(0, 1)
            self.emit(take(h))
            e("s_nop 7")
            self.emit(self.maxfix_first(0, (0, 1)))
            self.emit(part(0, pos(16)))
            self.emit(self.stamp())
            qproc(2, take(4 - h), take(h))
            qk(2)
            e("s_nop 7")
            self.emit(self.maxfix_first(0, (2,)))
            self.emit(part(pos(16), idx))
            self.emit(self.stamp())
            qproc(3, take(4 - h), take(h))
            qk(3)
            self.emit(self.k_reads(1))
            self.emit(self.maxfix_first(0, (3,)))
            e(f"s_waitcnt vmcnt({self.vm_needed(['V0'])}) lgkmcnt(0)")
            self.emit(take(99))
            e("s_barrier", "V0 visible; Q staging slots free")
            self.emit(self.stamp())

        def variantB():
            mksrd(SK, 6, S_T0, 262144)
            self.emit(tile("K", 0))
            mksrd(SV, 8, S_T0, 262144)
            vd_setup()
            self.emit(tile("V", 0))
            if a.b_k1: self.emit(tile("K", 1))
            mksrd(SQ, 4, S_T1, 65536); mksrd(SO, 10, S_T1, 65536)
            setup()
            e(f"s_waitcnt vmcnt({a.b_wait})")
            for g in range(4): self.emit(qgrp(g))
            if not a.b_k1: self.emit(tile("K", 1))
            self.emit(self.stamp())
            e(f"s_waitcnt vmcnt({self.vm_needed(['K0'])})")
            e("s_barrier")
            self.emit(self.k_reads(0))
            qproc(0)
            qk(0)
            self.emit(tile("V", 1))
            self.emit(self.stamp())
            qproc(1)
            qk(1)
            self.emit(self.maxfix_first(0, (0,)))
            self.emit(tile("K", 2))
            self.emit(part(0, pos(8)))
            self.emit(self.stamp())
            qproc(2)
            qk(2)
            self.emit(self.maxfix_first(0, (1,)))
            self.emit(part(pos(8), pos(16)))
            self.emit(self.maxfix_first(0, (2,)))
            self.emit(part(pos(16), idx))
            self.emit(self.stamp())
            qproc(3)
            qk(3)
            self.emit(self.k_reads(1))
            e(f"s_waitcnt vmcnt({self.vm_needed(['V0','K1'])})")
            e("s_barrier", "V0,K1 visible; Q staging slots free")
            self.emit(tile("V", 2))
            self.emit(self.maxfix_first(0, (3,)))
            self.emit(tile("K", 3))
            e("s_waitcnt lgkmcnt(0)")
            self.emit(self.stamp())

        self.alt = None
        if a.ab:
            e(f"s_bitcmp1_b32 s2, {a.ab_bit}")
            e("s_cbranch_scc0 L_varA")
            nh = len(self.out)
            variantB()
            e("s_branch L_loop")
            self.alt = (nh, len(self.out))
            self.dma_log = []
            e("L_varA:")
        variantA()
        self.first = [I("L_first:"), I(f"s_waitcnt vmcnt({self.vm_needed(['K1'])})"), I("s_barrier")] + tile("K", 3) + [I("s_branch L_first_ret")]
        return [x for _, x in sm[idx:]]

    def epilogue(self):
        e, a = self.e, self.a
        self.emit(self.stamp())
        if a.spin_epi: self.spin(a.spin_epi, "L_spin3")
        inv = [T, T + 2, T + 4, T + 6]
        va = T + 8
        for q in a.vsum:
            for sw in ("v_permlane16_swap_b32", "v_permlane32_swap_b32"):
                e(f"v_mov_b32 v{T}, v{L(q)}"); e("s_nop 1"); e(f"{sw} v{T}, v{L(q)}"); e("s_nop 1")
                e(f"v_add_f32 v{L(q)}, v{L(q)}, v{T}")
        for q in range(4): e(f"v_rcp_f32 v{inv[q]}, v{L(q)}")
        stg = [0, 16384, 32768, 65536]
        vw, vrd, vo = T + 1, T + 3, T + 5
        e(f"v_mbcnt_lo_u32_b32 v{va}, -1, 0"); e(f"v_mbcnt_hi_u32_b32 v{va}, -1, v{va}")
        e(f"v_lshlrev_b32 v{vo}, 4, v{va}", "global voffset = lane*16")
        e(f"v_and_b32 v{va+1}, 15, v{va}"); e(f"v_lshrrev_b32 v{va}, 4, v{va}")
        e(f"v_lshlrev_b32 v{vw}, 3, v{va}")
        e(f"v_lshlrev_b32 v{vrd}, 4, v{va+1}")
        e(f"v_xor_b32 v{vw}, v{vw}, v{vrd}")
        e(f"v_lshl_add_u32 v{vw}, v{va+1}, 8, v{vw}")
        e(f"v_add_u32 v{vw}, s{S_KW}, v{vw}")
        WA = X(0)
        for db in range(8): e(f"v_xor_b32 v{WA+db}, {db*32:#x}, v{vw}")
        e(f"s_lshl_b32 s{S_T0}, s{S_W}, 14")
        e("s_waitcnt vmcnt(0)", "own (out-of-range) DMA writes have landed")
        PB = S(0, 0)
        def pack(q):
            for db in range(8):
                b = O(q, db); pb = PB + 16 * (q % 2) + 2 * db
                for i in (0, 2): e(f"v_pk_mul_f32 {vr(b+i,2)}, {vr(b+i,2)}, {vr(inv[q],2)} op_sel_hi:[1,0]")
                for i in range(2): e(f"v_cvt_pk_bf16_f32 v{pb+i}, v{b+2*i}, v{b+2*i+1}")
                off = stg[q]
                if off >= 65536:
                    e(f"v_add_u32 v{WA+db}, {off}, v{WA+db}"); off = 0
                e(f"ds_write_b64 v{WA+db}, {vr(pb,2)} offset:{off}")
        def rd(q):
            off = stg[q]
            for j in range(4):
                if off >= 65536: e(f"v_add_u32 v{KD(j)}, {off}, v{KD(j)}")
                e(f"ds_read_b128 {vr(PB+32+16*(q%2)+4*j,4)}, v{KD(j)} offset:{(off % 65536) + j*1024}")
        def st(q):
            for j in range(4):
                e(f"s_waitcnt lgkmcnt({3-j if q == 3 else 8 + 3 - j})")
                e(" ".join(f"buffer_store_dwordx4 {vr(PB+32+16*(q%2)+4*j,4)}, v{vo}, {srd(SO)}, s{S_T0} offen offset:{j*1024} {a.omod}".split()))
            if q < 3: e(f"s_add_u32 s{S_T0}, s{S_T0}, 4096")
        pack(0)
        for q in range(4):
            rd(q)
            if q < 3: pack(q + 1)
            st(q)
        self.emit(self.stamp())
        if a.stamp:
            e("s_waitcnt vmcnt(0)")
            self.emit(self.stamp())
            e(f"v_mbcnt_lo_u32_b32 v0, -1, 0"); e(f"v_mbcnt_hi_u32_b32 v0, -1, v0"); e("v_lshlrev_b32 v0, 2, v0")
            e(f"buffer_store_dword a{ST0}, v0, {srd(SWS)}, s{S_WSO} offen")
            e(f"buffer_store_dword a{ST1}, v0, {srd(SWS)}, s{S_WSO} offen offset:256")
        if a.spin_end:
            e("s_waitcnt vmcnt(0)")
            self.spin(a.spin_end, "L_spin2")
        e("L_end:")
        e("s_endpgm")

    def body(self, rest):
        e, a = self.e, self.a
        U = 2 * a.unroll
        txt = lambda r: [x if isinstance(x, tuple) else x.text for x in r]
        cp = lambda r: [x if isinstance(x, tuple) else I(x.text) for x in r]
        rest0 = txt(rest)
        inc = lambda: I(f"s_add_u32 s{S_G}, s{S_G}, 16384")
        seq = []
        for u in range(U):
            t = u // 2
            exA, exB = [], []
            pre = lambda r: Item(I(f"s_add_u32 s{r}, s{r}, 16384"), 2, a.d_early - 1)
            if u % 2 == 1:
                exB += [pre(S_G)] + self.dma_items("K", t + 4, [I(f"s_xor_b32 s{S_PB}, s{S_PB}, 0x8000")] if (a.unroll == 2 and u == 3) else [])
            else:
                exB += [pre(S_GV)] + self.dma_items("V", t + 2, [I(f"s_xor_b32 s{S_PB2}, s{S_PB2}, 0x8000")] if (a.unroll == 2 and u == 2) else [])
            xored = False
            if a.unroll == 2:
                if u == 2:
                    exA += [Item(I(f"v_xor_b32 v{KA(ds)}, 0x8000, v{KA(ds)}"), 0, 31) for ds in range(4)]
                xored = u >= 2
                if u == 3:
                    for db in range(8):
                        g = a.vplan[2 * db + 1] + a.v_slack + 1
                        if g <= 31: exA.append(Item(I(f"v_xor_b32 v{VA(db)}, 0x8000, v{VA(db)}"), g, 99))
                        else: exB.append(Item(I(f"v_xor_b32 v{VA(db)}, 0x8000, v{VA(db)}"), 0, 31))
            if u == 0:
                exA.append(Item(I(f"s_cmp_eq_u32 s{S_CNT}, {16 // a.unroll}"), a.first_gap - 1, a.first_gap - 1))
                exA.append(Item([I("s_cbranch_scc1 L_first"), I("L_first_ret:")], a.first_gap, a.first_gap))
            if u == U - 2:
                exA.append(Item(I(f"s_sub_u32 s{S_CNT}, s{S_CNT}, 1"), 4, 31))
                exB.append(Item(I(f"s_cmp_eq_u32 s{S_CNT}, 0"), 31, 31))
            o, first, rest = self.phaseA(u, rest, extra=exA, xored=xored)
            seq += o
            seq += self.phaseB(u, first, barrier=(8 if u % 2 == 1 else None), extra=exB)
            if u == U - 2:
                seq.append(I("s_cbranch_scc1 L_tail"))
                rest_tail = cp(rest)
            if a.stamp and u % a.stamp_every == a.stamp_every - 1: seq += self.stamp()
        seq.append(I("s_branch L_loop"))
        assert txt(rest) == rest0
        _, pend = self.insert_waits(seq, [])
        seq2, pend2 = self.insert_waits(seq, pend)
        assert pend == pend2
        if a.spin_loop: self.spin(a.spin_loop, "L_spin1")
        if a.align: e(f".p2align {a.align}")
        e("L_loop:")
        n0 = len(self.out)
        self.emit(seq2)
        n1 = len(self.out)
        n_exit = next(i for i in range(n0, n1) if "L_tail" in self.out[i].text) + 1
        e("L_tail:")
        o, _, _ = self.phaseA(U - 1, rest_tail, has_qk=False, xored=(a.unroll == 2), tag="_t")
        o = [I("s_waitcnt lgkmcnt(0)")] + o + self.phaseB(U - 1, [], has_kreads=False, last=True)
        o, _ = self.insert_waits(o, [])
        self.emit(o)
        self.check_seq = lambda: self.out[:n1] + self.out[n0:n_exit] + self.out[n1:]
        self.loop_range = (n0, n1)

    def build(self):
        rest = self.prologue()
        n0 = len(self.out)
        self.body(rest)
        if self.a.drop:
            pats = self.a.drop.split(",")
            l0, l1 = self.loop_range
            keep = lambda i: not any(i.text.startswith(p.replace("~", " ")) for p in pats) or i.text == "s_waitcnt lgkmcnt(0)"
            self.out = self.out[:l0] + [i for i in self.out[l0:l1] if keep(i)] + self.out[l1:]
            self.nocheck2 = True
        self.epilogue()
        seq = self.check_seq()
        if getattr(self, "nocheck", False):
            return "", []
        if getattr(self, "nocheck2", False):
            probs = []
        elif self.alt:
            nh, nb = self.alt
            probs = check(seq[:nh] + seq[nb:], "mainA", verbose=False)
            probs += check(seq[:nb] + seq[self.loop_range[0]:], "mainB", verbose=False)
        else:
            probs = check(seq, "main", verbose=False)
        probs += check(self.slow, "slow", verbose=False)
        hdr = open("standalone__gqa_softmax__near_ridge.s.ref").read().split("; Override")[0]
        txt = hdr + "; @launch grid=(256,1,1) block=(256,1,1) lds=163840\n"
        txt += '.amdgcn_target "amdgcn-amd-amdhsa--gfx950"\n.text\n'
        txt += f".globl {KNAME}\n.p2align 8\n.type {KNAME},@function\n{KNAME}:\n"
        txt += "\n".join(str(i) for i in self.out) + "\n"
        txt += "\n".join(str(i) for i in self.first + self.slow) + "\n"
        txt += f""".section .rodata,"a"
.p2align 6
.amdhsa_kernel {KNAME}
  .amdhsa_next_free_vgpr {256 + NAGPR}
  .amdhsa_next_free_sgpr 64
  .amdhsa_accum_offset 256
  .amdhsa_group_segment_fixed_size 0
  .amdhsa_kernarg_size 48
  .amdhsa_user_sgpr_count 2
  .amdhsa_user_sgpr_kernarg_segment_ptr 1
  .amdhsa_system_sgpr_workgroup_id_x 1
.end_amdhsa_kernel
"""
        return txt, probs

    def gap_report(self):
        n0, n1 = self.loop_range
        gaps = []; cur = None
        for i in self.out[n0:n1]:
            if i.is_label: continue
            if i.is_mfma:
                if cur is not None: gaps.append(cur)
                cur = ""
            elif cur is not None:
                cur += "E" if i.is_trans else ("v" if i.is_valu else ("d" if i.is_ds else ("M" if i.is_vmem else "s")))
        gaps.append(cur)
        def t(gp):
            tm = 4; prev = "m"
            for c in gp:
                if c == "s": tm += 4
                else:
                    tm = max(tm, 8)
                    if c in "dM" and prev in "vE": tm += 4
                    if c in "vE" and prev == "M": tm += 4
                    tm += 8 if c == "E" else 4
                prev = c
            if prev in "dM": tm += 4
            return max(16, tm)
        return gaps, sum(map(t, gaps))


def get_args(argv=None):
    p = argparse.ArgumentParser()
    p.add_argument("-o", default="k2.s")
    p.add_argument("--stamp", action="store_true")
    p.add_argument("--split", type=int, default=18)
    p.add_argument("--bar_gap", type=int, default=0)
    p.add_argument("--vplan", default="2,5,8,11,14,17,20,22,24,25,26,27,28,29,30,31")
    p.add_argument("--kplan", default="3,6,9,12,15,18,21,24")
    p.add_argument("--v_slack", type=int, default=1)
    p.add_argument("--k_slack", type=int, default=2)
    p.add_argument("--d_early", type=int, default=7)
    p.add_argument("--d_step", type=int, default=6)
    p.add_argument("--d_slack", type=int, default=1)
    p.add_argument("--dma_in", default="B")
    p.add_argument("--unroll", type=int, default=2)
    p.add_argument("--align", type=int, default=6)
    p.add_argument("--drop", default="")
    p.add_argument("--cpf", type=int, default=1)
    p.add_argument("--ahead", type=int, default=6)
    p.add_argument("--mid", type=int, default=0)
    p.add_argument("--stamp_every", type=int, default=4)
    p.add_argument("--vsum", default="")
    p.add_argument("--first_gap", type=int, default=26)
    p.add_argument("--spin_end", type=int, default=0)
    p.add_argument("--spin_loop", type=int, default=0)
    p.add_argument("--spin_epi", type=int, default=0)
    p.add_argument("--ab", type=int, default=0)
    p.add_argument("--ab_bit", type=int, default=3)
    p.add_argument("--b_k1", type=int, default=1)
    p.add_argument("--b_wait", type=int, default=0)
    p.add_argument("--epi_split", type=int, default=0)
    p.add_argument("--epi_mul", type=int, default=0)
    p.add_argument("--kvmod", default="")
    p.add_argument("--qmod", default="")
    p.add_argument("--omod", default="nt")
    a = p.parse_args(argv)
    a.vplan = [int(x) for x in a.vplan.split(",")]
    a.vsum = [int(x) for x in a.vsum.split(",") if x]
    a.kplan = [int(x) for x in a.kplan.split(",")]
    return a


if __name__ == "__main__":
    a = get_args()
    g = Gen(a)
    txt, probs = g.build()
    open(a.o, "w").write(txt)
    for p in probs: print(p)
    gaps, est = g.gap_report()
    print("gaps:", " ".join(x or "-" for x in gaps))
    print(f"wrote {a.o}: {len(g.out)} main insts, {len(g.slow)} slow insts, {len(probs)} problems; est cycles/subtile {est/(2*a.unroll):.0f}")
```

```python
import sys, struct, math, argparse
from asmlib import I, check

KNAME = "standalone__gqa_softmax__near_ridge_kernel"
CSC = math.log2(math.e) / math.sqrt(128.0)
def f2u(x): return struct.unpack("<I", struct.pack("<f", x))[0]
THR = f2u(2.0 ** 20)
MF = "v_mfma_f32_16x16x32_bf16"

def O(q, db): return (q * 8 + db) * 4
def S(buf, q): return 128 + 32 * buf + 8 * q
def NEGM(q): return 192 + 4 * q
def X(q): return 208 + 4 * q
def KA(ds): return 224 + ds
def VA(db): return 228 + db
def KD(n): return 236 + n
def VD(p): return 240 + p
def L(q): return 242 + q
T = 246
def Q(q, ds): return (q * 4 + ds) * 4
def KF(kb2, ds): return 64 + (kb2 * 4 + ds) * 4
def VF(db): return 96 + 4 * db
ONES = 128
ST0, ST1 = 132, 133
NAGPR = 136
def vr(b, n): return f"v[{b}:{b+n-1}]"
def ar(b, n): return f"a[{b}:{b+n-1}]"

SQ, SK, SV, SO = 12, 16, 20, 24
S_W, S_KW, S_G = 28, 29, 30
S_T0, S_T1, S_T2 = 31, 32, 33
S_PB, S_CNT = 34, 35
S_C = 36
S_WSO, S_SI, S_STAMP = 38, 39, 40
SWS = 44
S_QL, S_QG = 56, 57
S_GV, S_PB2 = 58, 59
def srd(b): return f"s[{b}:{b+3}]"


class Item:
    def __init__(self, ins, early=0, late=10**6):
        self.ins = ins if isinstance(ins, list) else [ins]
        self.early, self.late = early, late
    @property
    def cost(self): return sum(i.cost for i in self.ins)


class Gen:
    def __init__(self, a):
        self.a = a
        self.out, self.slow, self.dma_log = [], [], []

    def e(self, t, note=None): self.out.append(I(t, note))

    def emit(self, ins):
        for i in ins:
            if hasattr(i, "dma"): self.dma_log.append(i.dma)
            self.out.append(i)

    def stamp(self):
        if not self.a.stamp: return []
        return [I(f"s_memtime s[{S_STAMP}:{S_STAMP+1}]"), I(f"s_memrealtime s[{S_STAMP+2}:{S_STAMP+3}]"),
                I("s_waitcnt lgkmcnt(0)"), I(f"s_lshl_b64 exec, 1, s{S_SI}"),
                I(f"v_accvgpr_write_b32 a{ST0}, s{S_STAMP}"), I(f"v_accvgpr_write_b32 a{ST1}, s{S_STAMP+2}"),
                I("s_mov_b64 exec, -1"), I(f"s_add_u32 s{S_SI}, s{S_SI}, 1")]

    def spin(self, n, lab):
        for t in (f"{lab}:", "s_memrealtime s[62:63]", "s_waitcnt lgkmcnt(0)", "s_sub_u32 s62, s62, s60", f"s_cmp_lt_u32 s62, {n}", f"s_cbranch_scc1 {lab}"):
            self.e(t)

    def slot(self, t): return t % self.a.unroll if self.a.unroll < 4 else t % 4

    def dma_tile(self, which, t, static=False):
        base = (0 if which == "K" else 65536)
        if static or self.a.unroll == 4:
            m0 = I(f"s_add_u32 m0, s{S_KW}, {base + (t % 4) * 16384}")
        else:
            m0 = I(f"s_add_u32 m0, s{S_PB if which == 'K' else S_PB2}, {base + (t % 2) * 16384}")
        r = []
        for n in range(4):
            vo = KD(n) if which == "K" else VD(n & 1)
            sr = SK if which == "K" else SV
            sg = S_G if which == "K" else S_GV
            ld = I(" ".join(f"buffer_load_dwordx4 v{vo}, {srd(sr)}, s{sg} offen offset:{n*1024} {self.a.kvmod} lds".split()),
                   f"DMA {which}{t}.{n}")
            ld.dma = f"{which}{t}"
            r.append(ld)
        return m0, r

    def vm_needed(self, names):
        last = max(i for i, n in enumerate(self.dma_log) if n in names)
        return len(self.dma_log) - 1 - last

    def qk_mfmas(self, buf, zero_c=False, qs=range(4)):
        r = []
        for q in qs:
            for kb2 in range(2):
                d = vr(S(buf, q) + 4 * kb2, 4)
                for ds in range(4):
                    c = d
                    if ds == 0: c = "0" if zero_c else vr(NEGM(q), 4)
                    r.append(I(f"{MF} {d}, {ar(KF(kb2,ds),4)}, {ar(Q(q,ds),4)}, {c}"))
        return r

    def pv_mfmas(self, buf, qmajor=False):
        o = [(db, q) for db in range(8) for q in range(4)]
        if qmajor: o = [(db, q) for q in range(4) for db in range(8)]
        return [I(f"{MF} {vr(O(q,db),4)}, {ar(VF(db),4)}, {vr(S(buf,q),4)}, {vr(O(q,db),4)}") for db, q in o]

    def sum_mfma(self, buf, q):
        return I(f"{MF} {vr(X(q),4)}, {ar(ONES,4)}, {vr(S(buf,q),4)}, 0")

    def k_reads(self, u):
        t, kb = u // 2, u % 2
        off = self.slot(t) * 16384 + kb * 8192
        return [I(f"ds_read_b128 {ar(KF(kb2,ds),4)}, v{KA(ds)} offset:{off + kb2*4096}") for kb2 in range(2) for ds in range(4)]

    def v_reads(self, u):
        t, kb = u // 2, u % 2
        off = self.slot(t) * 16384 + kb * 8192
        return [I(f"ds_read_b64_tr_b16 {ar(VF(db)+2*tt,2)}, v{VA(db)} offset:{off + tt*4096}") for db in range(8) for tt in range(2)]

    def sm_stream(self, buf):
        r = []
        def post(e):
            q, i = e // 8, e % 8
            b = S(buf, q)
            if q in self.a.vsum:
                if i == 1: r.append((e, I(f"v_add_f32 v{X(q)}, v{b}, v{b+1}")))
                elif i > 1: r.append((e, I(f"v_add_f32 v{X(q)}, v{X(q)}, v{b+i}")))
            if i % 2 == 1:
                r.append((e, I(f"v_cvt_pk_bf16_f32 v{b+i//2}, v{b+i-1}, v{b+i}")))
            if i == 7 and q not in self.a.vsum: r.append((e, ("SUM", buf, q)))
        for e in range(32):
            r.append((e, I(f"v_exp_f32 v{S(buf,0)+e}, v{S(buf,0)+e}")))
            if e >= 1: post(e - 1)
        post(31)
        return r

    def flat_stream(self, items):
        r = []
        for x in items:
            if isinstance(x, tuple):
                r += [I("s_nop 1"), self.sum_mfma(x[1], x[2])]
            else:
                if r and r[-1].is_trans and set(r[-1].dst) & set(x.src): r.append(I("s_nop 0"))
                r.append(x)
        return r

    def rowmax(self, b, t0, t1):
        return [I(f"v_max3_f32 v{t0}, v{b}, v{b+1}, v{b+2}"), I(f"v_max3_f32 v{t1}, v{b+3}, v{b+4}, v{b+5}"),
                I(f"v_max3_f32 v{t0}, v{t0}, v{b+6}, v{b+7}"), I(f"v_max_f32 v{t0}, v{t0}, v{t1}"),
                I(f"v_mov_b32 v{t1}, v{t0}"), I("s_nop 1"), I(f"v_permlane16_swap_b32 v{t0}, v{t1}"), I("s_nop 1"),
                I(f"v_max_f32 v{t0}, v{t0}, v{t1}"),
                I(f"v_mov_b32 v{t1}, v{t0}"), I("s_nop 1"), I(f"v_permlane32_swap_b32 v{t0}, v{t1}"), I("s_nop 1")]

    def maxfix_first(self, buf, qs):
        r = []
        ts = {q: (T + 2 * i, T + 2 * i + 1) for i, q in enumerate(qs)}
        def each(f):
            for q in qs: r.append(I(f(q, S(buf, q), *ts[q])))
        pad = [I("s_nop 1")] if len(qs) < 3 else []
        each(lambda q, b, t0, t1: f"v_max3_f32 v{t0}, v{b}, v{b+1}, v{b+2}")
        each(lambda q, b, t0, t1: f"v_max3_f32 v{t1}, v{b+3}, v{b+4}, v{b+5}")
        each(lambda q, b, t0, t1: f"v_max3_f32 v{t0}, v{t0}, v{b+6}, v{b+7}")
        each(lambda q, b, t0, t1: f"v_max_f32 v{t0}, v{t0}, v{t1}")
        for sw in ("v_permlane16_swap_b32", "v_permlane32_swap_b32"):
            each(lambda q, b, t0, t1: f"v_mov_b32 v{t1}, v{t0}")
            r += pad
            each(lambda q, b, t0, t1: f"{sw} v{t0}, v{t1}")
            r += pad
            each(lambda q, b, t0, t1: f"v_max_f32 v{t0}, v{t0}, v{t1}")
        for q in qs:
            t0 = ts[q][0]
            for i in range(4): r.append(I(f"v_sub_f32 v{NEGM(q)+i}, 0, v{t0}"))
            for i in range(8): r.append(I(f"v_sub_f32 v{S(buf,q)+i}, v{S(buf,q)+i}, v{t0}"))
        return r

    def slow_path(self, u, label, has_next, xored):
        cur, nxt = u % 2, (u + 1) % 2
        r = [I(f"{label}:")]
        x = [I(f"v_xor_b32 v{KA(ds)}, 0x8000, v{KA(ds)}") for ds in range(4)] if xored else []
        r += [I("s_nop 3")] + x + self.k_reads(u) + [I(i.text) for i in x]
        r.append(I("s_waitcnt lgkmcnt(0)"))
        r += self.qk_mfmas(cur)
        r.append(I("s_nop 7"))
        t0, t1, t2 = T, T + 1, T + 2
        for q in range(4):
            b = S(cur, q)
            r += self.rowmax(b, t0, t1)
            r.append(I(f"v_max3_f32 v{t0}, v{t0}, v{t1}, 0"))
            r.append(I(f"v_exp_f32 v{t2}, -v{t0}"))
            for i in range(4): r.append(I(f"v_sub_f32 v{NEGM(q)+i}, v{NEGM(q)+i}, v{t0}"))
            r.append(I(f"v_mul_f32 v{L(q)}, v{L(q)}, v{t2}"))
            if has_next:
                for i in range(8): r.append(I(f"v_sub_f32 v{S(nxt,q)+i}, v{S(nxt,q)+i}, v{t0}"))
            for i in range(32): r.append(I(f"v_mul_f32 v{O(q,0)+i}, v{O(q,0)+i}, v{t2}"))
            for i in range(8): r.append(I(f"v_sub_f32 v{b+i}, v{b+i}, v{t0}"))
        r += self.flat_stream([x for _, x in self.sm_stream(cur)])
        r.append(I("s_nop 7"))
        r.append(I(f"s_branch {label}_ret"))
        return r

    def schedule(self, mfmas, stream, others, tail=(), tail_lag=8, fin=(), nxt_stream=None):
        out = []
        M = list(mfmas); stream = list(stream); tail = list(tail)
        others = sorted(others, key=lambda x: (x.early, x.late))
        kind = lambda o: "s" if o.ins[0].is_salu else ("d" if o.ins[0].is_ds else ("m" if o.ins[0].is_vmem else "v"))
        pend = []
        last_sum_pos = None
        def states_since(idx): return sum(i.states for i in out[idx + 1:])
        g = -1
        def pop_markers():
            while stream and isinstance(stream[0], tuple):
                x = stream.pop(0); pend.append([self.sum_mfma(x[1], x[2]), len(out) - 1])
        def last_real():
            return out[-1]
        def ok(n):
            l = last_real()
            return not (l.is_trans and set(l.dst) & set(n.src))
        def take(k, overdue=False):
            for o in others:
                if kind(o) == k and (o.late <= g if overdue else o.early <= g):
                    others.remove(o); return o
            return None
        def small_v():
            pop_markers()
            o = take("v", True)
            if o: return o.ins
            if stream and stream[0].cost == 4 and ok(stream[0]): return [stream.pop(0)]
            if tail and not stream and not pend and (last_sum_pos is None or states_since(last_sum_pos) >= tail_lag):
                return [tail.pop(0)]
            o = take("v")
            if o: return o.ins
            return None
        while M or pend or any(isinstance(x, tuple) for x in stream):
            if pend and states_since(pend[0][1]) >= 2:
                out.append(pend.pop(0)[0]); last_sum_pos = len(out) - 1
            elif M:
                out.append(M.pop(0))
            elif pend:
                out.append(I("s_nop 1")); out.append(pend.pop(0)[0]); last_sum_pos = len(out) - 1
            else:
                while stream and not isinstance(stream[0], tuple): out.append(stream.pop(0))
                pop_markers(); continue
            g += 1
            is_last = not M and not pend and not any(isinstance(x, tuple) for x in stream)
            if is_last and fin: break
            o = take("s")
            if o: out += o.ins
            pop_markers()
            nxt_exp = bool(stream) and stream[0].cost == 8
            o = take("m", True) or take("d", True)
            if not o and not nxt_exp: o = take("d") or take("m")
            if o:
                out += o.ins
                if kind(o) == "d":
                    v = small_v()
                    if v: out += v
            elif nxt_exp:
                out.append(stream.pop(0))
            else:
                for _ in range(2):
                    v = small_v()
                    if v: out += v
            pop_markers()
        for x in stream: out.append(x)
        for o in others: out += o.ins
        if tail:
            if last_sum_pos is not None and states_since(last_sum_pos) < tail_lag:
                out.append(I(f"s_nop {tail_lag - states_since(last_sum_pos) - 1}"))
            out += tail
        out += list(fin)
        if fin and nxt_stream and not isinstance(nxt_stream[0], tuple):
            out.append(nxt_stream.pop(0))
        return out

    def insert_waits(self, seq, pending):
        out = []
        pend = list(pending)
        pend = [(p, -1) for p in pend]
        last_m = -1
        for x in seq:
            if x.op == "s_waitcnt" and "lgkmcnt" in x.text:
                import re
                k = int(re.search(r"lgkmcnt\((\d+)\)", x.text).group(1))
                pend = pend[len(pend) - k:] if 0 < k < len(pend) else ([] if k == 0 else pend)
            if x.is_mfma:
                need = [i for i, (p, _) in enumerate(pend) if p & set(x.src)]
                if need:
                    j = max(need)
                    pos = last_m + 1 if pend[j][1] <= last_m else len(out)
                    n = sum(1 for (p, q) in pend[j + 1:] if q < pos)
                    assert n <= 15
                    out.insert(pos, I(f"s_waitcnt lgkmcnt({n})"))
                    pend = [(p, q + (1 if q >= pos else 0)) for (p, q) in pend[j + 1:]]
                last_m = len(out)
            if x.is_ds: pend.append((set(x.dst), len(out)))
            out.append(x)
        return out, [p for p, _ in pend]

    def check_ins(self):
        return [I(f"v_max3_f32 v{T}, v{X(0)}, v{X(1)}, v{X(2)}"), I(f"v_max_f32 v{T}, v{T}, v{X(3)}"),
                I(f"v_cmp_lt_f32 vcc, {THR:#x}, v{T}")]

    def split_stream(self, buf):
        sm = self.sm_stream(buf)
        idx = next(i for i, (e, x) in enumerate(sm) if e == self.a.split and isinstance(x, I) and x.is_trans)
        return [x for _, x in sm[:idx]], [x for _, x in sm[idx:]]

    def phaseA(self, u, rest, has_qk=True, extra=(), xored=False, tag=""):
        a = self.a
        nxt = (u + 1) % 2
        vreads = self.v_reads(u)
        label = f"L_slow_{u}{tag}"
        others = [Item(v, g, g + a.v_slack) for v, g in zip(vreads, a.vplan)]
        others += list(extra)
        fin = [I(f"s_cbranch_vccnz {label}"), I(f"{label}_ret:")]
        if has_qk:
            first, nrest = self.split_stream(nxt)
            o = self.schedule(self.qk_mfmas(nxt), rest, others, tail=self.check_ins(), fin=fin, nxt_stream=first)
        else:
            first, nrest = [], []
            o = list(vreads[:8])
            fl = self.flat_stream(rest)
            o += fl[:4] + vreads[8:] + fl[4:] + [I("s_nop 7")] + self.check_ins() + fin
        self.slow += self.slow_path(u, label, has_qk, xored)
        return o, first, nrest

    def phaseB(self, u, stream, has_kreads=True, barrier=None, extra=(), last=False):
        a = self.a
        cur = u % 2
        others = []
        if barrier is not None:
            others.append(Item([I(f"s_waitcnt vmcnt({barrier})")], a.bar_gap, a.bar_gap))
            others.append(Item([I("s_barrier")], a.bar_gap + 1, a.bar_gap + 1))
        if has_kreads:
            others += [Item(k, g, g + a.k_slack) for k, g in zip(self.k_reads(u + 2), a.kplan)]
        for q in range(4):
            others.append(Item(I(f"v_add_f32 v{L(q)}, v{L(q)}, v{X(q)}"), 0, 9 + 3 * q))
        others += list(extra)
        return self.schedule(self.pv_mfmas(cur, qmajor=last), stream, others)

    def dma_items(self, which, t, post=(), static=False):
        a = self.a
        m0, lds = self.dma_tile(which, t, static)
        gs = [a.d_early + n * a.d_step for n in range(4)]
        its = [Item(m0, max(gs[0] - 2, 0), gs[0] - 1)]
        for n in range(4): its.append(Item(lds[n], gs[n], gs[n] + a.d_slack))
        for p in post: its.append(Item(p, gs[3] + a.d_slack + 1, gs[3] + a.d_slack + 3))
        return its

    def prologue(self):
        e, a = self.e, self.a
        if a.stamp:
            e("s_memtime s[48:49]"); e("s_memrealtime s[50:51]")
        if a.spin_end or a.spin_loop or a.spin_epi: e("s_memrealtime s[60:61]")
        e("s_cmp_ge_u32 s2, 256"); e("s_cbranch_scc1 L_end")
        e("s_load_dwordx4 s[4:7], s[0:1], 0"); e("s_load_dwordx4 s[8:11], s[0:1], 16")
        if a.stamp: e(f"s_load_dwordx2 s[{SWS}:{SWS+1}], s[0:1], 40")
        vl, vg, vt, vu = T, T + 1, T + 2, T + 3
        if a.cpf:
            e("s_getpc_b64 s[62:63]")
            e("L_pc0:")
            e(f"v_lshlrev_b32 v{T+9}, 7, v0")
            e(f"v_cmp_gt_u32 vcc, L_slow_0-L_pc0+128, v{T+9}")
            e("s_and_saveexec_b64 s[60:61], vcc")
            e("s_cbranch_execz L_cpf_skip")
            e(f"global_load_dword v{T+8}, v{T+9}, s[62:63]")
            e("L_cpf_skip:")
            e("s_mov_b64 exec, s[60:61]")
        e(f"v_lshrrev_b32 v{vt}, 6, v0")
        e(f"v_and_b32 v{vl}, 63, v0", "lane")
        e(f"v_readfirstlane_b32 s{S_W}, v{vt}")
        e(f"s_and_b32 s{S_T0}, s2, 7"); e(f"s_lshr_b32 s{S_T1}, s2, 3")
        e(f"s_lshl_b32 s{S_T0}, s{S_T0}, 4"); e(f"s_lshr_b32 s{S_T2}, s{S_T1}, 1")
        e(f"s_add_u32 s{S_T0}, s{S_T0}, s{S_T2}", "kv head index")
        e(f"s_and_b32 s{S_T1}, s{S_T1}, 1"); e(f"s_lshl_b32 s{S_T2}, s{S_T0}, 1")
        e(f"s_add_u32 s{S_T1}, s{S_T1}, s{S_T2}", "q head index")
        e(f"s_lshl_b32 s{S_T0}, s{S_T0}, 18"); e(f"s_lshl_b32 s{S_T1}, s{S_T1}, 16")
        e(f"s_lshl_b32 s{S_KW}, s{S_W}, 12")
        e(f"v_lshrrev_b32 v{vg}, 4, v{vl}", "g = lane>>4")
        e(f"v_and_b32 v{vt}, 15, v{vl}", "i = lane&15")
        e(f"v_xor_b32 v{vu}, v{vt}, v{vg}")
        e(f"v_lshlrev_b32 v{vu}, 4, v{vu}")
        e(f"v_lshl_add_u32 v{KD(0)}, v{vg}, 8, v{vu}")
        e(f"v_add_u32 v{KD(0)}, s{S_KW}, v{KD(0)}")
        for n in range(1, 4): e(f"v_xor_b32 v{KD(n)}, {n<<6:#x}, v{KD(0)}")
        e(f"s_lshl_b32 s{S_QL}, s{S_W}, 14")
        e(f"s_cmp_lt_u32 s{S_W}, 2"); e(f"s_cselect_b32 s{S_QG}, 2, 1"); e(f"s_lshl_b32 s{S_QG}, s{S_QG}, 16")
        e(f"s_add_u32 s{S_QL}, s{S_QL}, s{S_QG}", "q lds base")
        e(f"s_mul_i32 s{S_QG}, s{S_W}, 12288")
        e("s_waitcnt lgkmcnt(0)")
        if a.stamp:
            e("s_memtime s[52:53]"); e("s_memrealtime s[54:55]"); e("s_waitcnt lgkmcnt(0)")
        def mksrd(sr, p, off, n):
            e(f"s_add_u32 s{sr}, s{p}, s{off}"); e(f"s_addc_u32 s{sr+1}, s{p+1}, 0")
            e(f"s_mov_b32 s{sr+2}, {n}"); e(f"s_mov_b32 s{sr+3}, 0x20000")
        def vd_setup():
            e(f"v_lshlrev_b32 v{vu}, 1, v{vg}")
            e(f"v_xor_b32 v{vu}, v{vt}, v{vu}")
            e(f"v_lshlrev_b32 v{vu}, 4, v{vu}")
            e(f"v_lshl_add_u32 v{VD(0)}, v{vg}, 8, v{vu}")
            e(f"v_add_u32 v{VD(0)}, s{S_KW}, v{VD(0)}")
            e(f"v_xor_b32 v{VD(1)}, 0x80, v{VD(0)}")
        def qgrp(grp):
            r = [I(f"s_add_u32 m0, s{S_QL}, {grp*4096}"), I(f"s_add_u32 s{S_T2}, s{S_QG}, {grp*4096}")]
            for n in range(4):
                ld = I(" ".join(f"buffer_load_dwordx4 v{KD(n)}, {srd(SQ)}, s{S_T2} offen offset:{n*1024} {a.qmod} lds".split()))
                ld.dma = f"Q{grp}"
                r.append(ld)
            return r
        def tile(which, t):
            m0, lds = self.dma_tile(which, t, static=True)
            return [m0, I(f"s_mov_b32 s{S_G if which == 'K' else S_GV}, {t*16384}")] + lds
        QA = X(3)
        def setup():
            if a.stamp:
                e(f"s_mov_b32 s{SWS+2}, 0x1000000"); e(f"s_mov_b32 s{SWS+3}, 0x20000")
                e(f"s_lshl_b32 s{S_WSO}, s2, 2"); e(f"s_add_u32 s{S_WSO}, s{S_WSO}, s{S_W}"); e(f"s_lshl_b32 s{S_WSO}, s{S_WSO}, 9")
                e(f"v_accvgpr_write_b32 a{ST0}, 0"); e(f"v_accvgpr_write_b32 a{ST1}, 0"); e(f"s_mov_b32 s{S_SI}, 2")
                e("s_mov_b64 exec, 1"); e(f"v_accvgpr_write_b32 a{ST0}, s48"); e(f"v_accvgpr_write_b32 a{ST1}, s50")
                e("s_mov_b64 exec, 2"); e(f"v_accvgpr_write_b32 a{ST0}, s52"); e(f"v_accvgpr_write_b32 a{ST1}, s54")
                e("s_mov_b64 exec, -1")
                self.emit(self.stamp())
            e(f"v_xor_b32 v{vu}, v{vt}, v{vg}")
            e(f"v_lshlrev_b32 v{vu}, 4, v{vu}")
            e(f"v_lshl_add_u32 v{KA(0)}, v{vt}, 8, v{vu}")
            for ds in range(1, 4): e(f"v_xor_b32 v{KA(ds)}, {ds<<6:#x}, v{KA(0)}")
            e(f"v_lshrrev_b32 v{vu}, 2, v{vl}", "key = lane>>2")
            e(f"v_lshlrev_b32 v{VA(0)}, 8, v{vu}")
            e(f"v_and_b32 v{vu}, 7, v{vu}")
            e(f"v_lshl_add_u32 v{VA(0)}, v{vu}, 5, v{VA(0)}")
            e(f"v_and_b32 v{vu}, 3, v{vl}")
            e(f"v_lshl_add_u32 v{VA(0)}, v{vu}, 3, v{VA(0)}")
            e(f"v_add_u32 v{VA(0)}, 0x10000, v{VA(0)}")
            for db in range(1, 8): e(f"v_xor_b32 v{VA(db)}, {db<<5:#x}, v{VA(0)}")
            for ds in range(4): e(f"v_add_u32 v{QA+ds}, s{S_QL}, v{KA(ds)}")
            e(f"s_mov_b32 s{S_C}, {f2u(CSC):#x}"); e(f"s_mov_b32 s{S_C+1}, {f2u(CSC):#x}")
            for q in range(4): e(f"v_mov_b32 v{L(q)}, 0")
            e(f"v_mov_b32 v{vu}, 0x3f803f80")
            for i in range(4): e(f"v_accvgpr_write_b32 a{ONES+i}, v{vu}")
            for i in range(128): e(f"v_mov_b32 v{i}, 0")
            if a.unroll == 2:
                e(f"s_mov_b32 s{S_PB}, s{S_KW}"); e(f"s_add_u32 s{S_PB2}, s{S_KW}, 0x8000")
            e(f"s_mov_b32 s{S_CNT}, {16 // a.unroll}")
        RAW = S(1, 0); TMP = S(1, 2)
        def qproc(q, early=(), mid=()):
            e(f"s_waitcnt vmcnt({self.vm_needed([f'Q{q}'])})")
            for ds in range(4): e(f"ds_read_b128 {vr(RAW+4*ds,4)}, v{QA+ds} offset:{q*4096}")
            self.emit(early)
            for ds in range(4):
                if ds == 2: self.emit(mid)
                e(f"s_waitcnt lgkmcnt({3-ds})")
                for k in range(4):
                    e(f"v_lshlrev_b32 v{TMP+2*k}, 16, v{RAW+4*ds+k}")
                    e(f"v_and_b32 v{TMP+2*k+1}, 0xffff0000, v{RAW+4*ds+k}")
                for k in range(4): e(f"v_pk_mul_f32 {vr(TMP+2*k,2)}, {vr(TMP+2*k,2)}, s[{S_C}:{S_C+1}]")
                for k in range(4): e(f"v_cvt_pk_bf16_f32 v{TMP+8+k}, v{TMP+2*k}, v{TMP+2*k+1}")
                for k in range(4): e(f"v_accvgpr_write_b32 a{Q(q,ds)+k}, v{TMP+8+k}")
        sm = self.sm_stream(0)
        pos = lambda e0: next(i for i, (ee, x) in enumerate(sm) if ee == e0 and isinstance(x, I) and x.is_trans)
        part = lambda a0, a1: self.flat_stream([x if isinstance(x, tuple) else I(x.text) for _, x in sm[a0:a1]])
        idx = pos(a.split)
        qk = lambda *qs: self.emit([I("s_nop 0")] + self.qk_mfmas(0, zero_c=True, qs=qs))

        def variantA():
            mksrd(SQ, 4, S_T1, 65536)
            self.emit(qgrp(0)); self.emit(qgrp(1))
            mksrd(SK, 6, S_T0, 262144)
            mksrd(SV, 8, S_T0, 262144); mksrd(SO, 10, S_T1, 65536)
            vd_setup(); setup()
            queue = [tile("K", 0), qgrp(2), qgrp(3), tile("V", 0), tile("K", 1), tile("K", 2), tile("V", 1)]
            flat = []
            for grp in queue:
                lds = [x for x in grp if x.is_vmem]; hd = [x for x in grp if not x.is_vmem]
                for n, x in enumerate(lds): flat.append((hd if n == 0 else []) + [x])
            def take(n):
                r = []
                for _ in range(n):
                    if flat: r += flat.pop(0)
                return r
            self.emit(take(a.ahead))
            self.emit(self.stamp())
            h = a.mid
            qproc(0, take(4 - h), take(h))
            qproc(1, take(4 - h), take(h))
            self.emit(self.stamp())
            e(f"s_waitcnt vmcnt({self.vm_needed(['K0'])})")
            self.emit(take(4 - h))
            e("s_barrier")
            self.emit(self.k_reads(0))
            e("s_waitcnt lgkmcnt(0)")
            qk(0, 1)
            self.emit(take(h))
            e("s_nop 7")
            self.emit(self.maxfix_first(0, (0, 1)))
            self.emit(part(0, pos(16)))
            self.emit(self.stamp())
            qproc(2, take(4 - h), take(h))
            qk(2)
            e("s_nop 7")
            self.emit(self.maxfix_first(0, (2,)))
            self.emit(part(pos(16), idx))
            self.emit(self.stamp())
            qproc(3, take(4 - h), take(h))
            qk(3)
            self.emit(self.k_reads(1))
            self.emit(self.maxfix_first(0, (3,)))
            e(f"s_waitcnt vmcnt({self.vm_needed(['V0'])}) lgkmcnt(0)")
            self.emit(take(99))
            e("s_barrier", "V0 visible; Q staging slots free")
            self.emit(self.stamp())

        def variantB():
            mksrd(SK, 6, S_T0, 262144)
            self.emit(tile("K", 0))
            mksrd(SV, 8, S_T0, 262144)
            vd_setup()
            self.emit(tile("V", 0))
            if a.b_k1: self.emit(tile("K", 1))
            mksrd(SQ, 4, S_T1, 65536); mksrd(SO, 10, S_T1, 65536)
            setup()
            e(f"s_waitcnt vmcnt({a.b_wait})")
            for g in range(4): self.emit(qgrp(g))
            if not a.b_k1: self.emit(tile("K", 1))
            self.emit(self.stamp())
            e(f"s_waitcnt vmcnt({self.vm_needed(['K0'])})")
            e("s_barrier")
            self.emit(self.k_reads(0))
            qproc(0)
            qk(0)
            self.emit(tile("V", 1))
            self.emit(self.stamp())
            qproc(1)
            qk(1)
            self.emit(self.maxfix_first(0, (0,)))
            self.emit(tile("K", 2))
            self.emit(part(0, pos(8)))
            self.emit(self.stamp())
            qproc(2)
            qk(2)
            self.emit(self.maxfix_first(0, (1,)))
            self.emit(part(pos(8), pos(16)))
            self.emit(self.maxfix_first(0, (2,)))
            self.emit(part(pos(16), idx))
            self.emit(self.stamp())
            qproc(3)
            qk(3)
            self.emit(self.k_reads(1))
            e(f"s_waitcnt vmcnt({self.vm_needed(['V0','K1'])})")
            e("s_barrier", "V0,K1 visible; Q staging slots free")
            self.emit(tile("V", 2))
            self.emit(self.maxfix_first(0, (3,)))
            self.emit(tile("K", 3))
            e("s_waitcnt lgkmcnt(0)")
            self.emit(self.stamp())

        self.alt = None
        if a.ab:
            e(f"s_bitcmp1_b32 s2, {a.ab_bit}")
            e("s_cbranch_scc0 L_varA")
            nh = len(self.out)
            variantB()
            e("s_branch L_loop")
            self.alt = (nh, len(self.out))
            self.dma_log = []
            e("L_varA:")
        variantA()
        self.first = [I("L_first:"), I(f"s_waitcnt vmcnt({self.vm_needed(['K1'])})"), I("s_barrier")] + tile("K", 3) + [I("s_branch L_first_ret")]
        if a.cpf2:
            self.first += [I(x) for x in ("L_last:", f"v_mbcnt_lo_u32_b32 v{T+9}, -1, 0", f"v_mbcnt_hi_u32_b32 v{T+9}, -1, v{T+9}",
                           f"v_lshlrev_b32 v{T+9}, 6, v{T+9}", f"v_min_u32 v{T+9}, L_end-L_tail, v{T+9}", f"v_add_u32 v{T+9}, L_tail-L_pc0, v{T+9}",
                           f"global_load_dword v{T+8}, v{T+9}, s[62:63]", "s_branch L_last_ret")]
        return [x for _, x in sm[idx:]]

    def epilogue(self):
        e, a = self.e, self.a
        self.emit(self.stamp())
        if a.spin_epi: self.spin(a.spin_epi, "L_spin3")
        inv = [T, T + 2, T + 4, T + 6]
        va = T + 8
        for q in a.vsum:
            for sw in ("v_permlane16_swap_b32", "v_permlane32_swap_b32"):
                e(f"v_mov_b32 v{T}, v{L(q)}"); e("s_nop 1"); e(f"{sw} v{T}, v{L(q)}"); e("s_nop 1")
                e(f"v_add_f32 v{L(q)}, v{L(q)}, v{T}")
        for q in range(4): e(f"v_rcp_f32 v{inv[q]}, v{L(q)}")
        stg = [0, 16384, 32768, 65536]
        vw, vrd, vo = T + 1, T + 3, T + 5
        e(f"v_mbcnt_lo_u32_b32 v{va}, -1, 0"); e(f"v_mbcnt_hi_u32_b32 v{va}, -1, v{va}")
        e(f"v_lshlrev_b32 v{vo}, 4, v{va}", "global voffset = lane*16")
        e(f"v_and_b32 v{va+1}, 15, v{va}"); e(f"v_lshrrev_b32 v{va}, 4, v{va}")
        e(f"v_lshlrev_b32 v{vw}, 3, v{va}")
        e(f"v_lshlrev_b32 v{vrd}, 4, v{va+1}")
        e(f"v_xor_b32 v{vw}, v{vw}, v{vrd}")
        e(f"v_lshl_add_u32 v{vw}, v{va+1}, 8, v{vw}")
        e(f"v_add_u32 v{vw}, s{S_KW}, v{vw}")
        WA = X(0)
        for db in range(8): e(f"v_xor_b32 v{WA+db}, {db*32:#x}, v{vw}")
        e(f"s_lshl_b32 s{S_T0}, s{S_W}, 14")
        e("s_waitcnt vmcnt(0)", "own (out-of-range) DMA writes have landed")
        PB = S(0, 0)
        def pack(q):
            for db in range(8):
                b = O(q, db); pb = PB + 16 * (q % 2) + 2 * db
                for i in (0, 2): e(f"v_pk_mul_f32 {vr(b+i,2)}, {vr(b+i,2)}, {vr(inv[q],2)} op_sel_hi:[1,0]")
                for i in range(2): e(f"v_cvt_pk_bf16_f32 v{pb+i}, v{b+2*i}, v{b+2*i+1}")
                off = stg[q]
                if off >= 65536:
                    e(f"v_add_u32 v{WA+db}, {off}, v{WA+db}"); off = 0
                e(f"ds_write_b64 v{WA+db}, {vr(pb,2)} offset:{off}")
        def rd(q):
            off = stg[q]
            for j in range(4):
                if off >= 65536: e(f"v_add_u32 v{KD(j)}, {off}, v{KD(j)}")
                e(f"ds_read_b128 {vr(PB+32+16*(q%2)+4*j,4)}, v{KD(j)} offset:{(off % 65536) + j*1024}")
        def st(q):
            for j in range(4):
                e(f"s_waitcnt lgkmcnt({3-j if q == 3 else 8 + 3 - j})")
                e(" ".join(f"buffer_store_dwordx4 {vr(PB+32+16*(q%2)+4*j,4)}, v{vo}, {srd(SO)}, s{S_T0} offen offset:{j*1024} {a.omod}".split()))
            if q < 3: e(f"s_add_u32 s{S_T0}, s{S_T0}, 4096")
        pack(0)
        for q in range(4):
            rd(q)
            if q < 3: pack(q + 1)
            st(q)
        self.emit(self.stamp())
        if a.stamp:
            e("s_waitcnt vmcnt(0)")
            self.emit(self.stamp())
            e(f"v_mbcnt_lo_u32_b32 v0, -1, 0"); e(f"v_mbcnt_hi_u32_b32 v0, -1, v0"); e("v_lshlrev_b32 v0, 2, v0")
            e(f"buffer_store_dword a{ST0}, v0, {srd(SWS)}, s{S_WSO} offen")
            e(f"buffer_store_dword a{ST1}, v0, {srd(SWS)}, s{S_WSO} offen offset:256")
        if a.spin_end:
            e("s_waitcnt vmcnt(0)")
            self.spin(a.spin_end, "L_spin2")
        e("L_end:")
        e("s_endpgm")

    def body(self, rest):
        e, a = self.e, self.a
        U = 2 * a.unroll
        txt = lambda r: [x if isinstance(x, tuple) else x.text for x in r]
        cp = lambda r: [x if isinstance(x, tuple) else I(x.text) for x in r]
        rest0 = txt(rest)
        inc = lambda: I(f"s_add_u32 s{S_G}, s{S_G}, 16384")
        seq = []
        for u in range(U):
            t = u // 2
            exA, exB = [], []
            pre = lambda r: Item(I(f"s_add_u32 s{r}, s{r}, 16384"), 2, a.d_early - 1)
            if u % 2 == 1:
                exB += [pre(S_G)] + self.dma_items("K", t + 4, [I(f"s_xor_b32 s{S_PB}, s{S_PB}, 0x8000")] if (a.unroll == 2 and u == 3) else [])
            else:
                exB += [pre(S_GV)] + self.dma_items("V", t + 2, [I(f"s_xor_b32 s{S_PB2}, s{S_PB2}, 0x8000")] if (a.unroll == 2 and u == 2) else [])
            xored = False
            if a.unroll == 2:
                if u == 2:
                    exA += [Item(I(f"v_xor_b32 v{KA(ds)}, 0x8000, v{KA(ds)}"), 0, 31) for ds in range(4)]
                xored = u >= 2
                if u == 3:
                    for db in range(8):
                        g = a.vplan[2 * db + 1] + a.v_slack + 1
                        if g <= 31: exA.append(Item(I(f"v_xor_b32 v{VA(db)}, 0x8000, v{VA(db)}"), g, 99))
                        else: exB.append(Item(I(f"v_xor_b32 v{VA(db)}, 0x8000, v{VA(db)}"), 0, 31))
            if u == 0:
                exA.append(Item(I(f"s_cmp_eq_u32 s{S_CNT}, {16 // a.unroll}"), a.first_gap - 1, a.first_gap - 1))
                exA.append(Item([I("s_cbranch_scc1 L_first"), I("L_first_ret:")], a.first_gap, a.first_gap))
            if u == a.cpf2_u and a.cpf2:
                exA.append(Item(I(f"s_cmp_eq_u32 s{S_CNT}, 1"), 9, 9))
                exA.append(Item([I("s_cbranch_scc1 L_last"), I("L_last_ret:")], 10, 10))
            if u == U - 2:
                exA.append(Item(I(f"s_sub_u32 s{S_CNT}, s{S_CNT}, 1"), 4, 31))
                exB.append(Item(I(f"s_cmp_eq_u32 s{S_CNT}, 0"), 31, 31))
            o, first, rest = self.phaseA(u, rest, extra=exA, xored=xored)
            seq += o
            seq += self.phaseB(u, first, barrier=(8 if u % 2 == 1 else None), extra=exB)
            if u == U - 2:
                seq.append(I("s_cbranch_scc1 L_tail"))
                rest_tail = cp(rest)
            if a.stamp and u % a.stamp_every == a.stamp_every - 1: seq += self.stamp()
        seq.append(I("s_branch L_loop"))
        assert txt(rest) == rest0
        _, pend = self.insert_waits(seq, [])
        seq2, pend2 = self.insert_waits(seq, pend)
        assert pend == pend2
        if a.spin_loop: self.spin(a.spin_loop, "L_spin1")
        if a.align: e(f".p2align {a.align}")
        e("L_loop:")
        n0 = len(self.out)
        self.emit(seq2)
        n1 = len(self.out)
        n_exit = next(i for i in range(n0, n1) if "L_tail" in self.out[i].text) + 1
        e("L_tail:")
        o, _, _ = self.phaseA(U - 1, rest_tail, has_qk=False, xored=(a.unroll == 2), tag="_t")
        o = [I("s_waitcnt lgkmcnt(0)")] + o + self.phaseB(U - 1, [], has_kreads=False, last=True)
        o, _ = self.insert_waits(o, [])
        self.emit(o)
        self.check_seq = lambda: self.out[:n1] + self.out[n0:n_exit] + self.out[n1:]
        self.loop_range = (n0, n1)

    def build(self):
        rest = self.prologue()
        n0 = len(self.out)
        self.body(rest)
        if self.a.drop:
            pats = self.a.drop.split(",")
            l0, l1 = self.loop_range
            keep = lambda i: not any(i.text.startswith(p.replace("~", " ")) for p in pats) or i.text == "s_waitcnt lgkmcnt(0)"
            self.out = self.out[:l0] + [i for i in self.out[l0:l1] if keep(i)] + self.out[l1:]
            self.nocheck2 = True
        self.epilogue()
        seq = self.check_seq()
        if getattr(self, "nocheck", False):
            return "", []
        if getattr(self, "nocheck2", False):
            probs = []
        elif self.alt:
            nh, nb = self.alt
            probs = check(seq[:nh] + seq[nb:], "mainA", verbose=False)
            probs += check(seq[:nb] + seq[self.loop_range[0]:], "mainB", verbose=False)
        else:
            probs = check(seq, "main", verbose=False)
        probs += check(self.slow, "slow", verbose=False)
        hdr = open("standalone__gqa_softmax__near_ridge.s.ref").read().split("; Override")[0]
        txt = hdr + "; @launch grid=(256,1,1) block=(256,1,1) lds=163840\n"
        txt += '.amdgcn_target "amdgcn-amd-amdhsa--gfx950"\n.text\n'
        txt += f".globl {KNAME}\n.p2align 8\n.type {KNAME},@function\n{KNAME}:\n"
        txt += "\n".join(str(i) for i in self.out) + "\n"
        txt += "\n".join(str(i) for i in self.first + self.slow) + "\n"
        txt += f""".section .rodata,"a"
.p2align 6
.amdhsa_kernel {KNAME}
  .amdhsa_next_free_vgpr {256 + NAGPR}
  .amdhsa_next_free_sgpr 64
  .amdhsa_accum_offset 256
  .amdhsa_group_segment_fixed_size 0
  .amdhsa_kernarg_size 48
  .amdhsa_user_sgpr_count 2
  .amdhsa_user_sgpr_kernarg_segment_ptr 1
  .amdhsa_system_sgpr_workgroup_id_x 1
.end_amdhsa_kernel
"""
        return txt, probs

    def gap_report(self):
        n0, n1 = self.loop_range
        gaps = []; cur = None
        for i in self.out[n0:n1]:
            if i.is_label: continue
            if i.is_mfma:
                if cur is not None: gaps.append(cur)
                cur = ""
            elif cur is not None:
                cur += "E" if i.is_trans else ("v" if i.is_valu else ("d" if i.is_ds else ("M" if i.is_vmem else "s")))
        gaps.append(cur)
        def t(gp):
            tm = 4; prev = "m"
            for c in gp:
                if c == "s": tm += 4
                else:
                    tm = max(tm, 8)
                    if c in "dM" and prev in "vE": tm += 4
                    if c in "vE" and prev == "M": tm += 4
                    tm += 8 if c == "E" else 4
                prev = c
            if prev in "dM": tm += 4
            return max(16, tm)
        return gaps, sum(map(t, gaps))


def get_args(argv=None):
    p = argparse.ArgumentParser()
    p.add_argument("-o", default="k2.s")
    p.add_argument("--stamp", action="store_true")
    p.add_argument("--split", type=int, default=18)
    p.add_argument("--bar_gap", type=int, default=0)
    p.add_argument("--vplan", default="2,5,8,11,14,17,20,22,24,25,26,27,28,29,30,31")
    p.add_argument("--kplan", default="3,6,9,12,15,18,21,24")
    p.add_argument("--v_slack", type=int, default=1)
    p.add_argument("--k_slack", type=int, default=2)
    p.add_argument("--d_early", type=int, default=7)
    p.add_argument("--d_step", type=int, default=6)
    p.add_argument("--d_slack", type=int, default=1)
    p.add_argument("--dma_in", default="B")
    p.add_argument("--unroll", type=int, default=2)
    p.add_argument("--align", type=int, default=6)
    p.add_argument("--drop", default="")
    p.add_argument("--cpf2", type=int, default=0)
    p.add_argument("--cpf2_u", type=int, default=1)
    p.add_argument("--cpf", type=int, default=1)
    p.add_argument("--ahead", type=int, default=6)
    p.add_argument("--mid", type=int, default=0)
    p.add_argument("--stamp_every", type=int, default=4)
    p.add_argument("--vsum", default="")
    p.add_argument("--first_gap", type=int, default=26)
    p.add_argument("--spin_end", type=int, default=0)
    p.add_argument("--spin_loop", type=int, default=0)
    p.add_argument("--spin_epi", type=int, default=0)
    p.add_argument("--ab", type=int, default=0)
    p.add_argument("--ab_bit", type=int, default=3)
    p.add_argument("--b_k1", type=int, default=1)
    p.add_argument("--b_wait", type=int, default=0)
    p.add_argument("--epi_split", type=int, default=0)
    p.add_argument("--epi_mul", type=int, default=0)
    p.add_argument("--kvmod", default="")
    p.add_argument("--qmod", default="")
    p.add_argument("--omod", default="nt")
    a = p.parse_args(argv)
    a.vplan = [int(x) for x in a.vplan.split(",")]
    a.vsum = [int(x) for x in a.vsum.split(",") if x]
    a.kplan = [int(x) for x in a.kplan.split(",")]
    return a


if __name__ == "__main__":
    a = get_args()
    g = Gen(a)
    txt, probs = g.build()
    open(a.o, "w").write(txt)
    for p in probs: print(p)
    gaps, est = g.gap_report()
    print("gaps:", " ".join(x or "-" for x in gaps))
    print(f"wrote {a.o}: {len(g.out)} main insts, {len(g.slow)} slow insts, {len(probs)} problems; est cycles/subtile {est/(2*a.unroll):.0f}")
```

```python
import sys, struct, math, argparse
from asmlib import I, check

KNAME = "standalone__gqa_softmax__near_ridge_kernel"
CSC = math.log2(math.e) / math.sqrt(128.0)
def f2u(x): return struct.unpack("<I", struct.pack("<f", x))[0]
THR = f2u(2.0 ** 20)
MF = "v_mfma_f32_16x16x32_bf16"

def O(q, db): return (q * 8 + db) * 4
def S(buf, q): return 128 + 32 * buf + 8 * q
def NEGM(q): return 192 + 4 * q
def X(q): return 208 + 4 * q
def KA(ds): return 224 + ds
def VA(db): return 228 + db
def KD(n): return 236 + n
def VD(p): return 240 + p
def L(q): return 242 + q
T = 246
def Q(q, ds): return (q * 4 + ds) * 4
def KF(kb2, ds): return 64 + (kb2 * 4 + ds) * 4
def VF(db): return 96 + 4 * db
ONES = 128
ST0, ST1 = 132, 133
NAGPR = 232
def VFB(u): return {28: 136, 29: 168, 30: 200}.get(u, 96)
def vr(b, n): return f"v[{b}:{b+n-1}]"
def ar(b, n): return f"a[{b}:{b+n-1}]"

SQ, SK, SV, SO = 12, 16, 20, 24
S_W, S_KW, S_G = 28, 29, 30
S_T0, S_T1, S_T2 = 31, 32, 33
S_PB, S_CNT = 34, 35
S_C = 36
S_WSO, S_SI, S_STAMP = 38, 39, 40
SWS = 44
S_QL, S_QG = 56, 57
S_GV, S_PB2 = 58, 59
def srd(b): return f"s[{b}:{b+3}]"


class Item:
    def __init__(self, ins, early=0, late=10**6):
        self.ins = ins if isinstance(ins, list) else [ins]
        self.early, self.late = early, late
    @property
    def cost(self): return sum(i.cost for i in self.ins)


class Gen:
    def __init__(self, a):
        self.a = a
        self.out, self.slow, self.dma_log = [], [], []

    def e(self, t, note=None): self.out.append(I(t, note))

    def emit(self, ins):
        for i in ins:
            if hasattr(i, "dma"): self.dma_log.append(i.dma)
            self.out.append(i)

    def stamp(self):
        if not self.a.stamp: return []
        return [I(f"s_memtime s[{S_STAMP}:{S_STAMP+1}]"), I(f"s_memrealtime s[{S_STAMP+2}:{S_STAMP+3}]"),
                I("s_waitcnt lgkmcnt(0)"), I(f"s_lshl_b64 exec, 1, s{S_SI}"),
                I(f"v_accvgpr_write_b32 a{ST0}, s{S_STAMP}"), I(f"v_accvgpr_write_b32 a{ST1}, s{S_STAMP+2}"),
                I("s_mov_b64 exec, -1"), I(f"s_add_u32 s{S_SI}, s{S_SI}, 1")]

    def spin(self, n, lab):
        for t in (f"{lab}:", "s_memrealtime s[62:63]", "s_waitcnt lgkmcnt(0)", "s_sub_u32 s62, s62, s60", f"s_cmp_lt_u32 s62, {n}", f"s_cbranch_scc1 {lab}"):
            self.e(t)

    def slot(self, t): return t % self.a.unroll if self.a.unroll < 4 else t % 4

    def dma_tile(self, which, t, static=False):
        base = (0 if which == "K" else 65536)
        if static or self.a.unroll == 4:
            m0 = I(f"s_add_u32 m0, s{S_KW}, {base + (t % 4) * 16384}")
        else:
            m0 = I(f"s_add_u32 m0, s{S_PB if which == 'K' else S_PB2}, {base + (t % 2) * 16384}")
        r = []
        for n in range(4):
            vo = KD(n) if which == "K" else VD(n & 1)
            sr = SK if which == "K" else SV
            sg = S_G if which == "K" else S_GV
            ld = I(" ".join(f"buffer_load_dwordx4 v{vo}, {srd(sr)}, s{sg} offen offset:{n*1024} {self.a.kvmod} lds".split()),
                   f"DMA {which}{t}.{n}")
            ld.dma = f"{which}{t}"
            r.append(ld)
        return m0, r

    def vm_needed(self, names):
        last = max(i for i, n in enumerate(self.dma_log) if n in names)
        return len(self.dma_log) - 1 - last

    def qk_mfmas(self, buf, zero_c=False, qs=range(4)):
        r = []
        for q in qs:
            for kb2 in range(2):
                d = vr(S(buf, q) + 4 * kb2, 4)
                for ds in range(4):
                    c = d
                    if ds == 0: c = "0" if zero_c else vr(NEGM(q), 4)
                    r.append(I(f"{MF} {d}, {ar(KF(kb2,ds),4)}, {ar(Q(q,ds),4)}, {c}"))
        return r

    def pv_mfmas(self, buf, qmajor=False, qs=(0, 1, 2, 3), vb=96):
        o = [(db, q) for db in range(8) for q in qs]
        if qmajor: o = [(db, q) for q in qs for db in range(8)]
        return [I(f"{MF} {vr(O(q,db),4)}, {ar(vb+4*db,4)}, {vr(S(buf,q),4)}, {vr(O(q,db),4)}") for db, q in o]

    def sum_mfma(self, buf, q):
        return I(f"{MF} {vr(X(q),4)}, {ar(ONES,4)}, {vr(S(buf,q),4)}, 0")

    def k_reads(self, u):
        t, kb = u // 2, u % 2
        off = self.slot(t) * 16384 + kb * 8192
        return [I(f"ds_read_b128 {ar(KF(kb2,ds),4)}, v{KA(ds)} offset:{off + kb2*4096}") for kb2 in range(2) for ds in range(4)]

    def v_reads(self, u, vb=96):
        t, kb = u // 2, u % 2
        off = self.slot(t) * 16384 + kb * 8192
        return [I(f"ds_read_b64_tr_b16 {ar(vb+4*db+2*tt,2)}, v{VA(db)} offset:{off + tt*4096}") for db in range(8) for tt in range(2)]

    def sm_stream(self, buf, qs=(0, 1, 2, 3)):
        r = []
        def post(e):
            q, i = e // 8, e % 8
            b = S(buf, q)
            if q in self.a.vsum:
                if i == 1: r.append((e, I(f"v_add_f32 v{X(q)}, v{b}, v{b+1}")))
                elif i > 1: r.append((e, I(f"v_add_f32 v{X(q)}, v{X(q)}, v{b+i}")))
            if i % 2 == 1:
                r.append((e, I(f"v_cvt_pk_bf16_f32 v{b+i//2}, v{b+i-1}, v{b+i}")))
            if i == 7 and q not in self.a.vsum: r.append((e, ("SUM", buf, q)))
        e0, e1 = 8 * qs[0], 8 * qs[-1] + 8
        for e in range(e0, e1):
            r.append((e, I(f"v_exp_f32 v{S(buf,0)+e}, v{S(buf,0)+e}")))
            if e > e0: post(e - 1)
        post(e1 - 1)
        return r

    def flat_stream(self, items):
        r = []
        for x in items:
            if isinstance(x, tuple):
                r += [I("s_nop 1"), self.sum_mfma(x[1], x[2])]
            else:
                if r and r[-1].is_trans and set(r[-1].dst) & set(x.src): r.append(I("s_nop 0"))
                r.append(x)
        return r

    def rowmax(self, b, t0, t1):
        return [I(f"v_max3_f32 v{t0}, v{b}, v{b+1}, v{b+2}"), I(f"v_max3_f32 v{t1}, v{b+3}, v{b+4}, v{b+5}"),
                I(f"v_max3_f32 v{t0}, v{t0}, v{b+6}, v{b+7}"), I(f"v_max_f32 v{t0}, v{t0}, v{t1}"),
                I(f"v_mov_b32 v{t1}, v{t0}"), I("s_nop 1"), I(f"v_permlane16_swap_b32 v{t0}, v{t1}"), I("s_nop 1"),
                I(f"v_max_f32 v{t0}, v{t0}, v{t1}"),
                I(f"v_mov_b32 v{t1}, v{t0}"), I("s_nop 1"), I(f"v_permlane32_swap_b32 v{t0}, v{t1}"), I("s_nop 1")]

    def maxfix_first(self, buf, qs):
        r = []
        ts = {q: (T + 2 * i, T + 2 * i + 1) for i, q in enumerate(qs)}
        def each(f):
            for q in qs: r.append(I(f(q, S(buf, q), *ts[q])))
        pad = [I("s_nop 1")] if len(qs) < 3 else []
        each(lambda q, b, t0, t1: f"v_max3_f32 v{t0}, v{b}, v{b+1}, v{b+2}")
        each(lambda q, b, t0, t1: f"v_max3_f32 v{t1}, v{b+3}, v{b+4}, v{b+5}")
        each(lambda q, b, t0, t1: f"v_max3_f32 v{t0}, v{t0}, v{b+6}, v{b+7}")
        each(lambda q, b, t0, t1: f"v_max_f32 v{t0}, v{t0}, v{t1}")
        for sw in ("v_permlane16_swap_b32", "v_permlane32_swap_b32"):
            each(lambda q, b, t0, t1: f"v_mov_b32 v{t1}, v{t0}")
            r += pad
            each(lambda q, b, t0, t1: f"{sw} v{t0}, v{t1}")
            r += pad
            each(lambda q, b, t0, t1: f"v_max_f32 v{t0}, v{t0}, v{t1}")
        for q in qs:
            t0 = ts[q][0]
            for i in range(4): r.append(I(f"v_sub_f32 v{NEGM(q)+i}, 0, v{t0}"))
            for i in range(8): r.append(I(f"v_sub_f32 v{S(buf,q)+i}, v{S(buf,q)+i}, v{t0}"))
        return r

    def slow_path(self, u, label, has_next, xored, qs=(0, 1, 2, 3), reload_k=None):
        cur, nxt = u % 2, (u + 1) % 2
        r = [I(f"{label}:")]
        x = [I(f"v_xor_b32 v{KA(ds)}, 0x8000, v{KA(ds)}") for ds in range(4)] if xored else []
        r += [I("s_nop 3")] + x + self.k_reads(u) + [I(i.text) for i in x]
        r.append(I("s_waitcnt lgkmcnt(0)"))
        r += self.qk_mfmas(cur, qs=qs)
        r.append(I("s_nop 7"))
        if reload_k is not None: r += self.k_reads(reload_k)
        t0, t1, t2 = T, T + 1, T + 2
        for q in qs:
            b = S(cur, q)
            r += self.rowmax(b, t0, t1)
            r.append(I(f"v_max3_f32 v{t0}, v{t0}, v{t1}, 0"))
            r.append(I(f"v_exp_f32 v{t2}, -v{t0}"))
            for i in range(4): r.append(I(f"v_sub_f32 v{NEGM(q)+i}, v{NEGM(q)+i}, v{t0}"))
            r.append(I(f"v_mul_f32 v{L(q)}, v{L(q)}, v{t2}"))
            if has_next:
                for i in range(8): r.append(I(f"v_sub_f32 v{S(nxt,q)+i}, v{S(nxt,q)+i}, v{t0}"))
            for i in range(32): r.append(I(f"v_mul_f32 v{O(q,0)+i}, v{O(q,0)+i}, v{t2}"))
            for i in range(8): r.append(I(f"v_sub_f32 v{b+i}, v{b+i}, v{t0}"))
        r += self.flat_stream([x for _, x in self.sm_stream(cur, qs)])
        r.append(I("s_nop 7"))
        if reload_k is not None: r.append(I("s_waitcnt lgkmcnt(0)"))
        r.append(I(f"s_branch {label}_ret"))
        return r

    def schedule(self, mfmas, stream, others, tail=(), tail_lag=8, fin=(), nxt_stream=None):
        out = []
        M = list(mfmas); stream = list(stream); tail = list(tail)
        others = sorted(others, key=lambda x: (x.early, x.late))
        kind = lambda o: "s" if o.ins[0].is_salu else ("d" if o.ins[0].is_ds else ("m" if o.ins[0].is_vmem else "v"))
        pend = []
        last_sum_pos = None
        def states_since(idx): return sum(i.states for i in out[idx + 1:])
        g = -1
        def pop_markers():
            while stream and isinstance(stream[0], tuple):
                x = stream.pop(0); pend.append([self.sum_mfma(x[1], x[2]), len(out) - 1])
        def last_real():
            return out[-1]
        def ok(n):
            l = last_real()
            return not (l.is_trans and set(l.dst) & set(n.src))
        def take(k, overdue=False):
            for o in others:
                if kind(o) == k and (o.late <= g if overdue else o.early <= g):
                    others.remove(o); return o
            return None
        def small_v():
            pop_markers()
            o = take("v", True)
            if o: return o.ins
            if stream and stream[0].cost == 4 and ok(stream[0]): return [stream.pop(0)]
            if tail and g >= 2 and not stream and not pend and (last_sum_pos is None or states_since(last_sum_pos) >= tail_lag):
                return [tail.pop(0)]
            o = take("v")
            if o: return o.ins
            return None
        while M or pend or any(isinstance(x, tuple) for x in stream):
            if pend and states_since(pend[0][1]) >= 2:
                out.append(pend.pop(0)[0]); last_sum_pos = len(out) - 1
            elif M:
                out.append(M.pop(0))
            elif pend:
                out.append(I("s_nop 1")); out.append(pend.pop(0)[0]); last_sum_pos = len(out) - 1
            else:
                while stream and not isinstance(stream[0], tuple):
                    if not ok(stream[0]): out.append(I("s_nop 0"))
                    out.append(stream.pop(0))
                pop_markers(); continue
            g += 1
            is_last = not M and not pend and not any(isinstance(x, tuple) for x in stream)
            if is_last and fin: break
            o = take("s")
            if o: out += o.ins
            pop_markers()
            nxt_exp = bool(stream) and stream[0].cost == 8
            o = take("m", True) or take("d", True)
            if not o and not nxt_exp: o = take("d") or take("m")
            if o:
                out += o.ins
                if kind(o) == "d":
                    v = small_v()
                    if v: out += v
            elif nxt_exp:
                out.append(stream.pop(0))
            else:
                for _ in range(2):
                    v = small_v()
                    if v: out += v
            pop_markers()
        for x in stream:
            if not ok(x): out.append(I("s_nop 0"))
            out.append(x)
        for o in others: out += o.ins
        if tail:
            if last_sum_pos is not None and states_since(last_sum_pos) < tail_lag:
                out.append(I(f"s_nop {tail_lag - states_since(last_sum_pos) - 1}"))
            out += tail
        out += list(fin)
        if fin and nxt_stream and not isinstance(nxt_stream[0], tuple):
            out.append(nxt_stream.pop(0))
        return out

    def insert_waits(self, seq, pending):
        out = []
        pend = list(pending)
        pend = [(p, -1) for p in pend]
        last_m = -1
        for x in seq:
            if x.op == "s_waitcnt" and "lgkmcnt" in x.text:
                import re
                k = int(re.search(r"lgkmcnt\((\d+)\)", x.text).group(1))
                pend = pend[len(pend) - k:] if 0 < k < len(pend) else ([] if k == 0 else pend)
            if x.is_mfma or (x.is_vmem and "store" in x.op):
                need = [i for i, (p, _) in enumerate(pend) if p & set(x.src)]
                if need:
                    j = max(need)
                    pos = last_m + 1 if (pend[j][1] <= last_m and x.is_mfma) else len(out)
                    n = sum(1 for (p, q) in pend[j + 1:] if q < pos)
                    n = min(n, 15)
                    out.insert(pos, I(f"s_waitcnt lgkmcnt({n})"))
                    pend = [(p, q + (1 if q >= pos else 0)) for (p, q) in pend[j + 1:]]
                if x.is_mfma: last_m = len(out)
            if x.is_ds: pend.append((set(x.dst), len(out)))
            out.append(x)
        return out, [p for p, _ in pend]

    def check_ins(self, qs=(0, 1, 2, 3)):
        if len(qs) == 2:
            return [I(f"v_max_f32 v{T}, v{X(qs[0])}, v{X(qs[1])}"), I(f"v_cmp_lt_f32 vcc, {THR:#x}, v{T}")]
        return [I(f"v_max3_f32 v{T}, v{X(0)}, v{X(1)}, v{X(2)}"), I(f"v_max_f32 v{T}, v{T}, v{X(3)}"),
                I(f"v_cmp_lt_f32 vcc, {THR:#x}, v{T}")]

    def split_stream(self, buf):
        sm = self.sm_stream(buf)
        idx = next(i for i, (e, x) in enumerate(sm) if e == self.a.split and isinstance(x, I) and x.is_trans)
        return [x for _, x in sm[:idx]], [x for _, x in sm[idx:]]

    def phaseA(self, u, rest, has_qk=True, extra=(), xored=False, tag=""):
        a = self.a
        nxt = (u + 1) % 2
        vreads = self.v_reads(u)
        label = f"L_slow_{u}{tag}"
        others = [Item(v, g, g + a.v_slack) for v, g in zip(vreads, a.vplan)]
        others += list(extra)
        fin = [I(f"s_cbranch_vccnz {label}"), I(f"{label}_ret:")]
        if has_qk:
            first, nrest = self.split_stream(nxt)
            o = self.schedule(self.qk_mfmas(nxt), rest, others, tail=self.check_ins(), fin=fin, nxt_stream=first)
        else:
            first, nrest = [], []
            o = list(vreads[:8])
            fl = self.flat_stream(rest)
            o += fl[:4] + vreads[8:] + fl[4:] + [I("s_nop 7")] + self.check_ins() + fin
        self.slow += self.slow_path(u, label, has_qk, xored)
        return o, first, nrest

    def phaseB(self, u, stream, has_kreads=True, barrier=None, extra=(), last=False):
        a = self.a
        cur = u % 2
        others = []
        if barrier is not None:
            others.append(Item([I(f"s_waitcnt vmcnt({barrier})")], a.bar_gap, a.bar_gap))
            others.append(Item([I("s_barrier")], a.bar_gap + 1, a.bar_gap + 1))
        if has_kreads:
            others += [Item(k, g, g + a.k_slack) for k, g in zip(self.k_reads(u + 2), a.kplan)]
        for q in range(4):
            others.append(Item(I(f"v_add_f32 v{L(q)}, v{L(q)}, v{X(q)}"), 0, 9 + 3 * q))
        others += list(extra)
        return self.schedule(self.pv_mfmas(cur, qmajor=last), stream, others)

    def hsplit(self, buf, qs):
        sm = self.sm_stream(buf, qs)
        idx = next(i for i, (e, x) in enumerate(sm) if e == 8 * qs[0] + self.a.hsplit and isinstance(x, I) and x.is_trans)
        return [x for _, x in sm[:idx]], [x for _, x in sm[idx:]]

    def site(self, u, qs, has_next, reload_k=None):
        label = f"L_slow_{u}_h{qs[0]}"
        self.slow += self.slow_path(u, label, has_next, False, qs, reload_k)
        return [I(f"s_cbranch_vccnz {label}"), I(f"{label}_ret:")]

    def phaseAh(self, u, qs, rest, qk=None, nxt_first=None, has_next=True, extra=(), vread=True):
        a = self.a
        v = self.v_reads(u, VFB(u)) if vread else []
        fin = self.site(u, qs, has_next)
        if qk:
            others = [Item([v[2 * db], v[2 * db + 1]], max(0, g - a.hv_early), g + a.hv_slack) for db, g in enumerate(a.hvplan) if v] + list(extra)
            return self.schedule(self.qk_mfmas(qk[0] % 2, qs=qk[1]), rest, others, tail=self.check_ins(qs), fin=fin, nxt_stream=nxt_first)
        return self.flat_stream(rest) + [I("s_nop 7")] + self.check_ins(qs) + [I("s_nop 3")] + fin

    def phaseBh(self, u, qs, stream, kread=None, barrier=None, extra=(), last=False, chk=None):
        a = self.a
        others = []
        if barrier is not None:
            others.append(Item([I(f"s_waitcnt vmcnt({barrier})")], 0, 0))
            others.append(Item([I("s_barrier")], 1, 1))
        if kread is not None:
            others += [Item(k, max(0, g - a.hk_early), g + a.hk_slack) for k, g in zip(self.k_reads(kread), a.hkplan)]
        for i, q in enumerate(qs):
            others.append(Item(I(f"v_add_f32 v{L(q)}, v{L(q)}, v{X(q)}"), 0, 5 + 3 * i))
        others += list(extra)
        return self.schedule(self.pv_mfmas(u % 2, qmajor=last, qs=qs, vb=VFB(u)), stream, others)

    INV = {0: 192, 1: 196, 2: 198, 3: 192}
    VO = T + 5
    WA = 208
    def epi_setup(self):
        va, vw, vrd = T + 8, T + 3, T + 4
        r = [f"v_mbcnt_lo_u32_b32 v{va}, -1, 0", f"v_mbcnt_hi_u32_b32 v{va}, -1, v{va}",
             f"v_lshlrev_b32 v{self.VO}, 4, v{va}", f"v_and_b32 v{va+1}, 15, v{va}", f"v_lshrrev_b32 v{va}, 4, v{va}",
             f"v_lshlrev_b32 v{vw}, 3, v{va}", f"v_lshlrev_b32 v{vrd}, 4, v{va+1}", f"v_xor_b32 v{vw}, v{vw}, v{vrd}",
             f"v_lshl_add_u32 v{vw}, v{va+1}, 8, v{vw}", f"v_add_u32 v{vw}, s{S_KW}, v{vw}"]
        r2 = [f"v_xor_b32 v{self.WA+db}, {db*32:#x}, v{vw}" for db in range(8)]
        r3 = [f"s_lshl_b32 s{S_T0}, s{S_W}, 14", f"s_add_u32 s{S_T1}, s{S_T0}, 4096"]
        return [I(x) for x in r], [I(x) for x in r2], [I(x) for x in r3]
    def epi_pack(self, q):
        r = []
        for db in range(8):
            b = O(q, db)
            for i in (0, 2): r.append(I(f"v_pk_mul_f32 {vr(b+i,2)}, {vr(b+i,2)}, {vr(self.INV[q],2)} op_sel_hi:[1,0]"))
            for i in range(2): r.append(I(f"v_cvt_pk_bf16_f32 v{b+i}, v{b+2*i}, v{b+2*i+1}"))
            r.append(I(f"ds_write_b64 v{self.WA+db}, {vr(b,2)} offset:{(q % 2) * 16384}"))
        return r
    def epi_buf(self, q, j): return S(q % 2, 0) + 4 * j
    def epi_read(self, q):
        return [I(f"ds_read_b128 {vr(self.epi_buf(q,j),4)}, v{KD(j)} offset:{(q % 2) * 16384 + j*1024}") for j in range(4)]
    def epi_store(self, q):
        return [I(" ".join(f"buffer_store_dwordx4 {vr(self.epi_buf(q,j),4)}, v{self.VO}, {srd(SO)}, s{S_T0 + q % 2} offen offset:{j*1024} {self.a.omod}".split()))
                for j in range(4)]

    def tail_split(self, rest28):
        a = self.a
        H0, H1 = (0, 1), (2, 3)
        o = []
        rest = []
        su1, su2, su3 = self.epi_setup()
        for u in (28, 29, 30):
            first, nrest = self.hsplit((u + 1) % 2, H0)
            ex = [Item(x, 1 + i // 2, 1 + i // 2) for i, x in enumerate(su1)] + [Item(x, 8 + i, 8 + i) for i, x in enumerate(su3)] if u == 28 else []
            o += self.phaseAh(u, H0, rest, qk=(u + 1, H0), nxt_first=first, extra=ex)
            o += self.phaseBh(u, H0, first, kread=(u + 2 if u < 30 else 29), barrier=(0 if u == 29 else None))
            rest = nrest
        r28 = list(rest28)
        o += self.phaseAh(31, H0, rest, qk=(29, H1), nxt_first=r28, has_next=False)
        o += self.phaseBh(31, H0, r28, kread=30)
        o += self.stamp()
        pk0 = self.epi_pack(0)
        o += [I(f"v_rcp_f32 v{self.INV[q]}, v{L(q)}") for q in H0] + su2 + self.check_ins(H1)
        o += pk0[:10] + self.site(28, H1, True, reload_k=30) + pk0[10:] + self.epi_read(0) + self.epi_pack(1)
        st0, st1 = self.epi_store(0), self.epi_store(1)
        o += st0[:a.st_flat] + self.epi_read(1)
        stores = st0[a.st_flat:] + st1
        slots = [(0, g) for g in a.st_b28] + [(1, g) for g in a.st_a29] + [(2, g) for g in a.st_b29]
        sp = [[], [], []]
        for x, (ph, g) in zip(stores, slots): sp[ph].append(Item(x, g, g + 1))
        assert len(stores) <= len(slots)
        first, rest = self.hsplit(29 % 2, H1)
        o += self.phaseBh(28, H1, first, extra=sp[0])
        for k, u in enumerate((29, 30)):
            first, nrest = self.hsplit((u + 1) % 2, H1)
            o += self.phaseAh(u, H1, rest, qk=(u + 1, H1), nxt_first=first, extra=(sp[1] if k == 0 else []), vread=False)
            if u == 30:
                first, nrest = first + nrest[:a.last_more], nrest[a.last_more:]
            o += self.phaseBh(u, H1, first, kread=(31 if u == 29 else None), extra=(sp[2] if k == 0 else []))
            rest = nrest
        o += self.phaseAh(31, H1, rest, qk=None, has_next=False, vread=False)
        o += self.phaseBh(31, H1, [], last=True)
        o += self.stamp()
        o += [I(f"v_rcp_f32 v{self.INV[q]}, v{L(q)}") for q in H1]
        o += [I(f"v_add_u32 v{self.WA+db}, 0x10000, v{self.WA+db}") for db in range(8)]
        o += [I(f"v_add_u32 v{KD(j)}, 0x10000, v{KD(j)}") for j in range(4)]
        o += [I(f"s_add_u32 s{S_T0}, s{S_T0}, 8192"), I(f"s_add_u32 s{S_T1}, s{S_T1}, 8192")]
        o += self.epi_pack(2) + self.epi_read(2) + self.epi_pack(3) + self.epi_store(2) + self.epi_read(3) + self.epi_store(3)
        return o

    def dma_items(self, which, t, post=(), static=False):
        a = self.a
        m0, lds = self.dma_tile(which, t, static)
        gs = [a.d_early + n * a.d_step for n in range(4)]
        its = [Item(m0, max(gs[0] - 2, 0), gs[0] - 1)]
        for n in range(4): its.append(Item(lds[n], gs[n], gs[n] + a.d_slack))
        for p in post: its.append(Item(p, gs[3] + a.d_slack + 1, gs[3] + a.d_slack + 3))
        return its

    def prologue(self):
        e, a = self.e, self.a
        if a.stamp:
            e("s_memtime s[48:49]"); e("s_memrealtime s[50:51]")
        if a.spin_end or a.spin_loop or a.spin_epi: e("s_memrealtime s[60:61]")
        e("s_cmp_ge_u32 s2, 256"); e("s_cbranch_scc1 L_end")
        e("s_load_dwordx4 s[4:7], s[0:1], 0"); e("s_load_dwordx4 s[8:11], s[0:1], 16")
        if a.stamp: e(f"s_load_dwordx2 s[{SWS}:{SWS+1}], s[0:1], 40")
        vl, vg, vt, vu = T, T + 1, T + 2, T + 3
        if a.cpf:
            e("s_getpc_b64 s[62:63]")
            e("L_pc0:")
            e(f"v_lshlrev_b32 v{T+9}, 7, v0")
            e(f"v_cmp_gt_u32 vcc, L_slow_0-L_pc0+128, v{T+9}")
            e("s_and_saveexec_b64 s[60:61], vcc")
            e("s_cbranch_execz L_cpf_skip")
            e(f"global_load_dword v{T+8}, v{T+9}, s[62:63]")
            e("L_cpf_skip:")
            e("s_mov_b64 exec, s[60:61]")
        e(f"v_lshrrev_b32 v{vt}, 6, v0")
        e(f"v_and_b32 v{vl}, 63, v0", "lane")
        e(f"v_readfirstlane_b32 s{S_W}, v{vt}")
        e(f"s_and_b32 s{S_T0}, s2, 7"); e(f"s_lshr_b32 s{S_T1}, s2, 3")
        e(f"s_lshl_b32 s{S_T0}, s{S_T0}, 4"); e(f"s_lshr_b32 s{S_T2}, s{S_T1}, 1")
        e(f"s_add_u32 s{S_T0}, s{S_T0}, s{S_T2}", "kv head index")
        e(f"s_and_b32 s{S_T1}, s{S_T1}, 1"); e(f"s_lshl_b32 s{S_T2}, s{S_T0}, 1")
        e(f"s_add_u32 s{S_T1}, s{S_T1}, s{S_T2}", "q head index")
        e(f"s_lshl_b32 s{S_T0}, s{S_T0}, 18"); e(f"s_lshl_b32 s{S_T1}, s{S_T1}, 16")
        e(f"s_lshl_b32 s{S_KW}, s{S_W}, 12")
        e(f"v_lshrrev_b32 v{vg}, 4, v{vl}", "g = lane>>4")
        e(f"v_and_b32 v{vt}, 15, v{vl}", "i = lane&15")
        e(f"v_xor_b32 v{vu}, v{vt}, v{vg}")
        e(f"v_lshlrev_b32 v{vu}, 4, v{vu}")
        e(f"v_lshl_add_u32 v{KD(0)}, v{vg}, 8, v{vu}")
        e(f"v_add_u32 v{KD(0)}, s{S_KW}, v{KD(0)}")
        for n in range(1, 4): e(f"v_xor_b32 v{KD(n)}, {n<<6:#x}, v{KD(0)}")
        e(f"s_lshl_b32 s{S_QL}, s{S_W}, 14")
        e(f"s_cmp_lt_u32 s{S_W}, 2"); e(f"s_cselect_b32 s{S_QG}, 2, 1"); e(f"s_lshl_b32 s{S_QG}, s{S_QG}, 16")
        e(f"s_add_u32 s{S_QL}, s{S_QL}, s{S_QG}", "q lds base")
        e(f"s_mul_i32 s{S_QG}, s{S_W}, 12288")
        e("s_waitcnt lgkmcnt(0)")
        if a.stamp:
            e("s_memtime s[52:53]"); e("s_memrealtime s[54:55]"); e("s_waitcnt lgkmcnt(0)")
        def mksrd(sr, p, off, n):
            e(f"s_add_u32 s{sr}, s{p}, s{off}"); e(f"s_addc_u32 s{sr+1}, s{p+1}, 0")
            e(f"s_mov_b32 s{sr+2}, {n}"); e(f"s_mov_b32 s{sr+3}, 0x20000")
        def vd_setup():
            e(f"v_lshlrev_b32 v{vu}, 1, v{vg}")
            e(f"v_xor_b32 v{vu}, v{vt}, v{vu}")
            e(f"v_lshlrev_b32 v{vu}, 4, v{vu}")
            e(f"v_lshl_add_u32 v{VD(0)}, v{vg}, 8, v{vu}")
            e(f"v_add_u32 v{VD(0)}, s{S_KW}, v{VD(0)}")
            e(f"v_xor_b32 v{VD(1)}, 0x80, v{VD(0)}")
        def qgrp(grp):
            r = [I(f"s_add_u32 m0, s{S_QL}, {grp*4096}"), I(f"s_add_u32 s{S_T2}, s{S_QG}, {grp*4096}")]
            for n in range(4):
                ld = I(" ".join(f"buffer_load_dwordx4 v{KD(n)}, {srd(SQ)}, s{S_T2} offen offset:{n*1024} {a.qmod} lds".split()))
                ld.dma = f"Q{grp}"
                r.append(ld)
            return r
        def tile(which, t):
            m0, lds = self.dma_tile(which, t, static=True)
            return [m0, I(f"s_mov_b32 s{S_G if which == 'K' else S_GV}, {t*16384}")] + lds
        QA = X(3)
        def setup():
            if a.stamp:
                e(f"s_mov_b32 s{SWS+2}, 0x1000000"); e(f"s_mov_b32 s{SWS+3}, 0x20000")
                e(f"s_lshl_b32 s{S_WSO}, s2, 2"); e(f"s_add_u32 s{S_WSO}, s{S_WSO}, s{S_W}"); e(f"s_lshl_b32 s{S_WSO}, s{S_WSO}, 9")
                e(f"v_accvgpr_write_b32 a{ST0}, 0"); e(f"v_accvgpr_write_b32 a{ST1}, 0"); e(f"s_mov_b32 s{S_SI}, 2")
                e("s_mov_b64 exec, 1"); e(f"v_accvgpr_write_b32 a{ST0}, s48"); e(f"v_accvgpr_write_b32 a{ST1}, s50")
                e("s_mov_b64 exec, 2"); e(f"v_accvgpr_write_b32 a{ST0}, s52"); e(f"v_accvgpr_write_b32 a{ST1}, s54")
                e("s_mov_b64 exec, -1")
                self.emit(self.stamp())
            e(f"v_xor_b32 v{vu}, v{vt}, v{vg}")
            e(f"v_lshlrev_b32 v{vu}, 4, v{vu}")
            e(f"v_lshl_add_u32 v{KA(0)}, v{vt}, 8, v{vu}")
            for ds in range(1, 4): e(f"v_xor_b32 v{KA(ds)}, {ds<<6:#x}, v{KA(0)}")
            e(f"v_lshrrev_b32 v{vu}, 2, v{vl}", "key = lane>>2")
            e(f"v_lshlrev_b32 v{VA(0)}, 8, v{vu}")
            e(f"v_and_b32 v{vu}, 7, v{vu}")
            e(f"v_lshl_add_u32 v{VA(0)}, v{vu}, 5, v{VA(0)}")
            e(f"v_and_b32 v{vu}, 3, v{vl}")
            e(f"v_lshl_add_u32 v{VA(0)}, v{vu}, 3, v{VA(0)}")
            e(f"v_add_u32 v{VA(0)}, 0x10000, v{VA(0)}")
            for db in range(1, 8): e(f"v_xor_b32 v{VA(db)}, {db<<5:#x}, v{VA(0)}")
            for ds in range(4): e(f"v_add_u32 v{QA+ds}, s{S_QL}, v{KA(ds)}")
            e(f"s_mov_b32 s{S_C}, {f2u(CSC):#x}"); e(f"s_mov_b32 s{S_C+1}, {f2u(CSC):#x}")
            for q in range(4): e(f"v_mov_b32 v{L(q)}, 0")
            e(f"v_mov_b32 v{vu}, 0x3f803f80")
            for i in range(4): e(f"v_accvgpr_write_b32 a{ONES+i}, v{vu}")
            for i in range(128): e(f"v_mov_b32 v{i}, 0")
            if a.unroll == 2:
                e(f"s_mov_b32 s{S_PB}, s{S_KW}"); e(f"s_add_u32 s{S_PB2}, s{S_KW}, 0x8000")
            e(f"s_mov_b32 s{S_CNT}, {16 // a.unroll}")
        RAW = S(1, 0); TMP = S(1, 2)
        def qproc(q, early=(), mid=()):
            e(f"s_waitcnt vmcnt({self.vm_needed([f'Q{q}'])})")
            for ds in range(4): e(f"ds_read_b128 {vr(RAW+4*ds,4)}, v{QA+ds} offset:{q*4096}")
            self.emit(early)
            for ds in range(4):
                if ds == 2: self.emit(mid)
                e(f"s_waitcnt lgkmcnt({3-ds})")
                for k in range(4):
                    e(f"v_lshlrev_b32 v{TMP+2*k}, 16, v{RAW+4*ds+k}")
                    e(f"v_and_b32 v{TMP+2*k+1}, 0xffff0000, v{RAW+4*ds+k}")
                for k in range(4): e(f"v_pk_mul_f32 {vr(TMP+2*k,2)}, {vr(TMP+2*k,2)}, s[{S_C}:{S_C+1}]")
                for k in range(4): e(f"v_cvt_pk_bf16_f32 v{TMP+8+k}, v{TMP+2*k}, v{TMP+2*k+1}")
                for k in range(4): e(f"v_accvgpr_write_b32 a{Q(q,ds)+k}, v{TMP+8+k}")
        sm = self.sm_stream(0)
        pos = lambda e0: next(i for i, (ee, x) in enumerate(sm) if ee == e0 and isinstance(x, I) and x.is_trans)
        part = lambda a0, a1: self.flat_stream([x if isinstance(x, tuple) else I(x.text) for _, x in sm[a0:a1]])
        idx = pos(a.split)
        qk = lambda *qs: self.emit([I("s_nop 0")] + self.qk_mfmas(0, zero_c=True, qs=qs))

        def variantA():
            mksrd(SQ, 4, S_T1, 65536)
            self.emit(qgrp(0)); self.emit(qgrp(1))
            mksrd(SK, 6, S_T0, 262144)
            mksrd(SV, 8, S_T0, 262144); mksrd(SO, 10, S_T1, 65536)
            vd_setup(); setup()
            queue = [tile("K", 0), qgrp(2), qgrp(3), tile("V", 0), tile("K", 1), tile("K", 2), tile("V", 1)]
            flat = []
            for grp in queue:
                lds = [x for x in grp if x.is_vmem]; hd = [x for x in grp if not x.is_vmem]
                for n, x in enumerate(lds): flat.append((hd if n == 0 else []) + [x])
            def take(n):
                r = []
                for _ in range(n):
                    if flat: r += flat.pop(0)
                return r
            self.emit(take(a.ahead))
            self.emit(self.stamp())
            h = a.mid
            qproc(0, take(4 - h), take(h))
            qproc(1, take(4 - h), take(h))
            self.emit(self.stamp())
            e(f"s_waitcnt vmcnt({self.vm_needed(['K0'])})")
            self.emit(take(4 - h))
            e("s_barrier")
            self.emit(self.k_reads(0))
            e("s_waitcnt lgkmcnt(0)")
            qk(0, 1)
            self.emit(take(h))
            e("s_nop 7")
            self.emit(self.maxfix_first(0, (0, 1)))
            self.emit(part(0, pos(16)))
            self.emit(self.stamp())
            qproc(2, take(4 - h), take(h))
            qk(2)
            e("s_nop 7")
            self.emit(self.maxfix_first(0, (2,)))
            self.emit(part(pos(16), idx))
            self.emit(self.stamp())
            qproc(3, take(4 - h), take(h))
            qk(3)
            self.emit(self.k_reads(1))
            self.emit(self.maxfix_first(0, (3,)))
            e(f"s_waitcnt vmcnt({self.vm_needed(['V0'])}) lgkmcnt(0)")
            self.emit(take(99))
            e("s_barrier", "V0 visible; Q staging slots free")
            self.emit(self.stamp())

        def variantB():
            mksrd(SK, 6, S_T0, 262144)
            self.emit(tile("K", 0))
            mksrd(SV, 8, S_T0, 262144)
            vd_setup()
            self.emit(tile("V", 0))
            if a.b_k1: self.emit(tile("K", 1))
            mksrd(SQ, 4, S_T1, 65536); mksrd(SO, 10, S_T1, 65536)
            setup()
            e(f"s_waitcnt vmcnt({a.b_wait})")
            for g in range(4): self.emit(qgrp(g))
            if not a.b_k1: self.emit(tile("K", 1))
            self.emit(self.stamp())
            e(f"s_waitcnt vmcnt({self.vm_needed(['K0'])})")
            e("s_barrier")
            self.emit(self.k_reads(0))
            qproc(0)
            qk(0)
            self.emit(tile("V", 1))
            self.emit(self.stamp())
            qproc(1)
            qk(1)
            self.emit(self.maxfix_first(0, (0,)))
            self.emit(tile("K", 2))
            self.emit(part(0, pos(8)))
            self.emit(self.stamp())
            qproc(2)
            qk(2)
            self.emit(self.maxfix_first(0, (1,)))
            self.emit(part(pos(8), pos(16)))
            self.emit(self.maxfix_first(0, (2,)))
            self.emit(part(pos(16), idx))
            self.emit(self.stamp())
            qproc(3)
            qk(3)
            self.emit(self.k_reads(1))
            e(f"s_waitcnt vmcnt({self.vm_needed(['V0','K1'])})")
            e("s_barrier", "V0,K1 visible; Q staging slots free")
            self.emit(tile("V", 2))
            self.emit(self.maxfix_first(0, (3,)))
            self.emit(tile("K", 3))
            e("s_waitcnt lgkmcnt(0)")
            self.emit(self.stamp())

        self.alt = None
        if a.ab:
            e(f"s_bitcmp1_b32 s2, {a.ab_bit}")
            e("s_cbranch_scc0 L_varA")
            nh = len(self.out)
            variantB()
            e("s_branch L_loop")
            self.alt = (nh, len(self.out))
            self.dma_log = []
            e("L_varA:")
        variantA()
        self.first = [I("L_first:"), I(f"s_waitcnt vmcnt({self.vm_needed(['K1'])})"), I("s_barrier")] + tile("K", 3) + [I("s_branch L_first_ret")]
        if a.cpf2:
            self.first += [I(x) for x in ("L_last:", f"v_mbcnt_lo_u32_b32 v{T+9}, -1, 0", f"v_mbcnt_hi_u32_b32 v{T+9}, -1, v{T+9}",
                           f"v_lshlrev_b32 v{T+9}, 7, v{T+9}", f"v_min_u32 v{T+9}, L_end-L_tail, v{T+9}", f"v_add_u32 v{T+9}, L_tail-L_pc0, v{T+9}",
                           f"global_load_dword v{T+8}, v{T+9}, s[62:63]", "s_branch L_last_ret")]
        return [x for _, x in sm[idx:]]

    def epilogue(self):
        e, a = self.e, self.a
        self.emit(self.stamp())
        if a.stamp:
            e("s_waitcnt vmcnt(0)")
            self.emit(self.stamp())
            e(f"v_mbcnt_lo_u32_b32 v0, -1, 0"); e(f"v_mbcnt_hi_u32_b32 v0, -1, v0"); e("v_lshlrev_b32 v0, 2, v0")
            e(f"buffer_store_dword a{ST0}, v0, {srd(SWS)}, s{S_WSO} offen")
            e(f"buffer_store_dword a{ST1}, v0, {srd(SWS)}, s{S_WSO} offen offset:256")
        if a.spin_end:
            e("s_waitcnt vmcnt(0)")
            self.spin(a.spin_end, "L_spin2")
        e("L_end:")
        e("s_endpgm")

    def body(self, rest):
        e, a = self.e, self.a
        U = 2 * a.unroll
        txt = lambda r: [x if isinstance(x, tuple) else x.text for x in r]
        cp = lambda r: [x if isinstance(x, tuple) else I(x.text) for x in r]
        rest0 = txt(rest)
        inc = lambda: I(f"s_add_u32 s{S_G}, s{S_G}, 16384")
        seq = []
        for u in range(U):
            t = u // 2
            exA, exB = [], []
            pre = lambda r: Item(I(f"s_add_u32 s{r}, s{r}, 16384"), 2, a.d_early - 1)
            if u % 2 == 1:
                exB += [pre(S_G)] + self.dma_items("K", t + 4, [I(f"s_xor_b32 s{S_PB}, s{S_PB}, 0x8000")] if (a.unroll == 2 and u == 3) else [])
            else:
                exB += [pre(S_GV)] + self.dma_items("V", t + 2, [I(f"s_xor_b32 s{S_PB2}, s{S_PB2}, 0x8000")] if (a.unroll == 2 and u == 2) else [])
            xored = False
            if a.unroll == 2:
                if u == 2:
                    exA += [Item(I(f"v_xor_b32 v{KA(ds)}, 0x8000, v{KA(ds)}"), 0, 31) for ds in range(4)]
                xored = u >= 2
                if u == 3:
                    for db in range(8):
                        g = a.vplan[2 * db + 1] + a.v_slack + 1
                        if g <= 31: exA.append(Item(I(f"v_xor_b32 v{VA(db)}, 0x8000, v{VA(db)}"), g, 99))
                        else: exB.append(Item(I(f"v_xor_b32 v{VA(db)}, 0x8000, v{VA(db)}"), 0, 31))
            if u == 0:
                exA.append(Item(I(f"s_cmp_eq_u32 s{S_CNT}, {16 // a.unroll}"), a.first_gap - 1, a.first_gap - 1))
                exA.append(Item([I("s_cbranch_scc1 L_first"), I("L_first_ret:")], a.first_gap, a.first_gap))
            if u == a.cpf2_u and a.cpf2:
                exA.append(Item(I(f"s_cmp_eq_u32 s{S_CNT}, 2"), 9, 9))
                exA.append(Item([I("s_cbranch_scc1 L_last"), I("L_last_ret:")], 10, 10))
            if u == U - 1:
                exA.append(Item(I(f"s_sub_u32 s{S_CNT}, s{S_CNT}, 1"), 4, 31))
                exB.append(Item(I(f"s_cmp_eq_u32 s{S_CNT}, 1"), 31, 31))
            o, first, rest = self.phaseA(u, rest, extra=exA, xored=xored)
            seq += o
            seq += self.phaseB(u, first, barrier=(8 if u % 2 == 1 else None), extra=exB)
            if a.stamp and u % a.stamp_every == a.stamp_every - 1:
                seq += self.stamp() + [I(f"s_cmp_eq_u32 s{S_CNT}, 1")]
        seq.append(I("s_cbranch_scc0 L_loop"))
        assert txt(rest) == rest0
        _, pend = self.insert_waits(seq, [])
        seq2, pend2 = self.insert_waits(seq, pend)
        assert pend == pend2
        if a.spin_loop: self.spin(a.spin_loop, "L_spin1")
        if a.align: e(f".p2align {a.align}")
        e("L_loop:")
        n0 = len(self.out)
        self.emit(seq2)
        n1 = len(self.out)
        e("L_tail:")
        o, _ = self.insert_waits(self.tail_split(cp(rest)), pend)
        self.emit(o)
        self.check_seq = lambda: self.out[:n1] + self.out[n0:n1] + self.out[n1:]
        self.loop_range = (n0, n1)
        self.tail_range = (n1, len(self.out))

    def build(self):
        rest = self.prologue()
        n0 = len(self.out)
        self.body(rest)
        if self.a.drop:
            pats = self.a.drop.split(",")
            l0, l1 = self.loop_range
            keep = lambda i: not any(i.text.startswith(p.replace("~", " ")) for p in pats) or i.text == "s_waitcnt lgkmcnt(0)"
            self.out = self.out[:l0] + [i for i in self.out[l0:l1] if keep(i)] + self.out[l1:]
            self.nocheck2 = True
        self.epilogue()
        seq = self.check_seq()
        if getattr(self, "nocheck", False):
            return "", []
        if getattr(self, "nocheck2", False):
            probs = []
        elif self.alt:
            nh, nb = self.alt
            probs = check(seq[:nh] + seq[nb:], "mainA", verbose=False)
            probs += check(seq[:nb] + seq[self.loop_range[0]:], "mainB", verbose=False)
        else:
            probs = check(seq, "main", verbose=False)
        probs += check(self.slow, "slow", verbose=False)
        hdr = open("standalone__gqa_softmax__near_ridge.s.ref").read().split("; Override")[0]
        txt = hdr + "; @launch grid=(256,1,1) block=(256,1,1) lds=163840\n"
        txt += '.amdgcn_target "amdgcn-amd-amdhsa--gfx950"\n.text\n'
        txt += f".globl {KNAME}\n.p2align 8\n.type {KNAME},@function\n{KNAME}:\n"
        txt += "\n".join(str(i) for i in self.out) + "\n"
        txt += "\n".join(str(i) for i in self.first + self.slow) + "\n"
        txt += f""".section .rodata,"a"
.p2align 6
.amdhsa_kernel {KNAME}
  .amdhsa_next_free_vgpr {256 + NAGPR}
  .amdhsa_next_free_sgpr 64
  .amdhsa_accum_offset 256
  .amdhsa_group_segment_fixed_size 0
  .amdhsa_kernarg_size 48
  .amdhsa_user_sgpr_count 2
  .amdhsa_user_sgpr_kernarg_segment_ptr 1
  .amdhsa_system_sgpr_workgroup_id_x 1
.end_amdhsa_kernel
"""
        return txt, probs

    def gap_report(self, rng=None):
        n0, n1 = rng or self.loop_range
        gaps = []; cur = None
        for i in self.out[n0:n1]:
            if i.is_label: continue
            if i.is_mfma:
                if cur is not None: gaps.append(cur)
                cur = ""
            elif cur is not None:
                cur += "E" if i.is_trans else ("v" if i.is_valu else ("d" if i.is_ds else ("M" if i.is_vmem else "s")))
        gaps.append(cur)
        def t(gp):
            tm = 4; prev = "m"
            for c in gp:
                if c == "s": tm += 4
                else:
                    tm = max(tm, 8)
                    if c in "dM" and prev in "vE": tm += 4
                    if c in "vE" and prev == "M": tm += 4
                    tm += 8 if c == "E" else 4
                prev = c
            if prev in "dM": tm += 4
            return max(16, tm)
        return gaps, sum(map(t, gaps))


def get_args(argv=None):
    p = argparse.ArgumentParser()
    p.add_argument("-o", default="k2.s")
    p.add_argument("--stamp", action="store_true")
    p.add_argument("--split", type=int, default=18)
    p.add_argument("--bar_gap", type=int, default=0)
    p.add_argument("--vplan", default="2,5,8,11,14,17,20,22,24,25,26,27,28,29,30,31")
    p.add_argument("--kplan", default="3,6,9,12,15,18,21,24")
    p.add_argument("--v_slack", type=int, default=1)
    p.add_argument("--k_slack", type=int, default=2)
    p.add_argument("--d_early", type=int, default=7)
    p.add_argument("--d_step", type=int, default=6)
    p.add_argument("--d_slack", type=int, default=1)
    p.add_argument("--dma_in", default="B")
    p.add_argument("--unroll", type=int, default=2)
    p.add_argument("--align", type=int, default=6)
    p.add_argument("--drop", default="")
    p.add_argument("--hsplit", type=int, default=10)
    p.add_argument("--hk_early", type=int, default=3)
    p.add_argument("--hv_early", type=int, default=0)
    p.add_argument("--st_flat", type=int, default=1)
    p.add_argument("--last_more", type=int, default=5)
    p.add_argument("--st_b28", default="2,8,14")
    p.add_argument("--st_a29", default="5,10,14")
    p.add_argument("--st_b29", default="12,15")
    p.add_argument("--hvplan", default="3,6,9,10,11,12,13,14")
    p.add_argument("--hv_slack", type=int, default=1)
    p.add_argument("--hkplan", default="2,3,5,6,8,9,11,12")
    p.add_argument("--hk_slack", type=int, default=1)
    p.add_argument("--epi_from", type=int, default=0)
    p.add_argument("--cpf2", type=int, default=0)
    p.add_argument("--cpf2_u", type=int, default=1)
    p.add_argument("--cpf", type=int, default=1)
    p.add_argument("--ahead", type=int, default=6)
    p.add_argument("--mid", type=int, default=0)
    p.add_argument("--stamp_every", type=int, default=4)
    p.add_argument("--vsum", default="")
    p.add_argument("--first_gap", type=int, default=26)
    p.add_argument("--spin_end", type=int, default=0)
    p.add_argument("--spin_loop", type=int, default=0)
    p.add_argument("--spin_epi", type=int, default=0)
    p.add_argument("--ab", type=int, default=0)
    p.add_argument("--ab_bit", type=int, default=3)
    p.add_argument("--b_k1", type=int, default=1)
    p.add_argument("--b_wait", type=int, default=0)
    p.add_argument("--epi_split", type=int, default=0)
    p.add_argument("--epi_mul", type=int, default=0)
    p.add_argument("--kvmod", default="")
    p.add_argument("--qmod", default="")
    p.add_argument("--omod", default="nt")
    a = p.parse_args(argv)
    a.vplan = [int(x) for x in a.vplan.split(",")]
    a.vsum = [int(x) for x in a.vsum.split(",") if x]
    a.hvplan = [int(x) for x in a.hvplan.split(",")]
    a.hkplan = [int(x) for x in a.hkplan.split(",")]
    a.st_b28 = [int(x) for x in a.st_b28.split(",")]; a.st_a29 = [int(x) for x in a.st_a29.split(",")]; a.st_b29 = [int(x) for x in a.st_b29.split(",")]
    a.kplan = [int(x) for x in a.kplan.split(",")]
    return a


if __name__ == "__main__":
    a = get_args()
    g = Gen(a)
    txt, probs = g.build()
    open(a.o, "w").write(txt)
    for p in probs: print(p)
    gaps, est = g.gap_report()
    print("gaps:", " ".join(x or "-" for x in gaps))
    tg, test = g.gap_report(g.tail_range)
    print("tail:", " ".join(x or "-" for x in tg), test)
    print(f"wrote {a.o}: {len(g.out)} main insts, {len(g.slow)} slow insts, {len(probs)} problems; est cycles/subtile {est/(2*a.unroll):.0f}")
```

```python
import sys, struct, math, argparse
from asmlib import I, check

KNAME = "standalone__gqa_softmax__near_ridge_kernel"
CSC = math.log2(math.e) / math.sqrt(128.0)
def f2u(x): return struct.unpack("<I", struct.pack("<f", x))[0]
THR = f2u(2.0 ** 20)
MF = "v_mfma_f32_16x16x32_bf16"

def O(q, db): return (q * 8 + db) * 4
def S(buf, q): return 128 + 32 * buf + 8 * q
def NEGM(q): return 192 + 4 * q
def X(q): return 208 + 4 * q
def KA(ds): return 224 + ds
def VA(db): return 228 + db
def KD(n): return 236 + n
def VD(p): return 240 + p
def L(q): return 242 + q
T = 246
def Q(q, ds): return (q * 4 + ds) * 4
def KF(kb2, ds): return 64 + (kb2 * 4 + ds) * 4
def VF(db): return 96 + 4 * db
ONES = 128
ST0, ST1 = 132, 133
NAGPR = 232
def VFB(u): return {28: 136, 29: 168, 30: 200}.get(u, 96)
def vr(b, n): return f"v[{b}:{b+n-1}]"
def ar(b, n): return f"a[{b}:{b+n-1}]"

SQ, SK, SV, SO = 12, 16, 20, 24
S_W, S_KW, S_G = 28, 29, 30
S_T0, S_T1, S_T2 = 31, 32, 33
S_PB, S_CNT = 34, 35
S_C = 36
S_WSO, S_SI, S_STAMP = 38, 39, 40
SWS = 44
S_QL, S_QG = 56, 57
S_GV, S_PB2 = 58, 59
def srd(b): return f"s[{b}:{b+3}]"


class Item:
    def __init__(self, ins, early=0, late=10**6):
        self.ins = ins if isinstance(ins, list) else [ins]
        self.early, self.late = early, late
    @property
    def cost(self): return sum(i.cost for i in self.ins)


class Gen:
    def __init__(self, a):
        self.a = a
        self.out, self.slow, self.dma_log = [], [], []

    def e(self, t, note=None): self.out.append(I(t, note))

    def emit(self, ins):
        for i in ins:
            if hasattr(i, "dma"): self.dma_log.append(i.dma)
            self.out.append(i)

    def stamp(self):
        if not self.a.stamp: return []
        return [I(f"s_memtime s[{S_STAMP}:{S_STAMP+1}]"), I(f"s_memrealtime s[{S_STAMP+2}:{S_STAMP+3}]"),
                I("s_waitcnt lgkmcnt(0)"), I(f"s_lshl_b64 exec, 1, s{S_SI}"),
                I(f"v_accvgpr_write_b32 a{ST0}, s{S_STAMP}"), I(f"v_accvgpr_write_b32 a{ST1}, s{S_STAMP+2}"),
                I("s_mov_b64 exec, -1"), I(f"s_add_u32 s{S_SI}, s{S_SI}, 1")]

    def spin(self, n, lab):
        for t in (f"{lab}:", "s_memrealtime s[62:63]", "s_waitcnt lgkmcnt(0)", "s_sub_u32 s62, s62, s60", f"s_cmp_lt_u32 s62, {n}", f"s_cbranch_scc1 {lab}"):
            self.e(t)

    def slot(self, t): return t % self.a.unroll if self.a.unroll < 4 else t % 4

    def dma_tile(self, which, t, static=False):
        base = (0 if which == "K" else 65536)
        if static or self.a.unroll == 4:
            m0 = I(f"s_add_u32 m0, s{S_KW}, {base + (t % 4) * 16384}")
        else:
            m0 = I(f"s_add_u32 m0, s{S_PB if which == 'K' else S_PB2}, {base + (t % 2) * 16384}")
        r = []
        for n in range(4):
            vo = KD(n) if which == "K" else VD(n & 1)
            sr = SK if which == "K" else SV
            sg = S_G if which == "K" else S_GV
            ld = I(" ".join(f"buffer_load_dwordx4 v{vo}, {srd(sr)}, s{sg} offen offset:{n*1024} {self.a.kvmod} lds".split()),
                   f"DMA {which}{t}.{n}")
            ld.dma = f"{which}{t}"
            r.append(ld)
        return m0, r

    def vm_needed(self, names):
        last = max(i for i, n in enumerate(self.dma_log) if n in names)
        return len(self.dma_log) - 1 - last

    def qk_mfmas(self, buf, zero_c=False, qs=range(4)):
        r = []
        for q in qs:
            for kb2 in range(2):
                d = vr(S(buf, q) + 4 * kb2, 4)
                for ds in range(4):
                    c = d
                    if ds == 0: c = "0" if zero_c else vr(NEGM(q), 4)
                    r.append(I(f"{MF} {d}, {ar(KF(kb2,ds),4)}, {ar(Q(q,ds),4)}, {c}"))
        return r

    def pv_mfmas(self, buf, qmajor=False, qs=(0, 1, 2, 3), vb=96):
        o = [(db, q) for db in range(8) for q in qs]
        if qmajor: o = [(db, q) for q in qs for db in range(8)]
        return [I(f"{MF} {vr(O(q,db),4)}, {ar(vb+4*db,4)}, {vr(S(buf,q),4)}, {vr(O(q,db),4)}") for db, q in o]

    def sum_mfma(self, buf, q, h=None):
        if h is not None:
            return I(f"v_mfma_f32_4x4x4_16b_bf16 {vr(X(q),4)}, {ar(ONES,2)}, {vr(S(buf,q)+2*h,2)}, {vr(X(q),4) if h else 0}")
        return I(f"{MF} {vr(X(q),4)}, {ar(ONES,4)}, {vr(S(buf,q),4)}, 0")

    def k_reads(self, u):
        t, kb = u // 2, u % 2
        off = self.slot(t) * 16384 + kb * 8192
        return [I(f"ds_read_b128 {ar(KF(kb2,ds),4)}, v{KA(ds)} offset:{off + kb2*4096}") for kb2 in range(2) for ds in range(4)]

    def v_reads(self, u, vb=96):
        t, kb = u // 2, u % 2
        off = self.slot(t) * 16384 + kb * 8192
        return [I(f"ds_read_b64_tr_b16 {ar(vb+4*db+2*tt,2)}, v{VA(db)} offset:{off + tt*4096}") for db in range(8) for tt in range(2)]

    def sm_stream(self, buf, qs=(0, 1, 2, 3)):
        r = []
        def post(e):
            q, i = e // 8, e % 8
            b = S(buf, q)
            if q in self.a.vsum:
                if i == 1: r.append((e, I(f"v_add_f32 v{X(q)}, v{b}, v{b+1}")))
                elif i > 1: r.append((e, I(f"v_add_f32 v{X(q)}, v{X(q)}, v{b+i}")))
            if i % 2 == 1:
                r.append((e, I(f"v_cvt_pk_bf16_f32 v{b+i//2}, v{b+i-1}, v{b+i}")))
            if self.a.sum4:
                if i in (3, 7): r.append((e, ("SUM", buf, q, i // 4)))
            elif i == 7 and q not in self.a.vsum: r.append((e, ("SUM", buf, q)))
        e0, e1 = 8 * qs[0], 8 * qs[-1] + 8
        for e in range(e0, e1):
            r.append((e, I(f"v_exp_f32 v{S(buf,0)+e}, v{S(buf,0)+e}")))
            if e > e0: post(e - 1)
        post(e1 - 1)
        return r

    def flat_stream(self, items):
        r = []
        for x in items:
            if isinstance(x, tuple):
                r += [I("s_nop 1"), self.sum_mfma(*x[1:])]
            else:
                if r and r[-1].is_trans and set(r[-1].dst) & set(x.src): r.append(I("s_nop 0"))
                r.append(x)
        return r

    def rowmax(self, b, t0, t1):
        return [I(f"v_max3_f32 v{t0}, v{b}, v{b+1}, v{b+2}"), I(f"v_max3_f32 v{t1}, v{b+3}, v{b+4}, v{b+5}"),
                I(f"v_max3_f32 v{t0}, v{t0}, v{b+6}, v{b+7}"), I(f"v_max_f32 v{t0}, v{t0}, v{t1}"),
                I(f"v_mov_b32 v{t1}, v{t0}"), I("s_nop 1"), I(f"v_permlane16_swap_b32 v{t0}, v{t1}"), I("s_nop 1"),
                I(f"v_max_f32 v{t0}, v{t0}, v{t1}"),
                I(f"v_mov_b32 v{t1}, v{t0}"), I("s_nop 1"), I(f"v_permlane32_swap_b32 v{t0}, v{t1}"), I("s_nop 1")]

    def maxfix_first(self, buf, qs):
        r = []
        ts = {q: (T + 2 * i, T + 2 * i + 1) for i, q in enumerate(qs)}
        def each(f):
            for q in qs: r.append(I(f(q, S(buf, q), *ts[q])))
        pad = [I("s_nop 1")] if len(qs) < 3 else []
        each(lambda q, b, t0, t1: f"v_max3_f32 v{t0}, v{b}, v{b+1}, v{b+2}")
        each(lambda q, b, t0, t1: f"v_max3_f32 v{t1}, v{b+3}, v{b+4}, v{b+5}")
        each(lambda q, b, t0, t1: f"v_max3_f32 v{t0}, v{t0}, v{b+6}, v{b+7}")
        each(lambda q, b, t0, t1: f"v_max_f32 v{t0}, v{t0}, v{t1}")
        for sw in ("v_permlane16_swap_b32", "v_permlane32_swap_b32"):
            each(lambda q, b, t0, t1: f"v_mov_b32 v{t1}, v{t0}")
            r += pad
            each(lambda q, b, t0, t1: f"{sw} v{t0}, v{t1}")
            r += pad
            each(lambda q, b, t0, t1: f"v_max_f32 v{t0}, v{t0}, v{t1}")
        for q in qs:
            t0 = ts[q][0]
            for i in range(4): r.append(I(f"v_sub_f32 v{NEGM(q)+i}, 0, v{t0}"))
            for i in range(8): r.append(I(f"v_sub_f32 v{S(buf,q)+i}, v{S(buf,q)+i}, v{t0}"))
        return r

    def slow_path(self, u, label, has_next, xored, qs=(0, 1, 2, 3), reload_k=None):
        cur, nxt = u % 2, (u + 1) % 2
        r = [I(f"{label}:")]
        x = [I(f"v_xor_b32 v{KA(ds)}, 0x8000, v{KA(ds)}") for ds in range(4)] if xored else []
        r += [I("s_nop 3")] + x + self.k_reads(u) + [I(i.text) for i in x]
        r.append(I("s_waitcnt lgkmcnt(0)"))
        r += self.qk_mfmas(cur, qs=qs)
        r.append(I("s_nop 7"))
        if reload_k is not None: r += self.k_reads(reload_k)
        t0, t1, t2 = T, T + 1, T + 2
        for q in qs:
            b = S(cur, q)
            r += self.rowmax(b, t0, t1)
            r.append(I(f"v_max3_f32 v{t0}, v{t0}, v{t1}, 0"))
            r.append(I(f"v_exp_f32 v{t2}, -v{t0}"))
            for i in range(4): r.append(I(f"v_sub_f32 v{NEGM(q)+i}, v{NEGM(q)+i}, v{t0}"))
            r.append(I(f"v_mul_f32 v{L(q)}, v{L(q)}, v{t2}"))
            if has_next:
                for i in range(8): r.append(I(f"v_sub_f32 v{S(nxt,q)+i}, v{S(nxt,q)+i}, v{t0}"))
            for i in range(32): r.append(I(f"v_mul_f32 v{O(q,0)+i}, v{O(q,0)+i}, v{t2}"))
            for i in range(8): r.append(I(f"v_sub_f32 v{b+i}, v{b+i}, v{t0}"))
        r += self.flat_stream([x for _, x in self.sm_stream(cur, qs)])
        r.append(I("s_nop 7"))
        if reload_k is not None: r.append(I("s_waitcnt lgkmcnt(0)"))
        r.append(I(f"s_branch {label}_ret"))
        return r

    def schedule(self, mfmas, stream, others, tail=(), tail_lag=None, fin=(), nxt_stream=None):
        out = []
        if tail_lag is None: tail_lag = 5 if self.a.sum4 else 8
        M = list(mfmas); stream = list(stream); tail = list(tail)
        others = sorted(others, key=lambda x: (x.early, x.late))
        kind = lambda o: "s" if o.ins[0].is_salu else ("d" if o.ins[0].is_ds else ("m" if o.ins[0].is_vmem else "v"))
        pend = []
        last_sum_pos = None
        def states_since(idx): return sum(i.states for i in out[idx + 1:])
        g = -1
        def pop_markers():
            while stream and isinstance(stream[0], tuple):
                x = stream.pop(0); pend.append([self.sum_mfma(*x[1:]), len(out) - 1])
        def last_real():
            return out[-1]
        def ok(n):
            l = last_real()
            return not (l.is_trans and set(l.dst) & set(n.src))
        def take(k, overdue=False):
            for o in others:
                if kind(o) == k and (o.late <= g if overdue else o.early <= g):
                    others.remove(o); return o
            return None
        def small_v():
            pop_markers()
            o = take("v", True)
            if o: return o.ins
            if stream and stream[0].cost == 4 and ok(stream[0]): return [stream.pop(0)]
            if tail and g >= 2 and not stream and not pend and (last_sum_pos is None or states_since(last_sum_pos) >= tail_lag):
                return [tail.pop(0)]
            o = take("v")
            if o: return o.ins
            return None
        while M or pend or any(isinstance(x, tuple) for x in stream):
            if pend and states_since(pend[0][1]) >= 2:
                out.append(pend.pop(0)[0]); last_sum_pos = len(out) - 1
                if out[-1].passes == 2 and M: out.append(M.pop(0))
            elif M:
                out.append(M.pop(0))
            elif pend:
                out.append(I("s_nop 1")); out.append(pend.pop(0)[0]); last_sum_pos = len(out) - 1
            else:
                while stream and not isinstance(stream[0], tuple):
                    if not ok(stream[0]): out.append(I("s_nop 0"))
                    out.append(stream.pop(0))
                pop_markers(); continue
            g += 1
            is_last = not M and not pend and not any(isinstance(x, tuple) for x in stream)
            if is_last and fin: break
            o = take("s")
            if o: out += o.ins
            pop_markers()
            nxt_exp = bool(stream) and stream[0].cost == 8
            o = take("m", True) or take("d", True)
            if not o and not nxt_exp: o = take("d") or take("m")
            if o:
                out += o.ins
                if kind(o) == "d":
                    v = small_v()
                    if v: out += v
            elif nxt_exp:
                out.append(stream.pop(0))
            else:
                for _ in range(2):
                    v = small_v()
                    if v: out += v
            pop_markers()
        for x in stream:
            if not ok(x): out.append(I("s_nop 0"))
            out.append(x)
        for o in others: out += o.ins
        if tail:
            if last_sum_pos is not None and states_since(last_sum_pos) < tail_lag:
                out.append(I(f"s_nop {tail_lag - states_since(last_sum_pos) - 1}"))
            out += tail
        out += list(fin)
        if fin and nxt_stream and self.a.fin_exp and not isinstance(nxt_stream[0], tuple):
            out.append(nxt_stream.pop(0))
        return out

    def insert_waits(self, seq, pending):
        out = []
        pend = list(pending)
        pend = [(p, -1) for p in pend]
        last_m = -1
        for x in seq:
            if x.op == "s_waitcnt" and "lgkmcnt" in x.text:
                import re
                k = int(re.search(r"lgkmcnt\((\d+)\)", x.text).group(1))
                pend = pend[len(pend) - k:] if 0 < k < len(pend) else ([] if k == 0 else pend)
            if x.is_mfma or (x.is_vmem and "store" in x.op):
                need = [i for i, (p, _) in enumerate(pend) if p & set(x.src)]
                if need:
                    j = max(need)
                    pos = last_m + 1 if (pend[j][1] <= last_m and x.is_mfma) else len(out)
                    if x.is_mfma and self.a.wait_early and any(y.op.startswith("s_cbranch") or y.op == "s_barrier" for y in out[last_m + 1:]):
                        pm = max((k for k in range(last_m) if out[k].is_mfma and out[k].passes > 2), default=-1)
                        if pm >= 0 and pend[j][1] <= pm and not any(y.is_label for y in out[pm:last_m]):
                            pos = pm + 1; last_m += 1
                    n = sum(1 for (p, q) in pend[j + 1:] if q < pos)
                    n = min(n, 15)
                    out.insert(pos, I(f"s_waitcnt lgkmcnt({n})"))
                    pend = [(p, q + (1 if q >= pos else 0)) for (p, q) in pend[j + 1:]]
                if x.is_mfma and x.passes > 2: last_m = len(out)
            if x.is_ds: pend.append((set(x.dst), len(out)))
            out.append(x)
        return out, [p for p, _ in pend]

    def check_ins(self, qs=(0, 1, 2, 3)):
        if len(qs) == 2:
            return [I(f"v_max_f32 v{T}, v{X(qs[0])}, v{X(qs[1])}"), I(f"v_cmp_lt_f32 vcc, {THR:#x}, v{T}")]
        return [I(f"v_max3_f32 v{T}, v{X(0)}, v{X(1)}, v{X(2)}"), I(f"v_max_f32 v{T}, v{T}, v{X(3)}"),
                I(f"v_cmp_lt_f32 vcc, {THR:#x}, v{T}")]

    def split_stream(self, buf):
        sm = self.sm_stream(buf)
        idx = next(i for i, (e, x) in enumerate(sm) if e == self.a.split and isinstance(x, I) and x.is_trans)
        return [x for _, x in sm[:idx]], [x for _, x in sm[idx:]]

    def phaseA(self, u, rest, has_qk=True, extra=(), xored=False, tag=""):
        a = self.a
        nxt = (u + 1) % 2
        vreads = self.v_reads(u)
        label = f"L_slow_{u}{tag}"
        others = [Item(v, g, g + a.v_slack) for v, g in zip(vreads, a.vplan)]
        others += list(extra)
        fin = [I(f"s_cbranch_vccnz {label}"), I(f"{label}_ret:")]
        if has_qk:
            first, nrest = self.split_stream(nxt)
            o = self.schedule(self.qk_mfmas(nxt), rest, others, tail=self.check_ins(), fin=fin, nxt_stream=first)
        else:
            first, nrest = [], []
            o = list(vreads[:8])
            fl = self.flat_stream(rest)
            o += fl[:4] + vreads[8:] + fl[4:] + [I("s_nop 7")] + self.check_ins() + fin
        self.slow += self.slow_path(u, label, has_qk, xored)
        return o, first, nrest

    def phaseB(self, u, stream, has_kreads=True, barrier=None, extra=(), last=False):
        a = self.a
        cur = u % 2
        others = []
        if barrier is not None:
            others.append(Item([I(f"s_waitcnt vmcnt({barrier})")], a.bar_gap, a.bar_gap))
            others.append(Item([I("s_barrier")], a.bar_gap + 1, a.bar_gap + 1))
        if has_kreads:
            others += [Item(k, g, g + a.k_slack) for k, g in zip(self.k_reads(u + 2), a.kplan)]
        for q in range(4):
            others.append(Item(I(f"v_add_f32 v{L(q)}, v{L(q)}, v{X(q)}"), 0, 9 + 3 * q))
        others += list(extra)
        return self.schedule(self.pv_mfmas(cur, qmajor=last), stream, others)

    def hsplit(self, buf, qs):
        sm = self.sm_stream(buf, qs)
        idx = next(i for i, (e, x) in enumerate(sm) if e == 8 * qs[0] + self.a.hsplit and isinstance(x, I) and x.is_trans)
        return [x for _, x in sm[:idx]], [x for _, x in sm[idx:]]

    def site(self, u, qs, has_next, reload_k=None):
        label = f"L_slow_{u}_h{qs[0]}"
        self.slow += self.slow_path(u, label, has_next, False, qs, reload_k)
        return [I(f"s_cbranch_vccnz {label}"), I(f"{label}_ret:")]

    def phaseAh(self, u, qs, rest, qk=None, nxt_first=None, has_next=True, extra=(), vread=True):
        a = self.a
        v = self.v_reads(u, VFB(u)) if vread else []
        fin = self.site(u, qs, has_next)
        if qk:
            others = [Item([v[2 * db], v[2 * db + 1]], max(0, g - a.hv_early), g + a.hv_slack) for db, g in enumerate(a.hvplan) if v] + list(extra)
            return self.schedule(self.qk_mfmas(qk[0] % 2, qs=qk[1]), rest, others, tail=self.check_ins(qs), fin=fin, nxt_stream=nxt_first)
        return self.flat_stream(rest) + [I("s_nop 7")] + self.check_ins(qs) + [I("s_nop 3")] + fin

    def phaseBh(self, u, qs, stream, kread=None, barrier=None, extra=(), last=False, chk=None):
        a = self.a
        others = []
        if barrier is not None:
            others.append(Item([I(f"s_waitcnt vmcnt({barrier})")], 0, 0))
            others.append(Item([I("s_barrier")], 1, 1))
        if kread is not None:
            others += [Item(k, max(0, g - a.hk_early), g + a.hk_slack) for k, g in zip(self.k_reads(kread), a.hkplan)]
        for i, q in enumerate(qs):
            others.append(Item(I(f"v_add_f32 v{L(q)}, v{L(q)}, v{X(q)}"), 0, 5 + 3 * i))
        others += list(extra)
        return self.schedule(self.pv_mfmas(u % 2, qmajor=last, qs=qs, vb=VFB(u)), stream, others)

    INV = {0: 192, 1: 196, 2: 198, 3: 192}
    VO = T + 5
    WA = 208
    def epi_setup(self):
        va, vw, vrd = T + 8, T + 3, T + 4
        r = [f"v_mbcnt_lo_u32_b32 v{va}, -1, 0", f"v_mbcnt_hi_u32_b32 v{va}, -1, v{va}",
             f"v_lshlrev_b32 v{self.VO}, 4, v{va}", f"v_and_b32 v{va+1}, 15, v{va}", f"v_lshrrev_b32 v{va}, 4, v{va}",
             f"v_lshlrev_b32 v{vw}, 3, v{va}", f"v_lshlrev_b32 v{vrd}, 4, v{va+1}", f"v_xor_b32 v{vw}, v{vw}, v{vrd}",
             f"v_lshl_add_u32 v{vw}, v{va+1}, 8, v{vw}", f"v_add_u32 v{vw}, s{S_KW}, v{vw}"]
        r2 = [f"v_xor_b32 v{self.WA+db}, {db*32:#x}, v{vw}" for db in range(8)]
        r3 = [f"s_lshl_b32 s{S_T0}, s{S_W}, 14", f"s_add_u32 s{S_T1}, s{S_T0}, 4096"]
        return [I(x) for x in r], [I(x) for x in r2], [I(x) for x in r3]
    def epi_pack(self, q, pk=True):
        r = []
        for db in range(8):
            b = O(q, db)
            if pk: g = [I(f"v_pk_mul_f32 {vr(b+i,2)}, {vr(b+i,2)}, {vr(self.INV[q],2)} op_sel_hi:[1,0]") for i in (0, 2)]
            else: g = [I(f"v_mul_f32 v{b+i}, v{b+i}, v{self.INV[q]}") for i in range(4)]
            g += [I(f"v_cvt_pk_bf16_f32 v{b+i}, v{b+2*i}, v{b+2*i+1}") for i in range(2)]
            g.append(I(f"ds_write_b64 v{self.WA+db}, {vr(b,2)} offset:{(q % 2) * 16384}"))
            r += g
        return r
    def l_finish(self, qs):
        r = []
        red = [q for q in qs if self.a.sum4 or q in self.a.vsum]
        for sw in ("v_permlane16_swap_b32", "v_permlane32_swap_b32"):
            if not red: break
            r += [I(f"v_mov_b32 v{T+6+k}, v{L(q)}") for k, q in enumerate(red)] + [I("s_nop 1")]
            r += [I(f"{sw} v{T+6+k}, v{L(q)}") for k, q in enumerate(red)] + [I("s_nop 1")]
            r += [I(f"v_add_f32 v{L(q)}, v{L(q)}, v{T+6+k}") for k, q in enumerate(red)]
        return r + [I(f"v_rcp_f32 v{self.INV[q]}, v{L(q)}") for q in qs]
    def epi_buf(self, q, j): return S(q % 2, 0) + 4 * j
    def epi_read(self, q):
        return [I(f"ds_read_b128 {vr(self.epi_buf(q,j),4)}, v{KD(j)} offset:{(q % 2) * 16384 + j*1024}") for j in range(4)]
    def epi_store(self, q):
        return [I(" ".join(f"buffer_store_dwordx4 {vr(self.epi_buf(q,j),4)}, v{self.VO}, {srd(SO)}, s{S_T0 + q % 2} offen offset:{j*1024} {self.a.omod}".split()))
                for j in range(4)]

    def tail_split(self, rest28):
        a = self.a
        H0, H1 = (0, 1), (2, 3)
        o = []
        rest = []
        su1, su2, su3 = self.epi_setup()
        for u in (28, 29, 30):
            first, nrest = self.hsplit((u + 1) % 2, H0)
            ex = [Item(x, 1 + i // 2, 1 + i // 2) for i, x in enumerate(su1)] + [Item(x, 8 + i, 8 + i) for i, x in enumerate(su3)] if u == 28 else []
            o += self.phaseAh(u, H0, rest, qk=(u + 1, H0), nxt_first=first, extra=ex)
            if a.tstamp: o += self.stamp()
            o += self.phaseBh(u, H0, first, kread=(u + 2 if u < 30 else 29), barrier=(0 if u == 29 else None))
            if a.tstamp: o += self.stamp()
            rest = nrest
        r28 = list(rest28)
        o += self.phaseAh(31, H0, rest, qk=(29, H1), nxt_first=r28, has_next=False)
        if a.tstamp: o += self.stamp()
        o += self.phaseBh(31, H0, r28, kread=30)
        if a.tstamp: o += self.stamp()
        o += self.stamp()
        pk0 = self.epi_pack(0)
        o += self.l_finish(H0) + su2 + self.check_ins(H1)
        o += pk0[:10] + self.site(28, H1, True, reload_k=30) + pk0[10:] + self.epi_read(0) + self.epi_pack(1)
        st0, st1 = self.epi_store(0), self.epi_store(1)
        o += st0[:a.st_flat] + self.epi_read(1)
        if a.tstamp: o += self.stamp()
        stores = st0[a.st_flat:] + st1
        slots = [(0, g) for g in a.st_b28] + [(1, g) for g in a.st_a29] + [(2, g) for g in a.st_b29]
        sp = [[], [], []]
        for x, (ph, g) in zip(stores, slots): sp[ph].append(Item(x, g, g + 1))
        assert len(stores) <= len(slots)
        first, rest = self.hsplit(29 % 2, H1)
        o += self.phaseBh(28, H1, first, extra=sp[0])
        if a.tstamp: o += self.stamp()
        for k, u in enumerate((29, 30)):
            first, nrest = self.hsplit((u + 1) % 2, H1)
            o += self.phaseAh(u, H1, rest, qk=(u + 1, H1), nxt_first=first, extra=(sp[1] if k == 0 else []), vread=False)
            if a.tstamp: o += self.stamp()
            if u == 30:
                first, nrest = first + nrest[:a.last_more], nrest[a.last_more:]
            o += self.phaseBh(u, H1, first, kread=(31 if u == 29 else None), extra=(sp[2] if k == 0 else []))
            if a.tstamp: o += self.stamp()
            rest = nrest
        o += self.phaseAh(31, H1, rest, qk=None, has_next=False, vread=False)
        if a.tstamp: o += self.stamp()
        o += self.phaseBh(31, H1, [], last=True)
        if a.tstamp: o += self.stamp()
        o += self.stamp()
        o += self.l_finish(H1)
        o += [I(f"v_add_u32 v{self.WA+db}, 0x10000, v{self.WA+db}") for db in range(8)]
        o += [I(f"v_add_u32 v{KD(j)}, 0x10000, v{KD(j)}") for j in range(4)]
        o += [I(f"s_add_u32 s{S_T0}, s{S_T0}, 8192"), I(f"s_add_u32 s{S_T1}, s{S_T1}, 8192")]
        o += self.epi_pack(2) + self.epi_read(2) + self.epi_pack(3) + self.epi_store(2) + self.epi_read(3) + self.epi_store(3)
        return o

    def dma_items(self, which, t, post=(), static=False):
        a = self.a
        m0, lds = self.dma_tile(which, t, static)
        gs = [a.d_early + n * a.d_step for n in range(4)]
        its = [Item(m0, max(gs[0] - 2, 0), gs[0] - 1)]
        for n in range(4): its.append(Item(lds[n], gs[n], gs[n] + a.d_slack))
        for p in post: its.append(Item(p, gs[3] + a.d_slack + 1, gs[3] + a.d_slack + 3))
        return its

    def prologue(self):
        e, a = self.e, self.a
        if a.stamp:
            e("s_memtime s[48:49]"); e("s_memrealtime s[50:51]")
        if a.spin_end or a.spin_loop or a.spin_epi: e("s_memrealtime s[60:61]")
        e("s_cmp_ge_u32 s2, 256"); e("s_cbranch_scc1 L_end")
        e("s_load_dwordx4 s[4:7], s[0:1], 0"); e("s_load_dwordx4 s[8:11], s[0:1], 16")
        if a.stamp: e(f"s_load_dwordx2 s[{SWS}:{SWS+1}], s[0:1], 40")
        vl, vg, vt, vu = T, T + 1, T + 2, T + 3
        if a.cpf:
            e("s_getpc_b64 s[62:63]")
            e("L_pc0:")
            e(f"v_lshlrev_b32 v{T+9}, 7, v0")
            e(f"v_cmp_gt_u32 vcc, L_slow_0-L_pc0+128, v{T+9}")
            e("s_and_saveexec_b64 s[60:61], vcc")
            e("s_cbranch_execz L_cpf_skip")
            e(f"global_load_dword v{T+8}, v{T+9}, s[62:63]")
            e("L_cpf_skip:")
            e("s_mov_b64 exec, s[60:61]")
        e(f"v_lshrrev_b32 v{vt}, 6, v0")
        e(f"v_and_b32 v{vl}, 63, v0", "lane")
        e(f"v_readfirstlane_b32 s{S_W}, v{vt}")
        e(f"s_and_b32 s{S_T0}, s2, 7"); e(f"s_lshr_b32 s{S_T1}, s2, 3")
        e(f"s_lshl_b32 s{S_T0}, s{S_T0}, 4"); e(f"s_lshr_b32 s{S_T2}, s{S_T1}, 1")
        e(f"s_add_u32 s{S_T0}, s{S_T0}, s{S_T2}", "kv head index")
        e(f"s_and_b32 s{S_T1}, s{S_T1}, 1"); e(f"s_lshl_b32 s{S_T2}, s{S_T0}, 1")
        e(f"s_add_u32 s{S_T1}, s{S_T1}, s{S_T2}", "q head index")
        e(f"s_lshl_b32 s{S_T0}, s{S_T0}, 18"); e(f"s_lshl_b32 s{S_T1}, s{S_T1}, 16")
        e(f"s_lshl_b32 s{S_KW}, s{S_W}, 12")
        e(f"v_lshrrev_b32 v{vg}, 4, v{vl}", "g = lane>>4")
        e(f"v_and_b32 v{vt}, 15, v{vl}", "i = lane&15")
        e(f"v_xor_b32 v{vu}, v{vt}, v{vg}")
        e(f"v_lshlrev_b32 v{vu}, 4, v{vu}")
        e(f"v_lshl_add_u32 v{KD(0)}, v{vg}, 8, v{vu}")
        e(f"v_add_u32 v{KD(0)}, s{S_KW}, v{KD(0)}")
        for n in range(1, 4): e(f"v_xor_b32 v{KD(n)}, {n<<6:#x}, v{KD(0)}")
        e(f"s_lshl_b32 s{S_QL}, s{S_W}, 14")
        e(f"s_cmp_lt_u32 s{S_W}, 2"); e(f"s_cselect_b32 s{S_QG}, 2, 1"); e(f"s_lshl_b32 s{S_QG}, s{S_QG}, 16")
        e(f"s_add_u32 s{S_QL}, s{S_QL}, s{S_QG}", "q lds base")
        e(f"s_mul_i32 s{S_QG}, s{S_W}, 12288")
        e("s_waitcnt lgkmcnt(0)")
        if a.stamp:
            e("s_memtime s[52:53]"); e("s_memrealtime s[54:55]"); e("s_waitcnt lgkmcnt(0)")
        def mksrd(sr, p, off, n):
            e(f"s_add_u32 s{sr}, s{p}, s{off}"); e(f"s_addc_u32 s{sr+1}, s{p+1}, 0")
            e(f"s_mov_b32 s{sr+2}, {n}"); e(f"s_mov_b32 s{sr+3}, 0x20000")
        def vd_setup():
            e(f"v_lshlrev_b32 v{vu}, 1, v{vg}")
            e(f"v_xor_b32 v{vu}, v{vt}, v{vu}")
            e(f"v_lshlrev_b32 v{vu}, 4, v{vu}")
            e(f"v_lshl_add_u32 v{VD(0)}, v{vg}, 8, v{vu}")
            e(f"v_add_u32 v{VD(0)}, s{S_KW}, v{VD(0)}")
            e(f"v_xor_b32 v{VD(1)}, 0x80, v{VD(0)}")
        def qgrp(grp):
            r = [I(f"s_add_u32 m0, s{S_QL}, {grp*4096}"), I(f"s_add_u32 s{S_T2}, s{S_QG}, {grp*4096}")]
            for n in range(4):
                ld = I(" ".join(f"buffer_load_dwordx4 v{KD(n)}, {srd(SQ)}, s{S_T2} offen offset:{n*1024} {a.qmod} lds".split()))
                ld.dma = f"Q{grp}"
                r.append(ld)
            return r
        def tile(which, t):
            m0, lds = self.dma_tile(which, t, static=True)
            return [m0, I(f"s_mov_b32 s{S_G if which == 'K' else S_GV}, {t*16384}")] + lds
        QA = X(3)
        def setup():
            if a.stamp:
                e(f"s_mov_b32 s{SWS+2}, 0x1000000"); e(f"s_mov_b32 s{SWS+3}, 0x20000")
                e(f"s_lshl_b32 s{S_WSO}, s2, 2"); e(f"s_add_u32 s{S_WSO}, s{S_WSO}, s{S_W}"); e(f"s_lshl_b32 s{S_WSO}, s{S_WSO}, 9")
                e(f"v_accvgpr_write_b32 a{ST0}, 0"); e(f"v_accvgpr_write_b32 a{ST1}, 0"); e(f"s_mov_b32 s{S_SI}, 2")
                e("s_mov_b64 exec, 1"); e(f"v_accvgpr_write_b32 a{ST0}, s48"); e(f"v_accvgpr_write_b32 a{ST1}, s50")
                e("s_mov_b64 exec, 2"); e(f"v_accvgpr_write_b32 a{ST0}, s52"); e(f"v_accvgpr_write_b32 a{ST1}, s54")
                e("s_mov_b64 exec, -1")
                self.emit(self.stamp())
            e(f"v_xor_b32 v{vu}, v{vt}, v{vg}")
            e(f"v_lshlrev_b32 v{vu}, 4, v{vu}")
            e(f"v_lshl_add_u32 v{KA(0)}, v{vt}, 8, v{vu}")
            for ds in range(1, 4): e(f"v_xor_b32 v{KA(ds)}, {ds<<6:#x}, v{KA(0)}")
            e(f"v_lshrrev_b32 v{vu}, 2, v{vl}", "key = lane>>2")
            e(f"v_lshlrev_b32 v{VA(0)}, 8, v{vu}")
            e(f"v_and_b32 v{vu}, 7, v{vu}")
            e(f"v_lshl_add_u32 v{VA(0)}, v{vu}, 5, v{VA(0)}")
            e(f"v_and_b32 v{vu}, 3, v{vl}")
            e(f"v_lshl_add_u32 v{VA(0)}, v{vu}, 3, v{VA(0)}")
            e(f"v_add_u32 v{VA(0)}, 0x10000, v{VA(0)}")
            for db in range(1, 8): e(f"v_xor_b32 v{VA(db)}, {db<<5:#x}, v{VA(0)}")
            for ds in range(4): e(f"v_add_u32 v{QA+ds}, s{S_QL}, v{KA(ds)}")
            e(f"s_mov_b32 s{S_C}, {f2u(CSC):#x}"); e(f"s_mov_b32 s{S_C+1}, {f2u(CSC):#x}")
            for q in range(4): e(f"v_mov_b32 v{L(q)}, 0")
            e(f"v_mov_b32 v{vu}, 0x3f803f80")
            for i in range(4): e(f"v_accvgpr_write_b32 a{ONES+i}, v{vu}")
            for i in range(128): e(f"v_mov_b32 v{i}, 0")
            if a.unroll == 2:
                e(f"s_mov_b32 s{S_PB}, s{S_KW}"); e(f"s_add_u32 s{S_PB2}, s{S_KW}, 0x8000")
            e(f"s_mov_b32 s{S_CNT}, {16 // a.unroll}")
        RAW = S(1, 0); TMP = S(1, 2)
        def qproc(q, early=(), mid=(), fuse=False):
            e(f"s_waitcnt vmcnt({self.vm_needed([f'Q{q}'])})")
            for ds in range(4): e(f"ds_read_b128 {vr(RAW+4*ds,4)}, v{QA+ds} offset:{q*4096}")
            self.emit(early)
            mf = lambda ds: [I(f"{MF} {vr(S(0,q)+4*kb2,4)}, {ar(KF(kb2,ds),4)}, {vr(RAW+4*ds,4)}, {vr(S(0,q)+4*kb2,4) if ds else 0}") for kb2 in range(2)]
            for ds in range(4):
                if ds == 2: self.emit(mid)
                e(f"s_waitcnt lgkmcnt({3-ds})")
                for k in range(4):
                    e(f"v_lshlrev_b32 v{TMP+2*k}, 16, v{RAW+4*ds+k}")
                    e(f"v_and_b32 v{TMP+2*k+1}, 0xffff0000, v{RAW+4*ds+k}")
                    if fuse and ds and k in (0, 2): self.emit([mf(ds - 1)[k // 2]])
                for k in range(4): e(f"v_pk_mul_f32 {vr(TMP+2*k,2)}, {vr(TMP+2*k,2)}, s[{S_C}:{S_C+1}]")
                for k in range(4): e(f"v_cvt_pk_bf16_f32 v{RAW+4*ds+k}, v{TMP+2*k}, v{TMP+2*k+1}")
                if not fuse:
                    for k in range(4): e(f"v_accvgpr_write_b32 a{Q(q,ds)+k}, v{RAW+4*ds+k}")
            if fuse:
                w = [I(f"v_accvgpr_write_b32 a{Q(q,0)+k}, v{RAW+k}") for k in range(16)]
                m = mf(3)
                self.emit(w[:2] + [m[0]] + w[2:4] + [m[1]] + w[4:])
        sm = self.sm_stream(0)
        pos = lambda e0: next(i for i, (ee, x) in enumerate(sm) if ee == e0 and isinstance(x, I) and x.is_trans)
        part = lambda a0, a1: self.flat_stream([x if isinstance(x, tuple) else I(x.text) for _, x in sm[a0:a1]])
        idx = pos(a.split)
        qk = lambda *qs: self.emit([I("s_nop 0")] + self.qk_mfmas(0, zero_c=True, qs=qs))

        def variantA():
            mksrd(SQ, 4, S_T1, 65536)
            self.emit(qgrp(0)); self.emit(qgrp(1))
            mksrd(SK, 6, S_T0, 262144)
            mksrd(SV, 8, S_T0, 262144); mksrd(SO, 10, S_T1, 65536)
            vd_setup(); setup()
            queue = [tile("K", 0), qgrp(2), qgrp(3), tile("V", 0), tile("K", 1), tile("K", 2), tile("V", 1)]
            flat = []
            for grp in queue:
                lds = [x for x in grp if x.is_vmem]; hd = [x for x in grp if not x.is_vmem]
                for n, x in enumerate(lds): flat.append((hd if n == 0 else []) + [x])
            def take(n):
                r = []
                for _ in range(n):
                    if flat: r += flat.pop(0)
                return r
            self.emit(take(a.ahead))
            self.emit(self.stamp())
            h = a.mid
            qproc(0, take(4 - h), take(h))
            qproc(1, take(4 - h), take(h))
            self.emit(self.stamp())
            e(f"s_waitcnt vmcnt({self.vm_needed(['K0'])})")
            self.emit(take(4 - h))
            e("s_barrier")
            self.emit(self.k_reads(0))
            e("s_waitcnt lgkmcnt(0)")
            qk(0, 1)
            self.emit(take(h))
            e("s_nop 7")
            self.emit(self.maxfix_first(0, (0, 1)))
            self.emit(part(0, pos(16)))
            self.emit(self.stamp())
            qproc(2, take(4 - h), take(h), fuse=True)
            self.emit(self.stamp())
            qproc(3, take(4 - h), take(h), fuse=True)
            self.emit(self.k_reads(1))
            self.emit(self.maxfix_first(0, (2, 3)))
            self.emit(part(pos(16), idx))
            e(f"s_waitcnt vmcnt({self.vm_needed(['V0'])}) lgkmcnt(0)")
            self.emit(take(99))
            e("s_barrier", "V0 visible; Q staging slots free")
            self.emit(self.stamp())

        def variantB():
            mksrd(SK, 6, S_T0, 262144)
            self.emit(tile("K", 0))
            mksrd(SV, 8, S_T0, 262144)
            vd_setup()
            self.emit(tile("V", 0))
            if a.b_k1: self.emit(tile("K", 1))
            mksrd(SQ, 4, S_T1, 65536); mksrd(SO, 10, S_T1, 65536)
            setup()
            e(f"s_waitcnt vmcnt({a.b_wait})")
            for g in range(4): self.emit(qgrp(g))
            if not a.b_k1: self.emit(tile("K", 1))
            self.emit(self.stamp())
            e(f"s_waitcnt vmcnt({self.vm_needed(['K0'])})")
            e("s_barrier")
            self.emit(self.k_reads(0))
            qproc(0)
            qk(0)
            self.emit(tile("V", 1))
            self.emit(self.stamp())
            qproc(1)
            qk(1)
            self.emit(self.maxfix_first(0, (0,)))
            self.emit(tile("K", 2))
            self.emit(part(0, pos(8)))
            self.emit(self.stamp())
            qproc(2)
            qk(2)
            self.emit(self.maxfix_first(0, (1,)))
            self.emit(part(pos(8), pos(16)))
            self.emit(self.maxfix_first(0, (2,)))
            self.emit(part(pos(16), idx))
            self.emit(self.stamp())
            qproc(3)
            qk(3)
            self.emit(self.k_reads(1))
            e(f"s_waitcnt vmcnt({self.vm_needed(['V0','K1'])})")
            e("s_barrier", "V0,K1 visible; Q staging slots free")
            self.emit(tile("V", 2))
            self.emit(self.maxfix_first(0, (3,)))
            self.emit(tile("K", 3))
            e("s_waitcnt lgkmcnt(0)")
            self.emit(self.stamp())

        self.alt = None
        if a.ab:
            e(f"s_bitcmp1_b32 s2, {a.ab_bit}")
            e("s_cbranch_scc0 L_varA")
            nh = len(self.out)
            variantB()
            e("s_branch L_loop")
            self.alt = (nh, len(self.out))
            self.dma_log = []
            e("L_varA:")
        variantA()
        self.first = [I("L_first:"), I(f"s_waitcnt vmcnt({self.vm_needed(['K1'])})"), I("s_barrier")] + tile("K", 3) + [I("s_branch L_first_ret")]
        if a.cpf2:
            self.first += [I(x) for x in ("L_last:", f"v_mbcnt_lo_u32_b32 v{T+9}, -1, 0", f"v_mbcnt_hi_u32_b32 v{T+9}, -1, v{T+9}",
                           f"v_lshlrev_b32 v{T+9}, 7, v{T+9}", f"v_min_u32 v{T+9}, L_end-L_tail, v{T+9}", f"v_add_u32 v{T+9}, L_tail-L_pc0, v{T+9}",
                           f"global_load_dword v{T+8}, v{T+9}, s[62:63]", "s_branch L_last_ret")]
        return [x for _, x in sm[idx:]]

    def epilogue(self):
        e, a = self.e, self.a
        self.emit(self.stamp())
        if a.stamp:
            e("s_waitcnt vmcnt(0)")
            self.emit(self.stamp())
            e(f"v_mbcnt_lo_u32_b32 v0, -1, 0"); e(f"v_mbcnt_hi_u32_b32 v0, -1, v0"); e("v_lshlrev_b32 v0, 2, v0")
            e(f"buffer_store_dword a{ST0}, v0, {srd(SWS)}, s{S_WSO} offen")
            e(f"buffer_store_dword a{ST1}, v0, {srd(SWS)}, s{S_WSO} offen offset:256")
        if a.spin_end:
            e("s_waitcnt vmcnt(0)")
            self.spin(a.spin_end, "L_spin2")
        e("L_end:")
        e("s_endpgm")

    def body(self, rest):
        e, a = self.e, self.a
        U = 2 * a.unroll
        txt = lambda r: [x if isinstance(x, tuple) else x.text for x in r]
        cp = lambda r: [x if isinstance(x, tuple) else I(x.text) for x in r]
        rest0 = txt(rest)
        inc = lambda: I(f"s_add_u32 s{S_G}, s{S_G}, 16384")
        seq = []
        for u in range(U):
            t = u // 2
            exA, exB = [], []
            pre = lambda r: Item(I(f"s_add_u32 s{r}, s{r}, 16384"), 2, a.d_early - 1)
            if u % 2 == 1:
                exB += [pre(S_G)] + self.dma_items("K", t + 4, [I(f"s_xor_b32 s{S_PB}, s{S_PB}, 0x8000")] if (a.unroll == 2 and u == 3) else [])
            else:
                exB += [pre(S_GV)] + self.dma_items("V", t + 2, [I(f"s_xor_b32 s{S_PB2}, s{S_PB2}, 0x8000")] if (a.unroll == 2 and u == 2) else [])
            xored = False
            if a.unroll == 2:
                if u == 2:
                    exA += [Item(I(f"v_xor_b32 v{KA(ds)}, 0x8000, v{KA(ds)}"), 0, 31) for ds in range(4)]
                xored = u >= 2
                if u == 3:
                    for db in range(8):
                        g = a.vplan[2 * db + 1] + a.v_slack + 1
                        if g <= 31: exA.append(Item(I(f"v_xor_b32 v{VA(db)}, 0x8000, v{VA(db)}"), g, 99))
                        else: exB.append(Item(I(f"v_xor_b32 v{VA(db)}, 0x8000, v{VA(db)}"), 0, 31))
            if u == 0:
                exA.append(Item(I(f"s_cmp_eq_u32 s{S_CNT}, {16 // a.unroll}"), a.first_gap - 1, a.first_gap - 1))
                exA.append(Item([I("s_cbranch_scc1 L_first"), I("L_first_ret:")], a.first_gap, a.first_gap))
            if u == a.cpf2_u and a.cpf2:
                exA.append(Item(I(f"s_cmp_eq_u32 s{S_CNT}, 2"), 9, 9))
                exA.append(Item([I("s_cbranch_scc1 L_last"), I("L_last_ret:")], 10, 10))
            if u == U - 1:
                exA.append(Item(I(f"s_sub_u32 s{S_CNT}, s{S_CNT}, 1"), 4, 31))
                exB.append(Item(I(f"s_cmp_eq_u32 s{S_CNT}, 1"), 31, 31))
            o, first, rest = self.phaseA(u, rest, extra=exA, xored=xored)
            seq += o
            seq += self.phaseB(u, first, barrier=(8 if u % 2 == 1 else None), extra=exB)
            if a.stamp and a.stamp_every and u % a.stamp_every == a.stamp_every - 1:
                seq += self.stamp() + [I(f"s_cmp_eq_u32 s{S_CNT}, 1")]
        seq.append(I("s_cbranch_scc0 L_loop"))
        assert txt(rest) == rest0
        _, pend = self.insert_waits(seq, [])
        seq2, pend2 = self.insert_waits(seq, pend)
        assert pend == pend2
        if a.spin_loop: self.spin(a.spin_loop, "L_spin1")
        if a.align: e(f".p2align {a.align}")
        for _ in range(a.pad): e("s_nop 0")
        e("L_loop:")
        n0 = len(self.out)
        self.emit(seq2)
        n1 = len(self.out)
        e("L_tail:")
        o, _ = self.insert_waits((self.stamp() if not a.stamp_every else []) + self.tail_split(cp(rest)), pend)
        self.emit(o)
        self.check_seq = lambda: self.out[:n1] + self.out[n0:n1] + self.out[n1:]
        self.loop_range = (n0, n1)
        self.tail_range = (n1, len(self.out))

    def build(self):
        rest = self.prologue()
        n0 = len(self.out)
        self.body(rest)
        if self.a.drop:
            pats = self.a.drop.split(",")
            l0, l1 = self.loop_range
            keep = lambda i: not any(i.text.startswith(p.replace("~", " ")) for p in pats) or i.text == "s_waitcnt lgkmcnt(0)"
            self.out = self.out[:l0] + [i for i in self.out[l0:l1] if keep(i)] + self.out[l1:]
            self.nocheck2 = True
        self.epilogue()
        seq = self.check_seq()
        if getattr(self, "nocheck", False):
            return "", []
        if getattr(self, "nocheck2", False):
            probs = []
        elif self.alt:
            nh, nb = self.alt
            probs = check(seq[:nh] + seq[nb:], "mainA", verbose=False)
            probs += check(seq[:nb] + seq[self.loop_range[0]:], "mainB", verbose=False)
        else:
            probs = check(seq, "main", verbose=False)
        probs += check(self.slow, "slow", verbose=False)
        hdr = open("standalone__gqa_softmax__near_ridge.s.ref").read().split("; Override")[0]
        txt = hdr + "; @launch grid=(256,1,1) block=(256,1,1) lds=163840\n"
        txt += '.amdgcn_target "amdgcn-amd-amdhsa--gfx950"\n.text\n'
        txt += f".globl {KNAME}\n.p2align 8\n.type {KNAME},@function\n{KNAME}:\n"
        txt += "\n".join(str(i) for i in self.out) + "\n"
        txt += "\n".join(str(i) for i in self.first + self.slow) + "\n"
        txt += f""".section .rodata,"a"
.p2align 6
.amdhsa_kernel {KNAME}
  .amdhsa_next_free_vgpr {256 + NAGPR}
  .amdhsa_next_free_sgpr 64
  .amdhsa_accum_offset 256
  .amdhsa_group_segment_fixed_size 0
  .amdhsa_kernarg_size 48
  .amdhsa_user_sgpr_count 2
  .amdhsa_user_sgpr_kernarg_segment_ptr 1
  .amdhsa_system_sgpr_workgroup_id_x 1
.end_amdhsa_kernel
"""
        return txt, probs

    def gap_report(self, rng=None):
        n0, n1 = rng or self.loop_range
        gaps = []; cur = None
        for i in self.out[n0:n1]:
            if i.is_label: continue
            if i.is_mfma:
                if cur is not None: gaps.append(cur)
                cur = "4" if i.passes == 2 else ""
            elif cur is not None:
                cur += "E" if i.is_trans else ("v" if i.is_valu else ("d" if i.is_ds else ("M" if i.is_vmem else "s")))
        gaps.append(cur)
        def t(gp):
            if gp == "4": return 8
            gp = gp.replace("4", "")
            tm = 4; prev = "m"
            for c in gp:
                if c == "s": tm += 4
                else:
                    tm = max(tm, 8)
                    if c in "dM" and prev in "vE": tm += 4
                    if c in "vE" and prev == "M": tm += 4
                    tm += 8 if c == "E" else 4
                prev = c
            if prev in "dM": tm += 4
            return max(16, tm)
        return gaps, sum(map(t, gaps))


def get_args(argv=None):
    p = argparse.ArgumentParser()
    p.add_argument("-o", default="k2.s")
    p.add_argument("--stamp", action="store_true")
    p.add_argument("--split", type=int, default=18)
    p.add_argument("--bar_gap", type=int, default=0)
    p.add_argument("--vplan", default="2,5,8,11,14,17,20,22,24,25,26,27,28,29,30,31")
    p.add_argument("--kplan", default="3,6,9,12,15,18,21,24")
    p.add_argument("--v_slack", type=int, default=1)
    p.add_argument("--k_slack", type=int, default=2)
    p.add_argument("--d_early", type=int, default=7)
    p.add_argument("--d_step", type=int, default=6)
    p.add_argument("--d_slack", type=int, default=1)
    p.add_argument("--dma_in", default="B")
    p.add_argument("--unroll", type=int, default=2)
    p.add_argument("--align", type=int, default=6)
    p.add_argument("--drop", default="")
    p.add_argument("--sum4", type=int, default=0)
    p.add_argument("--wait_early", type=int, default=1)
    p.add_argument("--fin_exp", type=int, default=1)
    p.add_argument("--pad", type=int, default=0)
    p.add_argument("--pk", type=int, default=1)
    p.add_argument("--pack_grp", type=int, default=1)
    p.add_argument("--tstamp", type=int, default=0)
    p.add_argument("--hsplit", type=int, default=10)
    p.add_argument("--hk_early", type=int, default=3)
    p.add_argument("--hv_early", type=int, default=0)
    p.add_argument("--st_flat", type=int, default=1)
    p.add_argument("--last_more", type=int, default=5)
    p.add_argument("--st_b28", default="2,8,14")
    p.add_argument("--st_a29", default="5,10,14")
    p.add_argument("--st_b29", default="12,15")
    p.add_argument("--hvplan", default="3,6,9,10,11,12,13,14")
    p.add_argument("--hv_slack", type=int, default=1)
    p.add_argument("--hkplan", default="2,3,5,6,8,9,11,12")
    p.add_argument("--hk_slack", type=int, default=1)
    p.add_argument("--epi_from", type=int, default=0)
    p.add_argument("--cpf2", type=int, default=0)
    p.add_argument("--cpf2_u", type=int, default=1)
    p.add_argument("--cpf", type=int, default=1)
    p.add_argument("--ahead", type=int, default=6)
    p.add_argument("--mid", type=int, default=0)
    p.add_argument("--stamp_every", type=int, default=4)
    p.add_argument("--vsum", default="")
    p.add_argument("--first_gap", type=int, default=26)
    p.add_argument("--spin_end", type=int, default=0)
    p.add_argument("--spin_loop", type=int, default=0)
    p.add_argument("--spin_epi", type=int, default=0)
    p.add_argument("--ab", type=int, default=0)
    p.add_argument("--ab_bit", type=int, default=3)
    p.add_argument("--b_k1", type=int, default=1)
    p.add_argument("--b_wait", type=int, default=0)
    p.add_argument("--epi_split", type=int, default=0)
    p.add_argument("--epi_mul", type=int, default=0)
    p.add_argument("--kvmod", default="")
    p.add_argument("--qmod", default="")
    p.add_argument("--omod", default="nt")
    a = p.parse_args(argv)
    a.vplan = [int(x) for x in a.vplan.split(",")]
    a.vsum = [int(x) for x in a.vsum.split(",") if x]
    a.hvplan = [int(x) for x in a.hvplan.split(",")]
    a.hkplan = [int(x) for x in a.hkplan.split(",")]
    a.st_b28 = [int(x) for x in a.st_b28.split(",")]; a.st_a29 = [int(x) for x in a.st_a29.split(",")]; a.st_b29 = [int(x) for x in a.st_b29.split(",")]
    a.kplan = [int(x) for x in a.kplan.split(",")]
    return a


if __name__ == "__main__":
    a = get_args()
    g = Gen(a)
    txt, probs = g.build()
    open(a.o, "w").write(txt)
    for p in probs: print(p)
    gaps, est = g.gap_report()
    print("gaps:", " ".join(x or "-" for x in gaps))
    tg, test = g.gap_report(g.tail_range)
    print("tail:", " ".join(x or "-" for x in tg), test)
    print(f"wrote {a.o}: {len(g.out)} main insts, {len(g.slow)} slow insts, {len(probs)} problems; est cycles/subtile {est/(2*a.unroll):.0f}")
```

```python
import sys, struct, math, argparse
from asmlib import I, check

KNAME = "standalone__gqa_softmax__near_ridge_kernel"
CSC = math.log2(math.e) / math.sqrt(128.0)
def f2u(x): return struct.unpack("<I", struct.pack("<f", x))[0]
THR = f2u(2.0 ** 20)
MF = "v_mfma_f32_16x16x32_bf16"

def O(q, db): return (q * 8 + db) * 4
def S(buf, q): return 128 + 32 * buf + 8 * q
def NEGM(q): return 192 + 4 * q
def X(q): return 208 + 4 * q
def KA(ds): return 224 + ds
def VA(db): return 228 + db
def KD(n): return 236 + n
def VD(p): return 240 + p
def L(q): return 242 + q
T = 246
def Q(q, ds): return (q * 4 + ds) * 4
def KF(kb2, ds): return 64 + (kb2 * 4 + ds) * 4
def VF(db): return 96 + 4 * db
ONES = 128
ST0, ST1 = 132, 133
NAGPR = 232
def VFB(u): return {28: 136, 29: 168, 30: 200}.get(u, 96)
def vr(b, n): return f"v[{b}:{b+n-1}]"
def ar(b, n): return f"a[{b}:{b+n-1}]"

SQ, SK, SV, SO = 12, 16, 20, 24
S_W, S_KW, S_G = 28, 29, 30
S_T0, S_T1, S_T2 = 31, 32, 33
S_PB, S_CNT = 34, 35
S_C = 36
S_WSO, S_SI, S_STAMP = 38, 39, 40
SWS = 44
S_QL, S_QG = 56, 57
S_GV, S_PB2 = 58, 59
S_PERM = 3
def srd(b): return f"s[{b}:{b+3}]"


class Item:
    def __init__(self, ins, early=0, late=10**6):
        self.ins = ins if isinstance(ins, list) else [ins]
        self.early, self.late = early, late
    @property
    def cost(self): return sum(i.cost for i in self.ins)


class Gen:
    def __init__(self, a):
        self.a = a
        self.out, self.slow, self.dma_log = [], [], []

    def e(self, t, note=None): self.out.append(I(t, note))

    def emit(self, ins):
        for i in ins:
            if hasattr(i, "dma"): self.dma_log.append(i.dma)
            self.out.append(i)

    def stamp(self):
        if not self.a.stamp: return []
        return [I(f"s_memtime s[{S_STAMP}:{S_STAMP+1}]"), I(f"s_memrealtime s[{S_STAMP+2}:{S_STAMP+3}]"),
                I("s_waitcnt lgkmcnt(0)"), I(f"s_lshl_b64 exec, 1, s{S_SI}"),
                I(f"v_accvgpr_write_b32 a{ST0}, s{S_STAMP}"), I(f"v_accvgpr_write_b32 a{ST1}, s{S_STAMP+2}"),
                I("s_mov_b64 exec, -1"), I(f"s_add_u32 s{S_SI}, s{S_SI}, 1")]

    def spin(self, n, lab):
        for t in (f"{lab}:", "s_memrealtime s[66:67]", "s_waitcnt lgkmcnt(0)", "s_sub_u32 s66, s66, s64", f"s_cmp_lt_u32 s66, {n}", f"s_cbranch_scc1 {lab}"):
            self.e(t)

    def slot(self, t): return t % self.a.unroll if self.a.unroll < 4 else t % 4

    def dma_tile(self, which, t, static=False):
        base = (0 if which == "K" else 65536)
        if static or self.a.unroll == 4:
            m0 = I(f"s_add_u32 m0, s{S_KW}, {base + (t % 4) * 16384}")
        else:
            m0 = I(f"s_add_u32 m0, s{S_PB if which == 'K' else S_PB2}, {base + (t % 2) * 16384}")
        r = []
        for n in range(4):
            vo = KD(n) if which == "K" else VD(n & 1)
            sr = SK if which == "K" else SV
            sg = S_G if which == "K" else S_GV
            ld = I(" ".join(f"buffer_load_dwordx4 v{vo}, {srd(sr)}, s{sg} offen offset:{n*1024} {self.a.kvmod} lds".split()),
                   f"DMA {which}{t}.{n}")
            ld.dma = f"{which}{t}"
            r.append(ld)
        return m0, r

    def vm_needed(self, names):
        last = max(i for i, n in enumerate(self.dma_log) if n in names)
        return len(self.dma_log) - 1 - last

    def qk_mfmas(self, buf, zero_c=False, qs=range(4)):
        r = []
        for q in qs:
            for kb2 in range(2):
                d = vr(S(buf, q) + 4 * kb2, 4)
                for ds in range(4):
                    c = d
                    if ds == 0: c = "0" if zero_c else vr(NEGM(q), 4)
                    r.append(I(f"{MF} {d}, {ar(KF(kb2,ds),4)}, {ar(Q(q,ds),4)}, {c}"))
        return r

    def pv_mfmas(self, buf, qmajor=False, qs=(0, 1, 2, 3), vb=96):
        o = [(db, q) for db in range(8) for q in qs]
        if qmajor: o = [(db, q) for q in qs for db in range(8)]
        return [I(f"{MF} {vr(O(q,db),4)}, {ar(vb+4*db,4)}, {vr(S(buf,q),4)}, {vr(O(q,db),4)}") for db, q in o]

    def sum_mfma(self, buf, q, h=None):
        if h is not None:
            return I(f"v_mfma_f32_4x4x4_16b_bf16 {vr(X(q),4)}, {ar(ONES,2)}, {vr(S(buf,q)+2*h,2)}, {vr(X(q),4) if h else 0}")
        return I(f"{MF} {vr(X(q),4)}, {ar(ONES,4)}, {vr(S(buf,q),4)}, 0")

    def k_reads(self, u):
        t, kb = u // 2, u % 2
        off = self.slot(t) * 16384 + kb * 8192
        return [I(f"ds_read_b128 {ar(KF(kb2,ds),4)}, v{KA(ds)} offset:{off + kb2*4096}") for kb2 in range(2) for ds in range(4)]

    def v_reads(self, u, vb=96):
        t, kb = u // 2, u % 2
        off = self.slot(t) * 16384 + kb * 8192
        return [I(f"ds_read_b64_tr_b16 {ar(vb+4*db+2*tt,2)}, v{VA(db)} offset:{off + tt*4096}") for db in range(8) for tt in range(2)]

    def sm_stream(self, buf, qs=(0, 1, 2, 3)):
        r = []
        def post(e):
            q, i = e // 8, e % 8
            b = S(buf, q)
            if q in self.a.vsum:
                if i == 1: r.append((e, I(f"v_add_f32 v{X(q)}, v{b}, v{b+1}")))
                elif i > 1: r.append((e, I(f"v_add_f32 v{X(q)}, v{X(q)}, v{b+i}")))
            if i % 2 == 1:
                if self.a.perm: r.append((e, I(f"v_perm_b32 v{b+i//2}, v{b+i}, v{b+i-1}, s{S_PERM}")))
                else: r.append((e, I(f"v_cvt_pk_bf16_f32 v{b+i//2}, v{b+i-1}, v{b+i}")))
            if self.a.sum4:
                if i in (3, 7): r.append((e, ("SUM", buf, q, i // 4)))
            elif i == 7 and q not in self.a.vsum: r.append((e, ("SUM", buf, q)))
        e0, e1 = 8 * qs[0], 8 * qs[-1] + 8
        for e in range(e0, e1):
            r.append((e, I(f"v_exp_f32 v{S(buf,0)+e}, v{S(buf,0)+e}")))
            if e > e0: post(e - 1)
        post(e1 - 1)
        return r

    def flat_stream(self, items):
        r = []
        for x in items:
            if isinstance(x, tuple):
                r += [I("s_nop 1"), self.sum_mfma(*x[1:])]
            else:
                if r and r[-1].is_trans and set(r[-1].dst) & set(x.src): r.append(I("s_nop 0"))
                r.append(x)
        return r

    def rowmax(self, b, t0, t1):
        return [I(f"v_max3_f32 v{t0}, v{b}, v{b+1}, v{b+2}"), I(f"v_max3_f32 v{t1}, v{b+3}, v{b+4}, v{b+5}"),
                I(f"v_max3_f32 v{t0}, v{t0}, v{b+6}, v{b+7}"), I(f"v_max_f32 v{t0}, v{t0}, v{t1}"),
                I(f"v_mov_b32 v{t1}, v{t0}"), I("s_nop 1"), I(f"v_permlane16_swap_b32 v{t0}, v{t1}"), I("s_nop 1"),
                I(f"v_max_f32 v{t0}, v{t0}, v{t1}"),
                I(f"v_mov_b32 v{t1}, v{t0}"), I("s_nop 1"), I(f"v_permlane32_swap_b32 v{t0}, v{t1}"), I("s_nop 1")]

    def maxfix_first(self, buf, qs):
        r = []
        ts = {q: (T + 2 * i, T + 2 * i + 1) for i, q in enumerate(qs)}
        def each(f):
            for q in qs: r.append(I(f(q, S(buf, q), *ts[q])))
        pad = [I("s_nop 1")] if len(qs) < 3 else []
        each(lambda q, b, t0, t1: f"v_max3_f32 v{t0}, v{b}, v{b+1}, v{b+2}")
        each(lambda q, b, t0, t1: f"v_max3_f32 v{t1}, v{b+3}, v{b+4}, v{b+5}")
        each(lambda q, b, t0, t1: f"v_max3_f32 v{t0}, v{t0}, v{b+6}, v{b+7}")
        each(lambda q, b, t0, t1: f"v_max_f32 v{t0}, v{t0}, v{t1}")
        for sw in ("v_permlane16_swap_b32", "v_permlane32_swap_b32"):
            each(lambda q, b, t0, t1: f"v_mov_b32 v{t1}, v{t0}")
            r += pad
            each(lambda q, b, t0, t1: f"{sw} v{t0}, v{t1}")
            r += pad
            each(lambda q, b, t0, t1: f"v_max_f32 v{t0}, v{t0}, v{t1}")
        for q in qs:
            t0 = ts[q][0]
            for i in range(4): r.append(I(f"v_sub_f32 v{NEGM(q)+i}, 0, v{t0}"))
            for i in range(8): r.append(I(f"v_sub_f32 v{S(buf,q)+i}, v{S(buf,q)+i}, v{t0}"))
        return r

    def slow_path(self, u, label, has_next, xored, qs=(0, 1, 2, 3), reload_k=None):
        cur, nxt = u % 2, (u + 1) % 2
        r = [I(f"{label}:")]
        x = [I(f"v_xor_b32 v{KA(ds)}, 0x8000, v{KA(ds)}") for ds in range(4)] if xored else []
        r += [I("s_nop 3")] + x + self.k_reads(u) + [I(i.text) for i in x]
        r.append(I("s_waitcnt lgkmcnt(0)"))
        r += self.qk_mfmas(cur, qs=qs)
        r.append(I("s_nop 7"))
        if reload_k is not None: r += self.k_reads(reload_k)
        t0, t1, t2 = T, T + 1, T + 2
        for q in qs:
            b = S(cur, q)
            r += self.rowmax(b, t0, t1)
            r.append(I(f"v_max3_f32 v{t0}, v{t0}, v{t1}, 0"))
            r.append(I(f"v_exp_f32 v{t2}, -v{t0}"))
            for i in range(4): r.append(I(f"v_sub_f32 v{NEGM(q)+i}, v{NEGM(q)+i}, v{t0}"))
            r.append(I(f"v_mul_f32 v{L(q)}, v{L(q)}, v{t2}"))
            if has_next:
                for i in range(8): r.append(I(f"v_sub_f32 v{S(nxt,q)+i}, v{S(nxt,q)+i}, v{t0}"))
            for i in range(32): r.append(I(f"v_mul_f32 v{O(q,0)+i}, v{O(q,0)+i}, v{t2}"))
            for i in range(8): r.append(I(f"v_sub_f32 v{b+i}, v{b+i}, v{t0}"))
        r += self.flat_stream([x for _, x in self.sm_stream(cur, qs)])
        r.append(I("s_nop 7"))
        if reload_k is not None: r.append(I("s_waitcnt lgkmcnt(0)"))
        r.append(I(f"s_branch {label}_ret"))
        return r

    def schedule(self, mfmas, stream, others, tail=(), tail_lag=None, fin=(), nxt_stream=None):
        out = []
        if tail_lag is None: tail_lag = 5 if self.a.sum4 else 8
        M = list(mfmas); stream = list(stream); tail = list(tail)
        others = sorted(others, key=lambda x: (x.early, x.late))
        kind = lambda o: "s" if o.ins[0].is_salu else ("d" if o.ins[0].is_ds else ("m" if o.ins[0].is_vmem else "v"))
        pend = []
        last_sum_pos = None
        def states_since(idx): return sum(i.states for i in out[idx + 1:])
        g = -1
        def pop_markers():
            while stream and isinstance(stream[0], tuple):
                x = stream.pop(0); pend.append([self.sum_mfma(*x[1:]), len(out) - 1])
        def last_real():
            return out[-1]
        def ok(n):
            l = last_real()
            return not (l.is_trans and set(l.dst) & set(n.src))
        def take(k, overdue=False):
            for o in others:
                if kind(o) == k and (o.late <= g if overdue else o.early <= g):
                    others.remove(o); return o
            return None
        def small_v():
            pop_markers()
            o = take("v", True)
            if o: return o.ins
            if stream and stream[0].cost == 4 and ok(stream[0]): return [stream.pop(0)]
            if tail and g >= 2 and not stream and not pend and (last_sum_pos is None or states_since(last_sum_pos) >= tail_lag):
                return [tail.pop(0)]
            o = take("v")
            if o: return o.ins
            return None
        while M or pend or any(isinstance(x, tuple) for x in stream):
            if pend and states_since(pend[0][1]) >= 2:
                out.append(pend.pop(0)[0]); last_sum_pos = len(out) - 1
                if out[-1].passes == 2 and M: out.append(M.pop(0))
            elif M:
                out.append(M.pop(0))
            elif pend:
                out.append(I("s_nop 1")); out.append(pend.pop(0)[0]); last_sum_pos = len(out) - 1
            else:
                while stream and not isinstance(stream[0], tuple):
                    if not ok(stream[0]): out.append(I("s_nop 0"))
                    out.append(stream.pop(0))
                pop_markers(); continue
            g += 1
            is_last = not M and not pend and not any(isinstance(x, tuple) for x in stream)
            if is_last and fin: break
            o = take("s")
            if o: out += o.ins
            pop_markers()
            nxt_exp = bool(stream) and stream[0].cost == 8
            o = take("m", True) or take("d", True)
            if not o and not nxt_exp: o = take("d") or take("m")
            if o:
                out += o.ins
                if kind(o) == "d":
                    v = small_v()
                    if v: out += v
            elif nxt_exp:
                out.append(stream.pop(0))
            else:
                for _ in range(2):
                    v = small_v()
                    if v: out += v
            pop_markers()
        for x in stream:
            if not ok(x): out.append(I("s_nop 0"))
            out.append(x)
        for o in others: out += o.ins
        if tail:
            if last_sum_pos is not None and states_since(last_sum_pos) < tail_lag:
                out.append(I(f"s_nop {tail_lag - states_since(last_sum_pos) - 1}"))
            out += tail
        out += list(fin)
        if fin and nxt_stream and self.a.fin_exp and not isinstance(nxt_stream[0], tuple):
            out.append(nxt_stream.pop(0))
        return out

    def insert_waits(self, seq, pending):
        out = []
        pend = list(pending)
        pend = [(p, -1) for p in pend]
        last_m = -1
        for x in seq:
            if x.op == "s_waitcnt" and "lgkmcnt" in x.text:
                import re
                k = int(re.search(r"lgkmcnt\((\d+)\)", x.text).group(1))
                pend = pend[len(pend) - k:] if 0 < k < len(pend) else ([] if k == 0 else pend)
            if x.is_mfma or (x.is_vmem and "store" in x.op):
                need = [i for i, (p, _) in enumerate(pend) if p & set(x.src)]
                if need:
                    j = max(need)
                    pos = last_m + 1 if (pend[j][1] <= last_m and x.is_mfma) else len(out)
                    if x.is_mfma and self.a.wait_early and any(y.op.startswith("s_cbranch") or y.op == "s_barrier" for y in out[last_m + 1:]):
                        pm = max((k for k in range(last_m) if out[k].is_mfma and out[k].passes > 2), default=-1)
                        if pm >= 0 and pend[j][1] <= pm and not any(y.is_label for y in out[pm:last_m]):
                            pos = pm + 1; last_m += 1
                    n = sum(1 for (p, q) in pend[j + 1:] if q < pos)
                    n = min(n, 15)
                    out.insert(pos, I(f"s_waitcnt lgkmcnt({n})"))
                    pend = [(p, q + (1 if q >= pos else 0)) for (p, q) in pend[j + 1:]]
                if x.is_mfma and x.passes > 2: last_m = len(out)
            if x.is_ds: pend.append((set(x.dst), len(out)))
            out.append(x)
        return out, [p for p, _ in pend]

    def check_ins(self, qs=(0, 1, 2, 3)):
        if len(qs) == 2:
            return [I(f"v_max_f32 v{T}, v{X(qs[0])}, v{X(qs[1])}"), I(f"v_cmp_lt_f32 vcc, {THR:#x}, v{T}")]
        return [I(f"v_max3_f32 v{T}, v{X(0)}, v{X(1)}, v{X(2)}"), I(f"v_max_f32 v{T}, v{T}, v{X(3)}"),
                I(f"v_cmp_lt_f32 vcc, {THR:#x}, v{T}")]

    def split_stream(self, buf):
        sm = self.sm_stream(buf)
        idx = next(i for i, (e, x) in enumerate(sm) if e == self.a.split and isinstance(x, I) and x.is_trans)
        return [x for _, x in sm[:idx]], [x for _, x in sm[idx:]]

    def phaseA(self, u, rest, has_qk=True, extra=(), xored=False, tag=""):
        a = self.a
        nxt = (u + 1) % 2
        vreads = self.v_reads(u)
        label = f"L_slow_{u}{tag}"
        others = [Item(v, g, g + a.v_slack) for v, g in zip(vreads, a.vplan)]
        others += list(extra)
        fin = [I(f"s_cbranch_vccnz {label}"), I(f"{label}_ret:")]
        if has_qk:
            first, nrest = self.split_stream(nxt)
            o = self.schedule(self.qk_mfmas(nxt), rest, others, tail=self.check_ins(), fin=fin, nxt_stream=first)
        else:
            first, nrest = [], []
            o = list(vreads[:8])
            fl = self.flat_stream(rest)
            o += fl[:4] + vreads[8:] + fl[4:] + [I("s_nop 7")] + self.check_ins() + fin
        self.slow += self.slow_path(u, label, has_qk, xored)
        return o, first, nrest

    def phaseB(self, u, stream, has_kreads=True, barrier=None, extra=(), last=False):
        a = self.a
        cur = u % 2
        others = []
        if barrier is not None:
            others.append(Item([I(f"s_waitcnt vmcnt({barrier})")], a.bar_gap, a.bar_gap))
            others.append(Item([I("s_barrier")], a.bar_gap + 1, a.bar_gap + 1))
        if has_kreads:
            others += [Item(k, g, g + a.k_slack) for k, g in zip(self.k_reads(u + 2), a.kplan)]
        for q in range(4):
            others.append(Item(I(f"v_add_f32 v{L(q)}, v{L(q)}, v{X(q)}"), 0, 9 + 3 * q))
        others += list(extra)
        return self.schedule(self.pv_mfmas(cur, qmajor=last), stream, others)

    def hsplit(self, buf, qs):
        sm = self.sm_stream(buf, qs)
        idx = next(i for i, (e, x) in enumerate(sm) if e == 8 * qs[0] + self.a.hsplit and isinstance(x, I) and x.is_trans)
        return [x for _, x in sm[:idx]], [x for _, x in sm[idx:]]

    def site(self, u, qs, has_next, reload_k=None):
        label = f"L_slow_{u}_h{qs[0]}"
        self.slow += self.slow_path(u, label, has_next, False, qs, reload_k)
        return [I(f"s_cbranch_vccnz {label}"), I(f"{label}_ret:")]

    def phaseAh(self, u, qs, rest, qk=None, nxt_first=None, has_next=True, extra=(), vread=True):
        a = self.a
        v = self.v_reads(u, VFB(u)) if vread else []
        fin = self.site(u, qs, has_next)
        if qk:
            others = [Item([v[2 * db], v[2 * db + 1]], max(0, g - a.hv_early), g + a.hv_slack) for db, g in enumerate(a.hvplan) if v] + list(extra)
            return self.schedule(self.qk_mfmas(qk[0] % 2, qs=qk[1]), rest, others, tail=self.check_ins(qs), fin=fin, nxt_stream=nxt_first)
        return self.flat_stream(rest) + [I("s_nop 7")] + self.check_ins(qs) + [I("s_nop 3")] + fin

    def phaseBh(self, u, qs, stream, kread=None, barrier=None, extra=(), last=False, chk=None):
        a = self.a
        others = []
        if barrier is not None:
            others.append(Item([I(f"s_waitcnt vmcnt({barrier})")], 0, 0))
            others.append(Item([I("s_barrier")], 1, 1))
        if kread is not None:
            others += [Item(k, max(0, g - a.hk_early), g + a.hk_slack) for k, g in zip(self.k_reads(kread), a.hkplan)]
        for i, q in enumerate(qs):
            others.append(Item(I(f"v_add_f32 v{L(q)}, v{L(q)}, v{X(q)}"), 0, 5 + 3 * i))
        others += list(extra)
        return self.schedule(self.pv_mfmas(u % 2, qmajor=last, qs=qs, vb=VFB(u)), stream, others)

    INV = {0: 192, 1: 196, 2: 198, 3: 192}
    VO = T + 5
    WA = 208
    def epi_setup(self):
        va, vw, vrd = T + 8, T + 3, T + 4
        r = [f"v_mbcnt_lo_u32_b32 v{va}, -1, 0", f"v_mbcnt_hi_u32_b32 v{va}, -1, v{va}",
             f"v_lshlrev_b32 v{self.VO}, 4, v{va}", f"v_and_b32 v{va+1}, 15, v{va}", f"v_lshrrev_b32 v{va}, 4, v{va}",
             f"v_lshlrev_b32 v{vw}, 3, v{va}", f"v_lshlrev_b32 v{vrd}, 4, v{va+1}", f"v_xor_b32 v{vw}, v{vw}, v{vrd}",
             f"v_lshl_add_u32 v{vw}, v{va+1}, 8, v{vw}", f"v_add_u32 v{vw}, s{S_KW}, v{vw}"]
        r2 = [f"v_xor_b32 v{self.WA+db}, {db*32:#x}, v{vw}" for db in range(8)]
        r3 = [f"s_lshl_b32 s{S_T0}, s{S_W}, 14", f"s_add_u32 s{S_T1}, s{S_T0}, 4096"]
        return [I(x) for x in r], [I(x) for x in r2], [I(x) for x in r3]
    def epi_pack(self, q, pk=True):
        r = []
        for db in range(8):
            b = O(q, db)
            if pk: g = [I(f"v_pk_mul_f32 {vr(b+i,2)}, {vr(b+i,2)}, {vr(self.INV[q],2)} op_sel_hi:[1,0]") for i in (0, 2)]
            else: g = [I(f"v_mul_f32 v{b+i}, v{b+i}, v{self.INV[q]}") for i in range(4)]
            g += [I(f"v_cvt_pk_bf16_f32 v{b+i}, v{b+2*i}, v{b+2*i+1}") for i in range(2)]
            g.append(I(f"ds_write_b64 v{self.WA+db}, {vr(b,2)} offset:{(q % 2) * 16384}"))
            r += g
        return r
    def l_finish(self, qs):
        r = []
        red = [q for q in qs if self.a.sum4 or q in self.a.vsum]
        for sw in ("v_permlane16_swap_b32", "v_permlane32_swap_b32"):
            if not red: break
            r += [I(f"v_mov_b32 v{T+6+k}, v{L(q)}") for k, q in enumerate(red)] + [I("s_nop 1")]
            r += [I(f"{sw} v{T+6+k}, v{L(q)}") for k, q in enumerate(red)] + [I("s_nop 1")]
            r += [I(f"v_add_f32 v{L(q)}, v{L(q)}, v{T+6+k}") for k, q in enumerate(red)]
        return r + [I(f"v_rcp_f32 v{self.INV[q]}, v{L(q)}") for q in qs]
    def epi_buf(self, q, j): return S(q % 2, 0) + 4 * j
    def epi_read(self, q):
        return [I(f"ds_read_b128 {vr(self.epi_buf(q,j),4)}, v{KD(j)} offset:{(q % 2) * 16384 + j*1024}") for j in range(4)]
    def epi_store(self, q):
        return [I(" ".join(f"buffer_store_dwordx4 {vr(self.epi_buf(q,j),4)}, v{self.VO}, {srd(SO)}, s{S_T0 + q % 2} offen offset:{j*1024} {self.a.omod if q < self.a.nt_upto else self.a.omod2}".split()))
                for j in range(4)]

    def tail_split(self, rest28):
        a = self.a
        H0, H1 = (0, 1), (2, 3)
        o = []
        rest = []
        su1, su2, su3 = self.epi_setup()
        for u in (28, 29, 30):
            first, nrest = self.hsplit((u + 1) % 2, H0)
            ex = [Item(x, 1 + i // 2, 1 + i // 2) for i, x in enumerate(su1)] + [Item(x, 8 + i, 8 + i) for i, x in enumerate(su3)] if u == 28 else []
            o += self.phaseAh(u, H0, rest, qk=(u + 1, H0), nxt_first=first, extra=ex)
            if a.tstamp: o += self.stamp()
            o += self.phaseBh(u, H0, first, kread=(u + 2 if u < 30 else 29), barrier=(0 if u == 29 else None))
            if a.tstamp: o += self.stamp()
            rest = nrest
        r28 = list(rest28)
        o += self.phaseAh(31, H0, rest, qk=(29, H1), nxt_first=r28, has_next=False)
        if a.tstamp: o += self.stamp()
        o += self.phaseBh(31, H0, r28, kread=30, last=a.h0_qmajor)
        if a.tstamp: o += self.stamp()
        o += self.stamp()
        pk0 = self.epi_pack(0)
        o += self.l_finish(H0) + su2 + self.check_ins(H1)
        o += pk0[:10] + self.site(28, H1, True, reload_k=30) + pk0[10:] + self.epi_read(0)
        st0, st1 = self.epi_store(0), self.epi_store(1)
        p1 = self.epi_pack(1)
        for j in range(4): o += p1[10 * j:10 * j + 10] + ([st0[j]] if j < a.st_flat else [])
        o += self.epi_read(1)
        if a.tstamp: o += self.stamp()
        stores = st0[a.st_flat:] + st1
        slots = [(0, g) for g in a.st_b28] + [(1, g) for g in a.st_a29] + [(2, g) for g in a.st_b29]
        sp = [[], [], []]
        for x, (ph, g) in zip(stores, slots): sp[ph].append(Item(x, g, g + 1))
        assert len(stores) <= len(slots)
        first, rest = self.hsplit(29 % 2, H1)
        o += self.phaseBh(28, H1, first, extra=sp[0])
        if a.tstamp: o += self.stamp()
        for k, u in enumerate((29, 30)):
            first, nrest = self.hsplit((u + 1) % 2, H1)
            o += self.phaseAh(u, H1, rest, qk=(u + 1, H1), nxt_first=first, extra=(sp[1] if k == 0 else []), vread=False)
            if a.tstamp: o += self.stamp()
            if u == 30:
                first, nrest = first + nrest[:a.last_more], nrest[a.last_more:]
            o += self.phaseBh(u, H1, first, kread=(31 if u == 29 else None), extra=(sp[2] if k == 0 else []))
            if a.tstamp: o += self.stamp()
            rest = nrest
        o += self.phaseAh(31, H1, rest, qk=None, has_next=False, vread=False)
        if a.tstamp: o += self.stamp()
        pre = self.l_finish(H1)
        pre += [I(f"v_add_u32 v{self.WA+db}, 0x10000, v{self.WA+db}") for db in range(8)]
        pre += [I(f"v_add_u32 v{KD(j)}, 0x10000, v{KD(j)}") for j in range(4)]
        ex = []
        g = 2
        for x in pre:
            ex.append(Item(x, int(g), int(g))); g += 1 if x.is_trans else 0.5
        ex += [Item(I(f"s_add_u32 s{S_T0}, s{S_T0}, 8192"), 3, 3), Item(I(f"s_add_u32 s{S_T1}, s{S_T1}, 8192"), 4, 4)]
        o += self.phaseBh(31, H1, [], last=True, extra=ex)
        if a.tstamp: o += self.stamp()
        o += self.stamp()
        p3 = self.epi_pack(3); st2 = self.epi_store(2)
        o += self.epi_pack(2) + self.epi_read(2)
        for j in range(4): o += p3[10 * j:10 * j + 10] + [st2[j]]
        o += self.epi_read(3) + self.epi_store(3)
        return o

    def dma_items(self, which, t, post=(), static=False):
        a = self.a
        m0, lds = self.dma_tile(which, t, static)
        gs = [a.d_early + n * a.d_step for n in range(4)]
        its = [Item(m0, max(gs[0] - 2, 0), gs[0] - 1)]
        for n in range(4): its.append(Item(lds[n], gs[n], gs[n] + a.d_slack))
        for p in post: its.append(Item(p, gs[3] + a.d_slack + 1, gs[3] + a.d_slack + 3))
        return its

    def prologue(self):
        e, a = self.e, self.a
        if a.stamp:
            e("s_memtime s[48:49]"); e("s_memrealtime s[50:51]")
        if a.spin_end or a.spin_loop or a.spin_epi: e("s_memrealtime s[64:65]")
        e("s_cmp_ge_u32 s2, 256"); e("s_cbranch_scc1 L_end")
        e("s_load_dwordx4 s[4:7], s[0:1], 0"); e("s_load_dwordx4 s[8:11], s[0:1], 16")
        if a.stamp: e(f"s_load_dwordx2 s[{SWS}:{SWS+1}], s[0:1], 40")
        vl, vg, vt, vu = T, T + 1, T + 2, T + 3
        if a.cpf:
            e("s_getpc_b64 s[62:63]")
            e("L_pc0:")
            e(f"v_lshlrev_b32 v{T+9}, 7, v0")
            e(f"v_cmp_gt_u32 vcc, L_slow_0-L_pc0+128, v{T+9}")
            e("s_and_saveexec_b64 s[60:61], vcc")
            e("s_cbranch_execz L_cpf_skip")
            e(f"global_load_dword v{T+8}, v{T+9}, s[62:63]")
            e("L_cpf_skip:")
            e("s_mov_b64 exec, s[60:61]")
        e(f"v_lshrrev_b32 v{vt}, 6, v0")
        e(f"v_and_b32 v{vl}, 63, v0", "lane")
        e(f"v_readfirstlane_b32 s{S_W}, v{vt}")
        e(f"s_and_b32 s{S_T0}, s2, 7"); e(f"s_lshr_b32 s{S_T1}, s2, 3")
        e(f"s_lshl_b32 s{S_T0}, s{S_T0}, 4"); e(f"s_lshr_b32 s{S_T2}, s{S_T1}, 1")
        e(f"s_add_u32 s{S_T0}, s{S_T0}, s{S_T2}", "kv head index")
        e(f"s_and_b32 s{S_T1}, s{S_T1}, 1"); e(f"s_lshl_b32 s{S_T2}, s{S_T0}, 1")
        e(f"s_add_u32 s{S_T1}, s{S_T1}, s{S_T2}", "q head index")
        e(f"s_lshl_b32 s{S_T0}, s{S_T0}, 18"); e(f"s_lshl_b32 s{S_T1}, s{S_T1}, 16")
        e(f"s_lshl_b32 s{S_KW}, s{S_W}, 12")
        e(f"v_lshrrev_b32 v{vg}, 4, v{vl}", "g = lane>>4")
        e(f"v_and_b32 v{vt}, 15, v{vl}", "i = lane&15")
        e(f"v_xor_b32 v{vu}, v{vt}, v{vg}")
        e(f"v_lshlrev_b32 v{vu}, 4, v{vu}")
        e(f"v_lshl_add_u32 v{KD(0)}, v{vg}, 8, v{vu}")
        e(f"v_add_u32 v{KD(0)}, s{S_KW}, v{KD(0)}")
        for n in range(1, 4): e(f"v_xor_b32 v{KD(n)}, {n<<6:#x}, v{KD(0)}")
        e(f"s_lshl_b32 s{S_QL}, s{S_W}, 14")
        e(f"s_cmp_lt_u32 s{S_W}, 2"); e(f"s_cselect_b32 s{S_QG}, 2, 1"); e(f"s_lshl_b32 s{S_QG}, s{S_QG}, 16")
        e(f"s_add_u32 s{S_QL}, s{S_QL}, s{S_QG}", "q lds base")
        e(f"s_mul_i32 s{S_QG}, s{S_W}, 12288")
        e("s_waitcnt lgkmcnt(0)")
        if a.stamp:
            e("s_memtime s[52:53]"); e("s_memrealtime s[54:55]"); e("s_waitcnt lgkmcnt(0)")
        def mksrd(sr, p, off, n):
            e(f"s_add_u32 s{sr}, s{p}, s{off}"); e(f"s_addc_u32 s{sr+1}, s{p+1}, 0")
            e(f"s_mov_b32 s{sr+2}, {n}"); e(f"s_mov_b32 s{sr+3}, 0x20000")
        def vd_setup():
            e(f"v_lshlrev_b32 v{vu}, 1, v{vg}")
            e(f"v_xor_b32 v{vu}, v{vt}, v{vu}")
            e(f"v_lshlrev_b32 v{vu}, 4, v{vu}")
            e(f"v_lshl_add_u32 v{VD(0)}, v{vg}, 8, v{vu}")
            e(f"v_add_u32 v{VD(0)}, s{S_KW}, v{VD(0)}")
            e(f"v_xor_b32 v{VD(1)}, 0x80, v{VD(0)}")
        def qgrp(grp):
            r = [I(f"s_add_u32 m0, s{S_QL}, {grp*4096}"), I(f"s_add_u32 s{S_T2}, s{S_QG}, {grp*4096}")]
            for n in range(4):
                ld = I(" ".join(f"buffer_load_dwordx4 v{KD(n)}, {srd(SQ)}, s{S_T2} offen offset:{n*1024} {a.qmod} lds".split()))
                ld.dma = f"Q{grp}"
                r.append(ld)
            return r
        def tile(which, t):
            m0, lds = self.dma_tile(which, t, static=True)
            return [m0, I(f"s_mov_b32 s{S_G if which == 'K' else S_GV}, {t*16384}")] + lds
        QA = X(3)
        def setup():
            if a.stamp:
                e(f"s_mov_b32 s{SWS+2}, 0x1000000"); e(f"s_mov_b32 s{SWS+3}, 0x20000")
                e(f"s_lshl_b32 s{S_WSO}, s2, 2"); e(f"s_add_u32 s{S_WSO}, s{S_WSO}, s{S_W}"); e(f"s_lshl_b32 s{S_WSO}, s{S_WSO}, 9")
                e(f"v_accvgpr_write_b32 a{ST0}, 0"); e(f"v_accvgpr_write_b32 a{ST1}, 0"); e(f"s_mov_b32 s{S_SI}, 2")
                e("s_mov_b64 exec, 1"); e(f"v_accvgpr_write_b32 a{ST0}, s48"); e(f"v_accvgpr_write_b32 a{ST1}, s50")
                e("s_mov_b64 exec, 2"); e(f"v_accvgpr_write_b32 a{ST0}, s52"); e(f"v_accvgpr_write_b32 a{ST1}, s54")
                e("s_mov_b64 exec, -1")
                self.emit(self.stamp())
            e(f"v_xor_b32 v{vu}, v{vt}, v{vg}")
            e(f"v_lshlrev_b32 v{vu}, 4, v{vu}")
            e(f"v_lshl_add_u32 v{KA(0)}, v{vt}, 8, v{vu}")
            for ds in range(1, 4): e(f"v_xor_b32 v{KA(ds)}, {ds<<6:#x}, v{KA(0)}")
            e(f"v_lshrrev_b32 v{vu}, 2, v{vl}", "key = lane>>2")
            e(f"v_lshlrev_b32 v{VA(0)}, 8, v{vu}")
            e(f"v_and_b32 v{vu}, 7, v{vu}")
            e(f"v_lshl_add_u32 v{VA(0)}, v{vu}, 5, v{VA(0)}")
            e(f"v_and_b32 v{vu}, 3, v{vl}")
            e(f"v_lshl_add_u32 v{VA(0)}, v{vu}, 3, v{VA(0)}")
            e(f"v_add_u32 v{VA(0)}, 0x10000, v{VA(0)}")
            for db in range(1, 8): e(f"v_xor_b32 v{VA(db)}, {db<<5:#x}, v{VA(0)}")
            for ds in range(4): e(f"v_add_u32 v{QA+ds}, s{S_QL}, v{KA(ds)}")
            e(f"s_mov_b32 s{S_C}, {f2u(CSC):#x}"); e(f"s_mov_b32 s{S_C+1}, {f2u(CSC):#x}")
            if a.perm: e(f"s_mov_b32 s{S_PERM}, 0x07060302")
            for q in range(4): e(f"v_mov_b32 v{L(q)}, 0")
            e(f"v_mov_b32 v{vu}, 0x3f803f80")
            for i in range(4): e(f"v_accvgpr_write_b32 a{ONES+i}, v{vu}")
            for i in range(128): e(f"v_mov_b32 v{i}, 0")
            if a.unroll == 2:
                e(f"s_mov_b32 s{S_PB}, s{S_KW}"); e(f"s_add_u32 s{S_PB2}, s{S_KW}, 0x8000")
            e(f"s_mov_b32 s{S_CNT}, {16 // a.unroll}")
        RAW = S(1, 0); TMP = S(1, 2)
        def qproc(q, early=(), mid=(), fuse=False):
            e(f"s_waitcnt vmcnt({self.vm_needed([f'Q{q}'])})")
            for ds in range(4): e(f"ds_read_b128 {vr(RAW+4*ds,4)}, v{QA+ds} offset:{q*4096}")
            self.emit(early)
            mf = lambda ds: [I(f"{MF} {vr(S(0,q)+4*kb2,4)}, {ar(KF(kb2,ds),4)}, {vr(RAW+4*ds,4)}, {vr(S(0,q)+4*kb2,4) if ds else 0}") for kb2 in range(2)]
            for ds in range(4):
                if ds == 2: self.emit(mid)
                e(f"s_waitcnt lgkmcnt({3-ds})")
                for k in range(4):
                    e(f"v_lshlrev_b32 v{TMP+2*k}, 16, v{RAW+4*ds+k}")
                    e(f"v_and_b32 v{TMP+2*k+1}, 0xffff0000, v{RAW+4*ds+k}")
                    if fuse and ds and k in (0, 2): self.emit([mf(ds - 1)[k // 2]])
                for k in range(4): e(f"v_pk_mul_f32 {vr(TMP+2*k,2)}, {vr(TMP+2*k,2)}, s[{S_C}:{S_C+1}]")
                for k in range(4): e(f"v_cvt_pk_bf16_f32 v{RAW+4*ds+k}, v{TMP+2*k}, v{TMP+2*k+1}")
                if not fuse:
                    for k in range(4): e(f"v_accvgpr_write_b32 a{Q(q,ds)+k}, v{RAW+4*ds+k}")
            if fuse:
                w = [I(f"v_accvgpr_write_b32 a{Q(q,0)+k}, v{RAW+k}") for k in range(16)]
                m = mf(3)
                self.emit(w[:2] + [m[0]] + w[2:4] + [m[1]] + w[4:])
        sm = self.sm_stream(0)
        pos = lambda e0: next(i for i, (ee, x) in enumerate(sm) if ee == e0 and isinstance(x, I) and x.is_trans)
        part = lambda a0, a1: self.flat_stream([x if isinstance(x, tuple) else I(x.text) for _, x in sm[a0:a1]])
        idx = pos(a.split)
        qk = lambda *qs: self.emit([I("s_nop 0")] + self.qk_mfmas(0, zero_c=True, qs=qs))

        def variantA():
            mksrd(SQ, 4, S_T1, 65536)
            self.emit(qgrp(0)); self.emit(qgrp(1))
            mksrd(SK, 6, S_T0, 262144)
            mksrd(SV, 8, S_T0, 262144); mksrd(SO, 10, S_T1, 65536)
            vd_setup(); setup()
            queue = [tile("K", 0), qgrp(2), qgrp(3), tile("V", 0), tile("K", 1), tile("K", 2), tile("V", 1)]
            flat = []
            for grp in queue:
                lds = [x for x in grp if x.is_vmem]; hd = [x for x in grp if not x.is_vmem]
                for n, x in enumerate(lds): flat.append((hd if n == 0 else []) + [x])
            def take(n):
                r = []
                for _ in range(n):
                    if flat: r += flat.pop(0)
                return r
            self.emit(take(a.ahead))
            self.emit(self.stamp())
            h = a.mid
            qproc(0, take(4 - h), take(h))
            qproc(1, take(4 - h), take(h))
            self.emit(self.stamp())
            e(f"s_waitcnt vmcnt({self.vm_needed(['K0'])})")
            self.emit(take(4 - h))
            e("s_barrier")
            self.emit(self.k_reads(0))
            e("s_waitcnt lgkmcnt(0)")
            qk(0, 1)
            self.emit(take(h))
            e("s_nop 7")
            self.emit(self.maxfix_first(0, (0, 1)))
            self.emit(part(0, pos(16)))
            self.emit(self.stamp())
            qproc(2, take(4 - h), take(h), fuse=True)
            self.emit(self.stamp())
            qproc(3, take(4 - h), take(h), fuse=True)
            self.emit(self.k_reads(1))
            self.emit(self.maxfix_first(0, (2, 3)))
            self.emit(part(pos(16), idx))
            e(f"s_waitcnt vmcnt({self.vm_needed(['V0'])}) lgkmcnt(0)")
            self.emit(take(99))
            e("s_barrier", "V0 visible; Q staging slots free")
            self.emit(self.stamp())

        def variantB():
            mksrd(SK, 6, S_T0, 262144)
            self.emit(tile("K", 0))
            mksrd(SV, 8, S_T0, 262144)
            vd_setup()
            self.emit(tile("V", 0))
            if a.b_k1: self.emit(tile("K", 1))
            mksrd(SQ, 4, S_T1, 65536); mksrd(SO, 10, S_T1, 65536)
            setup()
            e(f"s_waitcnt vmcnt({a.b_wait})")
            for g in range(4): self.emit(qgrp(g))
            if not a.b_k1: self.emit(tile("K", 1))
            self.emit(self.stamp())
            e(f"s_waitcnt vmcnt({self.vm_needed(['K0'])})")
            e("s_barrier")
            self.emit(self.k_reads(0))
            qproc(0)
            qk(0)
            self.emit(tile("V", 1))
            self.emit(self.stamp())
            qproc(1)
            qk(1)
            self.emit(self.maxfix_first(0, (0,)))
            self.emit(tile("K", 2))
            self.emit(part(0, pos(8)))
            self.emit(self.stamp())
            qproc(2)
            qk(2)
            self.emit(self.maxfix_first(0, (1,)))
            self.emit(part(pos(8), pos(16)))
            self.emit(self.maxfix_first(0, (2,)))
            self.emit(part(pos(16), idx))
            self.emit(self.stamp())
            qproc(3)
            qk(3)
            self.emit(self.k_reads(1))
            e(f"s_waitcnt vmcnt({self.vm_needed(['V0','K1'])})")
            e("s_barrier", "V0,K1 visible; Q staging slots free")
            self.emit(tile("V", 2))
            self.emit(self.maxfix_first(0, (3,)))
            self.emit(tile("K", 3))
            e("s_waitcnt lgkmcnt(0)")
            self.emit(self.stamp())

        self.alt = None
        if a.ab:
            e(f"s_bitcmp1_b32 s2, {a.ab_bit}")
            e("s_cbranch_scc0 L_varA")
            nh = len(self.out)
            variantB()
            e("s_branch L_loop")
            self.alt = (nh, len(self.out))
            self.dma_log = []
            e("L_varA:")
        variantA()
        self.first = [I("L_first:"), I(f"s_waitcnt vmcnt({self.vm_needed(['K1'])})"), I("s_barrier")] + tile("K", 3) + [I("s_branch L_first_ret")]
        if a.cpf2:
            self.first += [I(x) for x in ("L_last:", f"v_mbcnt_lo_u32_b32 v{T+9}, -1, 0", f"v_mbcnt_hi_u32_b32 v{T+9}, -1, v{T+9}",
                           f"v_lshlrev_b32 v{T+9}, 7, v{T+9}", f"v_min_u32 v{T+9}, L_end-L_tail, v{T+9}", f"v_add_u32 v{T+9}, L_tail-L_pc0, v{T+9}",
                           f"global_load_dword v{T+8}, v{T+9}, s[62:63]", "s_branch L_last_ret")]
        return [x for _, x in sm[idx:]]

    def epilogue(self):
        e, a = self.e, self.a
        self.emit(self.stamp())
        if a.stamp:
            e("s_waitcnt vmcnt(0)")
            self.emit(self.stamp())
            e(f"v_mbcnt_lo_u32_b32 v0, -1, 0"); e(f"v_mbcnt_hi_u32_b32 v0, -1, v0"); e("v_lshlrev_b32 v0, 2, v0")
            e(f"buffer_store_dword a{ST0}, v0, {srd(SWS)}, s{S_WSO} offen")
            e(f"buffer_store_dword a{ST1}, v0, {srd(SWS)}, s{S_WSO} offen offset:256")
        if a.spin_end:
            e("s_waitcnt vmcnt(0)")
            self.spin(a.spin_end, "L_spin2")
        e("L_end:")
        e("s_endpgm")

    def body(self, rest):
        e, a = self.e, self.a
        U = 2 * a.unroll
        txt = lambda r: [x if isinstance(x, tuple) else x.text for x in r]
        cp = lambda r: [x if isinstance(x, tuple) else I(x.text) for x in r]
        rest0 = txt(rest)
        inc = lambda: I(f"s_add_u32 s{S_G}, s{S_G}, 16384")
        seq = []
        for u in range(U):
            t = u // 2
            exA, exB = [], []
            pre = lambda r: Item(I(f"s_add_u32 s{r}, s{r}, 16384"), 2, a.d_early - 1)
            if u % 2 == 1:
                exB += [pre(S_G)] + self.dma_items("K", t + 4, [I(f"s_xor_b32 s{S_PB}, s{S_PB}, 0x8000")] if (a.unroll == 2 and u == 3) else [])
            else:
                exB += [pre(S_GV)] + self.dma_items("V", t + 2, [I(f"s_xor_b32 s{S_PB2}, s{S_PB2}, 0x8000")] if (a.unroll == 2 and u == 2) else [])
            xored = False
            if a.unroll == 2:
                if u == 2:
                    exA += [Item(I(f"v_xor_b32 v{KA(ds)}, 0x8000, v{KA(ds)}"), 0, 31) for ds in range(4)]
                xored = u >= 2
                if u == 3:
                    for db in range(8):
                        g = a.vplan[2 * db + 1] + a.v_slack + 1
                        if g <= 31: exA.append(Item(I(f"v_xor_b32 v{VA(db)}, 0x8000, v{VA(db)}"), g, 99))
                        else: exB.append(Item(I(f"v_xor_b32 v{VA(db)}, 0x8000, v{VA(db)}"), 0, 31))
            if u == 0:
                exA.append(Item(I(f"s_cmp_eq_u32 s{S_CNT}, {16 // a.unroll}"), a.first_gap - 1, a.first_gap - 1))
                exA.append(Item([I("s_cbranch_scc1 L_first"), I("L_first_ret:")], a.first_gap, a.first_gap))
            if u == a.cpf2_u and a.cpf2:
                exA.append(Item(I(f"s_cmp_eq_u32 s{S_CNT}, 2"), 9, 9))
                exA.append(Item([I("s_cbranch_scc1 L_last"), I("L_last_ret:")], 10, 10))
            if u == U - 1:
                exA.append(Item(I(f"s_sub_u32 s{S_CNT}, s{S_CNT}, 1"), 4, 31))
                exB.append(Item(I(f"s_cmp_eq_u32 s{S_CNT}, 1"), 31, 31))
            o, first, rest = self.phaseA(u, rest, extra=exA, xored=xored)
            seq += o
            seq += self.phaseB(u, first, barrier=(8 if u % 2 == 1 else None), extra=exB)
            if a.stamp and a.stamp_every and u % a.stamp_every == a.stamp_every - 1:
                seq += self.stamp() + [I(f"s_cmp_eq_u32 s{S_CNT}, 1")]
        seq.append(I("s_cbranch_scc0 L_loop"))
        assert txt(rest) == rest0
        _, pend = self.insert_waits(seq, [])
        seq2, pend2 = self.insert_waits(seq, pend)
        assert pend == pend2
        if a.spin_loop: self.spin(a.spin_loop, "L_spin1")
        if a.align: e(f".p2align {a.align}")
        for _ in range(a.pad): e("s_nop 0")
        e("L_loop:")
        n0 = len(self.out)
        self.emit(seq2)
        n1 = len(self.out)
        e("L_tail:")
        if a.spin_epi: self.spin(a.spin_epi, "L_spin3")
        o, _ = self.insert_waits((self.stamp() if not a.stamp_every else []) + self.tail_split(cp(rest)), pend)
        self.emit(o)
        self.check_seq = lambda: self.out[:n1] + self.out[n0:n1] + self.out[n1:]
        self.loop_range = (n0, n1)
        self.tail_range = (n1, len(self.out))

    def build(self):
        rest = self.prologue()
        n0 = len(self.out)
        self.body(rest)
        if self.a.drop:
            pats = self.a.drop.split(",")
            l0, l1 = self.loop_range
            keep = lambda i: not any(i.text.startswith(p.replace("~", " ")) for p in pats) or i.text == "s_waitcnt lgkmcnt(0)"
            self.out = self.out[:l0] + [i for i in self.out[l0:l1] if keep(i)] + self.out[l1:]
            self.nocheck2 = True
        self.epilogue()
        seq = self.check_seq()
        if getattr(self, "nocheck", False):
            return "", []
        if getattr(self, "nocheck2", False):
            probs = []
        elif self.alt:
            nh, nb = self.alt
            probs = check(seq[:nh] + seq[nb:], "mainA", verbose=False)
            probs += check(seq[:nb] + seq[self.loop_range[0]:], "mainB", verbose=False)
        else:
            probs = check(seq, "main", verbose=False)
        probs += check(self.slow, "slow", verbose=False)
        hdr = open("standalone__gqa_softmax__near_ridge.s.ref").read().split("; Override")[0]
        txt = hdr + "; @launch grid=(256,1,1) block=(256,1,1) lds=163840\n"
        txt += '.amdgcn_target "amdgcn-amd-amdhsa--gfx950"\n.text\n'
        txt += f".globl {KNAME}\n.p2align 8\n.type {KNAME},@function\n{KNAME}:\n"
        txt += "\n".join(str(i) for i in self.out) + "\n"
        txt += "\n".join(str(i) for i in self.first + self.slow) + "\n"
        txt += f""".section .rodata,"a"
.p2align 6
.amdhsa_kernel {KNAME}
  .amdhsa_next_free_vgpr {256 + NAGPR}
  .amdhsa_next_free_sgpr 68
  .amdhsa_accum_offset 256
  .amdhsa_group_segment_fixed_size 0
  .amdhsa_kernarg_size 48
  .amdhsa_user_sgpr_count 2
  .amdhsa_user_sgpr_kernarg_segment_ptr 1
  .amdhsa_system_sgpr_workgroup_id_x 1
.end_amdhsa_kernel
"""
        return txt, probs

    def gap_report(self, rng=None):
        n0, n1 = rng or self.loop_range
        gaps = []; cur = None
        for i in self.out[n0:n1]:
            if i.is_label: continue
            if i.is_mfma:
                if cur is not None: gaps.append(cur)
                cur = "4" if i.passes == 2 else ""
            elif cur is not None:
                cur += "E" if i.is_trans else ("v" if i.is_valu else ("d" if i.is_ds else ("M" if i.is_vmem else "s")))
        gaps.append(cur)
        def t(gp):
            if gp == "4": return 8
            gp = gp.replace("4", "")
            tm = 4; prev = "m"
            for c in gp:
                if c == "s": tm += 4
                else:
                    tm = max(tm, 8)
                    if c in "dM" and prev in "vE": tm += 4
                    if c in "vE" and prev == "M": tm += 4
                    tm += 8 if c == "E" else 4
                prev = c
            if prev in "dM": tm += 4
            return max(16, tm)
        return gaps, sum(map(t, gaps))


def get_args(argv=None):
    p = argparse.ArgumentParser()
    p.add_argument("-o", default="k2.s")
    p.add_argument("--stamp", action="store_true")
    p.add_argument("--split", type=int, default=18)
    p.add_argument("--bar_gap", type=int, default=0)
    p.add_argument("--vplan", default="2,5,8,11,14,17,20,22,24,25,26,27,28,29,30,31")
    p.add_argument("--kplan", default="3,6,9,12,15,18,21,24")
    p.add_argument("--v_slack", type=int, default=1)
    p.add_argument("--k_slack", type=int, default=2)
    p.add_argument("--d_early", type=int, default=7)
    p.add_argument("--d_step", type=int, default=6)
    p.add_argument("--d_slack", type=int, default=1)
    p.add_argument("--dma_in", default="B")
    p.add_argument("--unroll", type=int, default=2)
    p.add_argument("--align", type=int, default=6)
    p.add_argument("--drop", default="")
    p.add_argument("--perm", type=int, default=0)
    p.add_argument("--nt_upto", type=int, default=4)
    p.add_argument("--omod2", default="")
    p.add_argument("--h0_qmajor", type=int, default=0)
    p.add_argument("--sum4", type=int, default=0)
    p.add_argument("--wait_early", type=int, default=1)
    p.add_argument("--fin_exp", type=int, default=1)
    p.add_argument("--pad", type=int, default=0)
    p.add_argument("--pk", type=int, default=1)
    p.add_argument("--pack_grp", type=int, default=1)
    p.add_argument("--tstamp", type=int, default=0)
    p.add_argument("--hsplit", type=int, default=10)
    p.add_argument("--hk_early", type=int, default=3)
    p.add_argument("--hv_early", type=int, default=0)
    p.add_argument("--st_flat", type=int, default=4)
    p.add_argument("--last_more", type=int, default=5)
    p.add_argument("--st_b28", default="3,8,13")
    p.add_argument("--st_a29", default="2")
    p.add_argument("--st_b29", default="12,15")
    p.add_argument("--hvplan", default="3,6,9,10,11,12,13,14")
    p.add_argument("--hv_slack", type=int, default=1)
    p.add_argument("--hkplan", default="2,3,5,6,8,9,11,12")
    p.add_argument("--hk_slack", type=int, default=1)
    p.add_argument("--epi_from", type=int, default=0)
    p.add_argument("--cpf2", type=int, default=0)
    p.add_argument("--cpf2_u", type=int, default=1)
    p.add_argument("--cpf", type=int, default=1)
    p.add_argument("--ahead", type=int, default=6)
    p.add_argument("--mid", type=int, default=0)
    p.add_argument("--stamp_every", type=int, default=4)
    p.add_argument("--vsum", default="")
    p.add_argument("--first_gap", type=int, default=26)
    p.add_argument("--spin_end", type=int, default=0)
    p.add_argument("--spin_loop", type=int, default=0)
    p.add_argument("--spin_epi", type=int, default=0)
    p.add_argument("--ab", type=int, default=0)
    p.add_argument("--ab_bit", type=int, default=3)
    p.add_argument("--b_k1", type=int, default=1)
    p.add_argument("--b_wait", type=int, default=0)
    p.add_argument("--epi_split", type=int, default=0)
    p.add_argument("--epi_mul", type=int, default=0)
    p.add_argument("--kvmod", default="nt")
    p.add_argument("--qmod", default="nt")
    p.add_argument("--omod", default="nt")
    a = p.parse_args(argv)
    a.vplan = [int(x) for x in a.vplan.split(",")]
    a.vsum = [int(x) for x in a.vsum.split(",") if x]
    a.hvplan = [int(x) for x in a.hvplan.split(",")]
    a.hkplan = [int(x) for x in a.hkplan.split(",")]
    a.st_b28 = [int(x) for x in a.st_b28.split(",")]; a.st_a29 = [int(x) for x in a.st_a29.split(",")]; a.st_b29 = [int(x) for x in a.st_b29.split(",")]
    a.kplan = [int(x) for x in a.kplan.split(",")]
    return a


if __name__ == "__main__":
    a = get_args()
    g = Gen(a)
    txt, probs = g.build()
    open(a.o, "w").write(txt)
    for p in probs: print(p)
    gaps, est = g.gap_report()
    print("gaps:", " ".join(x or "-" for x in gaps))
    tg, test = g.gap_report(g.tail_range)
    print("tail:", " ".join(x or "-" for x in tg), test)
    print(f"wrote {a.o}: {len(g.out)} main insts, {len(g.slow)} slow insts, {len(probs)} problems; est cycles/subtile {est/(2*a.unroll):.0f}")
```

```python
import sys, struct, math, argparse
from asmlib import I, check

KNAME = "standalone__gqa_softmax__near_ridge_kernel"
CSC = math.log2(math.e) / math.sqrt(128.0)
def f2u(x): return struct.unpack("<I", struct.pack("<f", x))[0]
THR = f2u(2.0 ** 20)
MF = "v_mfma_f32_16x16x32_bf16"

def O(q, db): return (q * 8 + db) * 4
def S(buf, q): return 128 + 32 * buf + 8 * q
def NEGM(q): return 192 + 4 * q
def X(q): return 208 + 4 * q
def KA(ds): return 224 + ds
def VA(db): return 228 + db
def KD(n): return 236 + n
def VD(p): return 240 + p
def L(q): return 242 + q
T = 246
def Q(q, ds): return (q * 4 + ds) * 4
def KF(kb2, ds): return 64 + (kb2 * 4 + ds) * 4
def VF(db): return 96 + 4 * db
ONES = 128
ST0, ST1 = 132, 133
NAGPR = 232
def VFB(u): return {28: 136, 29: 168, 30: 200}.get(u, 96)
def vr(b, n): return f"v[{b}:{b+n-1}]"
def ar(b, n): return f"a[{b}:{b+n-1}]"

SQ, SK, SV, SO = 12, 16, 20, 24
S_W, S_KW, S_G = 28, 29, 30
S_T0, S_T1, S_T2 = 31, 32, 33
S_PB, S_CNT = 34, 35
S_C = 36
S_WSO, S_SI, S_STAMP = 38, 39, 40
SWS = 44
S_QL, S_QG = 56, 57
S_GV, S_PB2 = 58, 59
S_PERM = 3
def srd(b): return f"s[{b}:{b+3}]"


DOC = """;
;
"""


class Item:
    def __init__(self, ins, early=0, late=10**6):
        self.ins = ins if isinstance(ins, list) else [ins]
        self.early, self.late = early, late
    @property
    def cost(self): return sum(i.cost for i in self.ins)


class Gen:
    def __init__(self, a):
        self.a = a
        self.out, self.slow, self.dma_log = [], [], []

    def e(self, t, note=None): self.out.append(I(t, note))

    def emit(self, ins):
        for i in ins:
            if hasattr(i, "dma"): self.dma_log.append(i.dma)
            self.out.append(i)

    def stamp(self):
        if not self.a.stamp: return []
        return [I(f"s_memtime s[{S_STAMP}:{S_STAMP+1}]"), I(f"s_memrealtime s[{S_STAMP+2}:{S_STAMP+3}]"),
                I("s_waitcnt lgkmcnt(0)"), I(f"s_lshl_b64 exec, 1, s{S_SI}"),
                I(f"v_accvgpr_write_b32 a{ST0}, s{S_STAMP}"), I(f"v_accvgpr_write_b32 a{ST1}, s{S_STAMP+2}"),
                I("s_mov_b64 exec, -1"), I(f"s_add_u32 s{S_SI}, s{S_SI}, 1")]

    def spin(self, n, lab):
        for t in (f"{lab}:", "s_memrealtime s[66:67]", "s_waitcnt lgkmcnt(0)", "s_sub_u32 s66, s66, s64", f"s_cmp_lt_u32 s66, {n}", f"s_cbranch_scc1 {lab}"):
            self.e(t)

    def slot(self, t): return t % self.a.unroll if self.a.unroll < 4 else t % 4

    def dma_tile(self, which, t, static=False):
        base = (0 if which == "K" else 65536)
        if static or self.a.unroll == 4:
            m0 = I(f"s_add_u32 m0, s{S_KW}, {base + (t % 4) * 16384}")
        else:
            m0 = I(f"s_add_u32 m0, s{S_PB if which == 'K' else S_PB2}, {base + (t % 2) * 16384}")
        r = []
        for n in range(4):
            vo = KD(n) if which == "K" else VD(n & 1)
            sr = SK if which == "K" else SV
            sg = S_G if which == "K" else S_GV
            ld = I(" ".join(f"buffer_load_dwordx4 v{vo}, {srd(sr)}, s{sg} offen offset:{n*1024} {self.a.kvmod} lds".split()),
                   f"DMA {which}{t}.{n}")
            ld.dma = f"{which}{t}"
            r.append(ld)
        return m0, r

    def vm_needed(self, names):
        last = max(i for i, n in enumerate(self.dma_log) if n in names)
        return len(self.dma_log) - 1 - last

    def qk_mfmas(self, buf, zero_c=False, qs=range(4)):
        r = []
        for q in qs:
            for kb2 in range(2):
                d = vr(S(buf, q) + 4 * kb2, 4)
                for ds in range(4):
                    c = d
                    if ds == 0: c = "0" if zero_c else vr(NEGM(q), 4)
                    r.append(I(f"{MF} {d}, {ar(KF(kb2,ds),4)}, {ar(Q(q,ds),4)}, {c}"))
        return r

    def pv_mfmas(self, buf, qmajor=False, qs=(0, 1, 2, 3), vb=96):
        o = [(db, q) for db in range(8) for q in qs]
        if qmajor: o = [(db, q) for q in qs for db in range(8)]
        return [I(f"{MF} {vr(O(q,db),4)}, {ar(vb+4*db,4)}, {vr(S(buf,q),4)}, {vr(O(q,db),4)}") for db, q in o]

    def sum_mfma(self, buf, q, h=None):
        if h is not None:
            return I(f"v_mfma_f32_4x4x4_16b_bf16 {vr(X(q),4)}, {ar(ONES,2)}, {vr(S(buf,q)+2*h,2)}, {vr(X(q),4) if h else 0}")
        return I(f"{MF} {vr(X(q),4)}, {ar(ONES,4)}, {vr(S(buf,q),4)}, 0")

    def k_reads(self, u):
        t, kb = u // 2, u % 2
        off = self.slot(t) * 16384 + kb * 8192
        return [I(f"ds_read_b128 {ar(KF(kb2,ds),4)}, v{KA(ds)} offset:{off + kb2*4096}") for kb2 in range(2) for ds in range(4)]

    def v_reads(self, u, vb=96):
        t, kb = u // 2, u % 2
        off = self.slot(t) * 16384 + kb * 8192
        return [I(f"ds_read_b64_tr_b16 {ar(vb+4*db+2*tt,2)}, v{VA(db)} offset:{off + tt*4096}") for db in range(8) for tt in range(2)]

    def sm_stream(self, buf, qs=(0, 1, 2, 3)):
        r = []
        def post(e):
            q, i = e // 8, e % 8
            b = S(buf, q)
            if q in self.a.vsum:
                if i == 1: r.append((e, I(f"v_add_f32 v{X(q)}, v{b}, v{b+1}")))
                elif i > 1: r.append((e, I(f"v_add_f32 v{X(q)}, v{X(q)}, v{b+i}")))
            if i % 2 == 1:
                if self.a.perm: r.append((e, I(f"v_perm_b32 v{b+i//2}, v{b+i}, v{b+i-1}, s{S_PERM}")))
                else: r.append((e, I(f"v_cvt_pk_bf16_f32 v{b+i//2}, v{b+i-1}, v{b+i}")))
            if self.a.sum4:
                if i in (3, 7): r.append((e, ("SUM", buf, q, i // 4)))
            elif i == 7 and q not in self.a.vsum: r.append((e, ("SUM", buf, q)))
        e0, e1 = 8 * qs[0], 8 * qs[-1] + 8
        for e in range(e0, e1):
            r.append((e, I(f"v_exp_f32 v{S(buf,0)+e}, v{S(buf,0)+e}")))
            if e > e0: post(e - 1)
        post(e1 - 1)
        return r

    def flat_stream(self, items):
        r = []
        for x in items:
            if isinstance(x, tuple):
                r += [I("s_nop 1"), self.sum_mfma(*x[1:])]
            else:
                if r and r[-1].is_trans and set(r[-1].dst) & set(x.src): r.append(I("s_nop 0"))
                r.append(x)
        return r

    def rowmax(self, b, t0, t1):
        return [I(f"v_max3_f32 v{t0}, v{b}, v{b+1}, v{b+2}"), I(f"v_max3_f32 v{t1}, v{b+3}, v{b+4}, v{b+5}"),
                I(f"v_max3_f32 v{t0}, v{t0}, v{b+6}, v{b+7}"), I(f"v_max_f32 v{t0}, v{t0}, v{t1}"),
                I(f"v_mov_b32 v{t1}, v{t0}"), I("s_nop 1"), I(f"v_permlane16_swap_b32 v{t0}, v{t1}"), I("s_nop 1"),
                I(f"v_max_f32 v{t0}, v{t0}, v{t1}"),
                I(f"v_mov_b32 v{t1}, v{t0}"), I("s_nop 1"), I(f"v_permlane32_swap_b32 v{t0}, v{t1}"), I("s_nop 1")]

    def maxfix_first(self, buf, qs):
        r = []
        ts = {q: (T + 2 * i, T + 2 * i + 1) for i, q in enumerate(qs)}
        def each(f):
            for q in qs: r.append(I(f(q, S(buf, q), *ts[q])))
        pad = [I("s_nop 1")] if len(qs) < 3 else []
        each(lambda q, b, t0, t1: f"v_max3_f32 v{t0}, v{b}, v{b+1}, v{b+2}")
        each(lambda q, b, t0, t1: f"v_max3_f32 v{t1}, v{b+3}, v{b+4}, v{b+5}")
        each(lambda q, b, t0, t1: f"v_max3_f32 v{t0}, v{t0}, v{b+6}, v{b+7}")
        each(lambda q, b, t0, t1: f"v_max_f32 v{t0}, v{t0}, v{t1}")
        for sw in ("v_permlane16_swap_b32", "v_permlane32_swap_b32"):
            each(lambda q, b, t0, t1: f"v_mov_b32 v{t1}, v{t0}")
            r += pad
            each(lambda q, b, t0, t1: f"{sw} v{t0}, v{t1}")
            r += pad
            each(lambda q, b, t0, t1: f"v_max_f32 v{t0}, v{t0}, v{t1}")
        for q in qs:
            t0 = ts[q][0]
            for i in range(4): r.append(I(f"v_sub_f32 v{NEGM(q)+i}, 0, v{t0}"))
            for i in range(8): r.append(I(f"v_sub_f32 v{S(buf,q)+i}, v{S(buf,q)+i}, v{t0}"))
        return r

    def slow_path(self, u, label, has_next, xored, qs=(0, 1, 2, 3), reload_k=None):
        cur, nxt = u % 2, (u + 1) % 2
        r = [I(f"{label}:")]
        x = [I(f"v_xor_b32 v{KA(ds)}, 0x8000, v{KA(ds)}") for ds in range(4)] if xored else []
        r += [I("s_nop 3")] + x + self.k_reads(u) + [I(i.text) for i in x]
        r.append(I("s_waitcnt lgkmcnt(0)"))
        r += self.qk_mfmas(cur, qs=qs)
        r.append(I("s_nop 7"))
        if reload_k is not None: r += self.k_reads(reload_k)
        t0, t1, t2 = T, T + 1, T + 2
        for q in qs:
            b = S(cur, q)
            r += self.rowmax(b, t0, t1)
            r.append(I(f"v_max3_f32 v{t0}, v{t0}, v{t1}, 0"))
            r.append(I(f"v_exp_f32 v{t2}, -v{t0}"))
            for i in range(4): r.append(I(f"v_sub_f32 v{NEGM(q)+i}, v{NEGM(q)+i}, v{t0}"))
            r.append(I(f"v_mul_f32 v{L(q)}, v{L(q)}, v{t2}"))
            if has_next:
                for i in range(8): r.append(I(f"v_sub_f32 v{S(nxt,q)+i}, v{S(nxt,q)+i}, v{t0}"))
            for i in range(32): r.append(I(f"v_mul_f32 v{O(q,0)+i}, v{O(q,0)+i}, v{t2}"))
            for i in range(8): r.append(I(f"v_sub_f32 v{b+i}, v{b+i}, v{t0}"))
        r += self.flat_stream([x for _, x in self.sm_stream(cur, qs)])
        r.append(I("s_nop 7"))
        if reload_k is not None: r.append(I("s_waitcnt lgkmcnt(0)"))
        r.append(I(f"s_branch {label}_ret"))
        return r

    def schedule(self, mfmas, stream, others, tail=(), tail_lag=None, fin=(), nxt_stream=None):
        out = []
        if tail_lag is None: tail_lag = 5 if self.a.sum4 else 8
        M = list(mfmas); stream = list(stream); tail = list(tail)
        others = sorted(others, key=lambda x: (x.early, x.late))
        kind = lambda o: "s" if o.ins[0].is_salu else ("d" if o.ins[0].is_ds else ("m" if o.ins[0].is_vmem else "v"))
        pend = []
        last_sum_pos = None
        def states_since(idx): return sum(i.states for i in out[idx + 1:])
        g = -1
        def pop_markers():
            while stream and isinstance(stream[0], tuple):
                x = stream.pop(0); pend.append([self.sum_mfma(*x[1:]), len(out) - 1])
        def last_real():
            return out[-1]
        def ok(n):
            l = last_real()
            return not (l.is_trans and set(l.dst) & set(n.src))
        def take(k, overdue=False):
            for o in others:
                if kind(o) == k and (o.late <= g if overdue else o.early <= g):
                    others.remove(o); return o
            return None
        def small_v():
            pop_markers()
            o = take("v", True)
            if o: return o.ins
            if stream and stream[0].cost == 4 and ok(stream[0]): return [stream.pop(0)]
            if tail and g >= 2 and not stream and not pend and (last_sum_pos is None or states_since(last_sum_pos) >= tail_lag):
                return [tail.pop(0)]
            o = take("v")
            if o: return o.ins
            return None
        while M or pend or any(isinstance(x, tuple) for x in stream):
            if pend and states_since(pend[0][1]) >= 2:
                out.append(pend.pop(0)[0]); last_sum_pos = len(out) - 1
                if out[-1].passes == 2 and M: out.append(M.pop(0))
            elif M:
                out.append(M.pop(0))
            elif pend:
                out.append(I("s_nop 1")); out.append(pend.pop(0)[0]); last_sum_pos = len(out) - 1
            else:
                while stream and not isinstance(stream[0], tuple):
                    if not ok(stream[0]): out.append(I("s_nop 0"))
                    out.append(stream.pop(0))
                pop_markers(); continue
            g += 1
            is_last = not M and not pend and not any(isinstance(x, tuple) for x in stream)
            if is_last and fin: break
            o = take("s")
            if o: out += o.ins
            pop_markers()
            nxt_exp = bool(stream) and stream[0].cost == 8
            o = take("m", True) or take("d", True)
            if not o and not nxt_exp: o = take("d") or take("m")
            if o:
                out += o.ins
                if kind(o) == "d":
                    v = small_v()
                    if v: out += v
            elif nxt_exp:
                out.append(stream.pop(0))
            else:
                for _ in range(2):
                    v = small_v()
                    if v: out += v
            pop_markers()
        for x in stream:
            if not ok(x): out.append(I("s_nop 0"))
            out.append(x)
        for o in others: out += o.ins
        if tail:
            if last_sum_pos is not None and states_since(last_sum_pos) < tail_lag:
                out.append(I(f"s_nop {tail_lag - states_since(last_sum_pos) - 1}"))
            out += tail
        out += list(fin)
        if fin and nxt_stream and self.a.fin_exp and not isinstance(nxt_stream[0], tuple):
            out.append(nxt_stream.pop(0))
        return out

    def insert_waits(self, seq, pending):
        out = []
        pend = list(pending)
        pend = [(p, -1) for p in pend]
        last_m = -1
        for x in seq:
            if x.op == "s_waitcnt" and "lgkmcnt" in x.text:
                import re
                k = int(re.search(r"lgkmcnt\((\d+)\)", x.text).group(1))
                pend = pend[len(pend) - k:] if 0 < k < len(pend) else ([] if k == 0 else pend)
            if x.is_mfma or (x.is_vmem and "store" in x.op):
                need = [i for i, (p, _) in enumerate(pend) if p & set(x.src)]
                if need:
                    j = max(need)
                    pos = last_m + 1 if (pend[j][1] <= last_m and x.is_mfma) else len(out)
                    if x.is_mfma and self.a.wait_early and any(y.op.startswith("s_cbranch") or y.op == "s_barrier" for y in out[last_m + 1:]):
                        pm = max((k for k in range(last_m) if out[k].is_mfma and out[k].passes > 2), default=-1)
                        if pm >= 0 and pend[j][1] <= pm and not any(y.is_label for y in out[pm:last_m]):
                            pos = pm + 1; last_m += 1
                    n = sum(1 for (p, q) in pend[j + 1:] if q < pos)
                    n = min(n, 15)
                    out.insert(pos, I(f"s_waitcnt lgkmcnt({n})"))
                    pend = [(p, q + (1 if q >= pos else 0)) for (p, q) in pend[j + 1:]]
                if x.is_mfma and x.passes > 2: last_m = len(out)
            if x.is_ds: pend.append((set(x.dst), len(out)))
            out.append(x)
        return out, [p for p, _ in pend]

    def check_ins(self, qs=(0, 1, 2, 3)):
        if len(qs) == 2:
            return [I(f"v_max_f32 v{T}, v{X(qs[0])}, v{X(qs[1])}"), I(f"v_cmp_lt_f32 vcc, {THR:#x}, v{T}")]
        return [I(f"v_max3_f32 v{T}, v{X(0)}, v{X(1)}, v{X(2)}"), I(f"v_max_f32 v{T}, v{T}, v{X(3)}"),
                I(f"v_cmp_lt_f32 vcc, {THR:#x}, v{T}")]

    def split_stream(self, buf):
        sm = self.sm_stream(buf)
        idx = next(i for i, (e, x) in enumerate(sm) if e == self.a.split and isinstance(x, I) and x.is_trans)
        return [x for _, x in sm[:idx]], [x for _, x in sm[idx:]]

    def phaseA(self, u, rest, has_qk=True, extra=(), xored=False, tag=""):
        a = self.a
        nxt = (u + 1) % 2
        vreads = self.v_reads(u)
        label = f"L_slow_{u}{tag}"
        others = [Item(v, g, g + a.v_slack) for v, g in zip(vreads, a.vplan)]
        others += list(extra)
        fin = [I(f"s_cbranch_vccnz {label}"), I(f"{label}_ret:")]
        if has_qk:
            first, nrest = self.split_stream(nxt)
            o = self.schedule(self.qk_mfmas(nxt), rest, others, tail=self.check_ins(), fin=fin, nxt_stream=first)
        else:
            first, nrest = [], []
            o = list(vreads[:8])
            fl = self.flat_stream(rest)
            o += fl[:4] + vreads[8:] + fl[4:] + [I("s_nop 7")] + self.check_ins() + fin
        self.slow += self.slow_path(u, label, has_qk, xored)
        return o, first, nrest

    def phaseB(self, u, stream, has_kreads=True, barrier=None, extra=(), last=False):
        a = self.a
        cur = u % 2
        others = []
        if barrier is not None:
            others.append(Item([I(f"s_waitcnt vmcnt({barrier})")], a.bar_gap, a.bar_gap))
            others.append(Item([I("s_barrier")], a.bar_gap + 1, a.bar_gap + 1))
        if has_kreads:
            others += [Item(k, g, g + a.k_slack) for k, g in zip(self.k_reads(u + 2), a.kplan)]
        for q in range(4):
            others.append(Item(I(f"v_add_f32 v{L(q)}, v{L(q)}, v{X(q)}"), 0, 9 + 3 * q))
        others += list(extra)
        return self.schedule(self.pv_mfmas(cur, qmajor=last), stream, others)

    def hsplit(self, buf, qs):
        sm = self.sm_stream(buf, qs)
        idx = next(i for i, (e, x) in enumerate(sm) if e == 8 * qs[0] + self.a.hsplit and isinstance(x, I) and x.is_trans)
        return [x for _, x in sm[:idx]], [x for _, x in sm[idx:]]

    def site(self, u, qs, has_next, reload_k=None):
        label = f"L_slow_{u}_h{qs[0]}"
        self.slow += self.slow_path(u, label, has_next, False, qs, reload_k)
        return [I(f"s_cbranch_vccnz {label}"), I(f"{label}_ret:")]

    def phaseAh(self, u, qs, rest, qk=None, nxt_first=None, has_next=True, extra=(), vread=True):
        a = self.a
        v = self.v_reads(u, VFB(u)) if vread else []
        fin = self.site(u, qs, has_next)
        if qk:
            others = [Item([v[2 * db], v[2 * db + 1]], max(0, g - a.hv_early), g + a.hv_slack) for db, g in enumerate(a.hvplan) if v] + list(extra)
            return self.schedule(self.qk_mfmas(qk[0] % 2, qs=qk[1]), rest, others, tail=self.check_ins(qs), fin=fin, nxt_stream=nxt_first)
        return self.flat_stream(rest) + [I("s_nop 7")] + self.check_ins(qs) + [I("s_nop 3")] + fin

    def phaseBh(self, u, qs, stream, kread=None, barrier=None, extra=(), last=False, chk=None):
        a = self.a
        others = []
        if barrier is not None:
            others.append(Item([I(f"s_waitcnt vmcnt({barrier})")], 0, 0))
            others.append(Item([I("s_barrier")], 1, 1))
        if kread is not None:
            others += [Item(k, max(0, g - a.hk_early), g + a.hk_slack) for k, g in zip(self.k_reads(kread), a.hkplan)]
        for i, q in enumerate(qs):
            others.append(Item(I(f"v_add_f32 v{L(q)}, v{L(q)}, v{X(q)}"), 0, 5 + 3 * i))
        others += list(extra)
        return self.schedule(self.pv_mfmas(u % 2, qmajor=last, qs=qs, vb=VFB(u)), stream, others)

    INV = {0: 192, 1: 196, 2: 198, 3: 192}
    VO = T + 5
    WA = 208
    def epi_setup(self):
        va, vw, vrd = T + 8, T + 3, T + 4
        r = [f"v_mbcnt_lo_u32_b32 v{va}, -1, 0", f"v_mbcnt_hi_u32_b32 v{va}, -1, v{va}",
             f"v_lshlrev_b32 v{self.VO}, 4, v{va}", f"v_and_b32 v{va+1}, 15, v{va}", f"v_lshrrev_b32 v{va}, 4, v{va}",
             f"v_lshlrev_b32 v{vw}, 3, v{va}", f"v_lshlrev_b32 v{vrd}, 4, v{va+1}", f"v_xor_b32 v{vw}, v{vw}, v{vrd}",
             f"v_lshl_add_u32 v{vw}, v{va+1}, 8, v{vw}", f"v_add_u32 v{vw}, s{S_KW}, v{vw}"]
        r2 = [f"v_xor_b32 v{self.WA+db}, {db*32:#x}, v{vw}" for db in range(8)]
        r3 = [f"s_lshl_b32 s{S_T0}, s{S_W}, 14", f"s_add_u32 s{S_T1}, s{S_T0}, 4096"]
        return [I(x) for x in r], [I(x) for x in r2], [I(x) for x in r3]
    def epi_pack(self, q, pk=True):
        r = []
        for db in range(8):
            b = O(q, db)
            if pk: g = [I(f"v_pk_mul_f32 {vr(b+i,2)}, {vr(b+i,2)}, {vr(self.INV[q],2)} op_sel_hi:[1,0]") for i in (0, 2)]
            else: g = [I(f"v_mul_f32 v{b+i}, v{b+i}, v{self.INV[q]}") for i in range(4)]
            g += [I(f"v_cvt_pk_bf16_f32 v{b+i}, v{b+2*i}, v{b+2*i+1}") for i in range(2)]
            g.append(I(f"ds_write_b64 v{self.WA+db}, {vr(b,2)} offset:{(q % 2) * 16384}"))
            r += g
        return r
    def l_finish(self, qs):
        r = []
        red = [q for q in qs if self.a.sum4 or q in self.a.vsum]
        for sw in ("v_permlane16_swap_b32", "v_permlane32_swap_b32"):
            if not red: break
            r += [I(f"v_mov_b32 v{T+6+k}, v{L(q)}") for k, q in enumerate(red)] + [I("s_nop 1")]
            r += [I(f"{sw} v{T+6+k}, v{L(q)}") for k, q in enumerate(red)] + [I("s_nop 1")]
            r += [I(f"v_add_f32 v{L(q)}, v{L(q)}, v{T+6+k}") for k, q in enumerate(red)]
        return r + [I(f"v_rcp_f32 v{self.INV[q]}, v{L(q)}") for q in qs]
    def epi_buf(self, q, j): return S(q % 2, 0) + 4 * j
    def epi_read(self, q):
        return [I(f"ds_read_b128 {vr(self.epi_buf(q,j),4)}, v{KD(j)} offset:{(q % 2) * 16384 + j*1024}") for j in range(4)]
    def epi_store(self, q):
        return [I(" ".join(f"buffer_store_dwordx4 {vr(self.epi_buf(q,j),4)}, v{self.VO}, {srd(SO)}, s{S_T0 + q % 2} offen offset:{j*1024} {self.a.omod if q < self.a.nt_upto else self.a.omod2}".split()))
                for j in range(4)]

    def tail_split(self, rest28):
        a = self.a
        H0, H1 = (0, 1), (2, 3)
        o = []
        rest = []
        su1, su2, su3 = self.epi_setup()
        for u in (28, 29, 30):
            first, nrest = self.hsplit((u + 1) % 2, H0)
            ex = [Item(x, 1 + i // 2, 1 + i // 2) for i, x in enumerate(su1)] + [Item(x, 8 + i, 8 + i) for i, x in enumerate(su3)] if u == 28 else []
            o += self.phaseAh(u, H0, rest, qk=(u + 1, H0), nxt_first=first, extra=ex)
            if a.tstamp: o += self.stamp()
            o += self.phaseBh(u, H0, first, kread=(u + 2 if u < 30 else 29), barrier=(0 if u == 29 else None))
            if a.tstamp: o += self.stamp()
            rest = nrest
        r28 = list(rest28)
        o += self.phaseAh(31, H0, rest, qk=(29, H1), nxt_first=r28, has_next=False)
        if a.tstamp: o += self.stamp()
        o += self.phaseBh(31, H0, r28, kread=30, last=a.h0_qmajor)
        if a.tstamp: o += self.stamp()
        o += self.stamp()
        pk0 = self.epi_pack(0)
        o += self.l_finish(H0) + su2 + self.check_ins(H1)
        o += pk0[:10] + self.site(28, H1, True, reload_k=30) + pk0[10:] + self.epi_read(0)
        st0, st1 = self.epi_store(0), self.epi_store(1)
        p1 = self.epi_pack(1)
        for j in range(4): o += p1[10 * j:10 * j + 10] + ([st0[j]] if j < a.st_flat else [])
        o += self.epi_read(1)
        if a.tstamp: o += self.stamp()
        stores = st0[a.st_flat:] + st1
        slots = [(0, g) for g in a.st_b28] + [(1, g) for g in a.st_a29] + [(2, g) for g in a.st_b29]
        sp = [[], [], []]
        for x, (ph, g) in zip(stores, slots): sp[ph].append(Item(x, g, g + 1))
        assert len(stores) <= len(slots)
        first, rest = self.hsplit(29 % 2, H1)
        o += self.phaseBh(28, H1, first, extra=sp[0])
        if a.tstamp: o += self.stamp()
        for k, u in enumerate((29, 30)):
            first, nrest = self.hsplit((u + 1) % 2, H1)
            o += self.phaseAh(u, H1, rest, qk=(u + 1, H1), nxt_first=first, extra=(sp[1] if k == 0 else []), vread=False)
            if a.tstamp: o += self.stamp()
            if u == 30:
                first, nrest = first + nrest[:a.last_more], nrest[a.last_more:]
            o += self.phaseBh(u, H1, first, kread=(31 if u == 29 else None), extra=(sp[2] if k == 0 else []))
            if a.tstamp: o += self.stamp()
            rest = nrest
        o += self.phaseAh(31, H1, rest, qk=None, has_next=False, vread=False)
        if a.tstamp: o += self.stamp()
        pre = self.l_finish(H1)
        pre += [I(f"v_add_u32 v{self.WA+db}, 0x10000, v{self.WA+db}") for db in range(8)]
        pre += [I(f"v_add_u32 v{KD(j)}, 0x10000, v{KD(j)}") for j in range(4)]
        ex = []
        g = 2
        for x in pre:
            ex.append(Item(x, int(g), int(g))); g += 1 if x.is_trans else 0.5
        ex += [Item(I(f"s_add_u32 s{S_T0}, s{S_T0}, 8192"), 3, 3), Item(I(f"s_add_u32 s{S_T1}, s{S_T1}, 8192"), 4, 4)]
        o += self.phaseBh(31, H1, [], last=True, extra=ex)
        if a.tstamp: o += self.stamp()
        o += self.stamp()
        p3 = self.epi_pack(3); st2 = self.epi_store(2)
        o += self.epi_pack(2) + self.epi_read(2)
        for j in range(4): o += p3[10 * j:10 * j + 10] + [st2[j]]
        o += self.epi_read(3) + self.epi_store(3)
        return o

    def dma_items(self, which, t, post=(), static=False):
        a = self.a
        m0, lds = self.dma_tile(which, t, static)
        gs = [a.d_early + n * a.d_step for n in range(4)]
        its = [Item(m0, max(gs[0] - 2, 0), gs[0] - 1)]
        for n in range(4): its.append(Item(lds[n], gs[n], gs[n] + a.d_slack))
        for p in post: its.append(Item(p, gs[3] + a.d_slack + 1, gs[3] + a.d_slack + 3))
        return its

    def prologue(self):
        e, a = self.e, self.a
        if a.stamp:
            e("s_memtime s[48:49]"); e("s_memrealtime s[50:51]")
        if a.spin_end or a.spin_loop or a.spin_epi: e("s_memrealtime s[64:65]")
        e("s_cmp_ge_u32 s2, 256"); e("s_cbranch_scc1 L_end")
        e("s_load_dwordx4 s[4:7], s[0:1], 0"); e("s_load_dwordx4 s[8:11], s[0:1], 16")
        if a.stamp: e(f"s_load_dwordx2 s[{SWS}:{SWS+1}], s[0:1], 40")
        vl, vg, vt, vu = T, T + 1, T + 2, T + 3
        if a.cpf:
            e("s_getpc_b64 s[62:63]")
            e("L_pc0:")
            e(f"v_lshlrev_b32 v{T+9}, 7, v0")
            e(f"v_cmp_gt_u32 vcc, L_slow_0-L_pc0+128, v{T+9}")
            e("s_and_saveexec_b64 s[60:61], vcc")
            e("s_cbranch_execz L_cpf_skip")
            e(f"global_load_dword v{T+8}, v{T+9}, s[62:63]")
            e("L_cpf_skip:")
            e("s_mov_b64 exec, s[60:61]")
        e(f"v_lshrrev_b32 v{vt}, 6, v0")
        e(f"v_and_b32 v{vl}, 63, v0", "lane")
        e(f"v_readfirstlane_b32 s{S_W}, v{vt}")
        e(f"s_and_b32 s{S_T0}, s2, 7"); e(f"s_lshr_b32 s{S_T1}, s2, 3")
        e(f"s_lshl_b32 s{S_T0}, s{S_T0}, 4"); e(f"s_lshr_b32 s{S_T2}, s{S_T1}, 1")
        e(f"s_add_u32 s{S_T0}, s{S_T0}, s{S_T2}", "kv head index")
        e(f"s_and_b32 s{S_T1}, s{S_T1}, 1"); e(f"s_lshl_b32 s{S_T2}, s{S_T0}, 1")
        e(f"s_add_u32 s{S_T1}, s{S_T1}, s{S_T2}", "q head index")
        e(f"s_lshl_b32 s{S_T0}, s{S_T0}, 18"); e(f"s_lshl_b32 s{S_T1}, s{S_T1}, 16")
        e(f"s_lshl_b32 s{S_KW}, s{S_W}, 12")
        e(f"v_lshrrev_b32 v{vg}, 4, v{vl}", "g = lane>>4")
        e(f"v_and_b32 v{vt}, 15, v{vl}", "i = lane&15")
        e(f"v_xor_b32 v{vu}, v{vt}, v{vg}")
        e(f"v_lshlrev_b32 v{vu}, 4, v{vu}")
        e(f"v_lshl_add_u32 v{KD(0)}, v{vg}, 8, v{vu}")
        e(f"v_add_u32 v{KD(0)}, s{S_KW}, v{KD(0)}")
        for n in range(1, 4): e(f"v_xor_b32 v{KD(n)}, {n<<6:#x}, v{KD(0)}")
        e(f"s_lshl_b32 s{S_QL}, s{S_W}, 14")
        e(f"s_cmp_lt_u32 s{S_W}, 2"); e(f"s_cselect_b32 s{S_QG}, 2, 1"); e(f"s_lshl_b32 s{S_QG}, s{S_QG}, 16")
        e(f"s_add_u32 s{S_QL}, s{S_QL}, s{S_QG}", "q lds base")
        e(f"s_mul_i32 s{S_QG}, s{S_W}, 12288")
        e("s_waitcnt lgkmcnt(0)")
        if a.stamp:
            e("s_memtime s[52:53]"); e("s_memrealtime s[54:55]"); e("s_waitcnt lgkmcnt(0)")
        def mksrd(sr, p, off, n):
            e(f"s_add_u32 s{sr}, s{p}, s{off}"); e(f"s_addc_u32 s{sr+1}, s{p+1}, 0")
            e(f"s_mov_b32 s{sr+2}, {n}"); e(f"s_mov_b32 s{sr+3}, 0x20000")
        def vd_setup():
            e(f"v_lshlrev_b32 v{vu}, 1, v{vg}")
            e(f"v_xor_b32 v{vu}, v{vt}, v{vu}")
            e(f"v_lshlrev_b32 v{vu}, 4, v{vu}")
            e(f"v_lshl_add_u32 v{VD(0)}, v{vg}, 8, v{vu}")
            e(f"v_add_u32 v{VD(0)}, s{S_KW}, v{VD(0)}")
            e(f"v_xor_b32 v{VD(1)}, 0x80, v{VD(0)}")
        def qgrp(grp):
            r = [I(f"s_add_u32 m0, s{S_QL}, {grp*4096}"), I(f"s_add_u32 s{S_T2}, s{S_QG}, {grp*4096}")]
            for n in range(4):
                ld = I(" ".join(f"buffer_load_dwordx4 v{KD(n)}, {srd(SQ)}, s{S_T2} offen offset:{n*1024} {a.qmod} lds".split()))
                ld.dma = f"Q{grp}"
                r.append(ld)
            return r
        def tile(which, t):
            m0, lds = self.dma_tile(which, t, static=True)
            return [m0, I(f"s_mov_b32 s{S_G if which == 'K' else S_GV}, {t*16384}")] + lds
        QA = X(3)
        def setup():
            if a.stamp:
                e(f"s_mov_b32 s{SWS+2}, 0x1000000"); e(f"s_mov_b32 s{SWS+3}, 0x20000")
                e(f"s_lshl_b32 s{S_WSO}, s2, 2"); e(f"s_add_u32 s{S_WSO}, s{S_WSO}, s{S_W}"); e(f"s_lshl_b32 s{S_WSO}, s{S_WSO}, 9")
                e(f"v_accvgpr_write_b32 a{ST0}, 0"); e(f"v_accvgpr_write_b32 a{ST1}, 0"); e(f"s_mov_b32 s{S_SI}, 2")
                e("s_mov_b64 exec, 1"); e(f"v_accvgpr_write_b32 a{ST0}, s48"); e(f"v_accvgpr_write_b32 a{ST1}, s50")
                e("s_mov_b64 exec, 2"); e(f"v_accvgpr_write_b32 a{ST0}, s52"); e(f"v_accvgpr_write_b32 a{ST1}, s54")
                e("s_mov_b64 exec, -1")
                self.emit(self.stamp())
            e(f"v_xor_b32 v{vu}, v{vt}, v{vg}")
            e(f"v_lshlrev_b32 v{vu}, 4, v{vu}")
            e(f"v_lshl_add_u32 v{KA(0)}, v{vt}, 8, v{vu}")
            for ds in range(1, 4): e(f"v_xor_b32 v{KA(ds)}, {ds<<6:#x}, v{KA(0)}")
            e(f"v_lshrrev_b32 v{vu}, 2, v{vl}", "key = lane>>2")
            e(f"v_lshlrev_b32 v{VA(0)}, 8, v{vu}")
            e(f"v_and_b32 v{vu}, 7, v{vu}")
            e(f"v_lshl_add_u32 v{VA(0)}, v{vu}, 5, v{VA(0)}")
            e(f"v_and_b32 v{vu}, 3, v{vl}")
            e(f"v_lshl_add_u32 v{VA(0)}, v{vu}, 3, v{VA(0)}")
            e(f"v_add_u32 v{VA(0)}, 0x10000, v{VA(0)}")
            for db in range(1, 8): e(f"v_xor_b32 v{VA(db)}, {db<<5:#x}, v{VA(0)}")
            for ds in range(4): e(f"v_add_u32 v{QA+ds}, s{S_QL}, v{KA(ds)}")
            e(f"s_mov_b32 s{S_C}, {f2u(CSC):#x}"); e(f"s_mov_b32 s{S_C+1}, {f2u(CSC):#x}")
            if a.perm: e(f"s_mov_b32 s{S_PERM}, 0x07060302")
            for q in range(4): e(f"v_mov_b32 v{L(q)}, 0")
            e(f"v_mov_b32 v{vu}, 0x3f803f80")
            for i in range(4): e(f"v_accvgpr_write_b32 a{ONES+i}, v{vu}")
            for i in range(128): e(f"v_mov_b32 v{i}, 0")
            if a.unroll == 2:
                e(f"s_mov_b32 s{S_PB}, s{S_KW}"); e(f"s_add_u32 s{S_PB2}, s{S_KW}, 0x8000")
            e(f"s_mov_b32 s{S_CNT}, {16 // a.unroll}")
        RAW = S(1, 0); TMP = S(1, 2)
        def qproc(q, early=(), mid=(), fuse=False):
            e(f"s_waitcnt vmcnt({self.vm_needed([f'Q{q}'])})")
            for ds in range(4): e(f"ds_read_b128 {vr(RAW+4*ds,4)}, v{QA+ds} offset:{q*4096}")
            self.emit(early)
            mf = lambda ds: [I(f"{MF} {vr(S(0,q)+4*kb2,4)}, {ar(KF(kb2,ds),4)}, {vr(RAW+4*ds,4)}, {vr(S(0,q)+4*kb2,4) if ds else 0}") for kb2 in range(2)]
            for ds in range(4):
                if ds == 2: self.emit(mid)
                e(f"s_waitcnt lgkmcnt({3-ds})")
                for k in range(4):
                    e(f"v_lshlrev_b32 v{TMP+2*k}, 16, v{RAW+4*ds+k}")
                    e(f"v_and_b32 v{TMP+2*k+1}, 0xffff0000, v{RAW+4*ds+k}")
                    if fuse and ds and k in (0, 2): self.emit([mf(ds - 1)[k // 2]])
                for k in range(4): e(f"v_pk_mul_f32 {vr(TMP+2*k,2)}, {vr(TMP+2*k,2)}, s[{S_C}:{S_C+1}]")
                for k in range(4): e(f"v_cvt_pk_bf16_f32 v{RAW+4*ds+k}, v{TMP+2*k}, v{TMP+2*k+1}")
                if not fuse:
                    for k in range(4): e(f"v_accvgpr_write_b32 a{Q(q,ds)+k}, v{RAW+4*ds+k}")
            if fuse:
                w = [I(f"v_accvgpr_write_b32 a{Q(q,0)+k}, v{RAW+k}") for k in range(16)]
                m = mf(3)
                self.emit(w[:2] + [m[0]] + w[2:4] + [m[1]] + w[4:])
        sm = self.sm_stream(0)
        pos = lambda e0: next(i for i, (ee, x) in enumerate(sm) if ee == e0 and isinstance(x, I) and x.is_trans)
        part = lambda a0, a1: self.flat_stream([x if isinstance(x, tuple) else I(x.text) for _, x in sm[a0:a1]])
        idx = pos(a.split)
        qk = lambda *qs: self.emit([I("s_nop 0")] + self.qk_mfmas(0, zero_c=True, qs=qs))

        def variantA():
            mksrd(SQ, 4, S_T1, 65536)
            self.emit(qgrp(0)); self.emit(qgrp(1))
            mksrd(SK, 6, S_T0, 262144)
            mksrd(SV, 8, S_T0, 262144); mksrd(SO, 10, S_T1, 65536)
            vd_setup(); setup()
            queue = [tile("K", 0), qgrp(2), qgrp(3), tile("V", 0), tile("K", 1), tile("K", 2), tile("V", 1)]
            flat = []
            for grp in queue:
                lds = [x for x in grp if x.is_vmem]; hd = [x for x in grp if not x.is_vmem]
                for n, x in enumerate(lds): flat.append((hd if n == 0 else []) + [x])
            def take(n):
                r = []
                for _ in range(n):
                    if flat: r += flat.pop(0)
                return r
            self.emit(take(a.ahead))
            self.emit(self.stamp())
            h = a.mid
            lt = a.late
            qproc(0, take(4 - h - lt), take(h)); self.emit(take(lt))
            qproc(1, take(4 - h - lt), take(h)); self.emit(take(lt))
            self.emit(self.stamp())
            e(f"s_waitcnt vmcnt({self.vm_needed(['K0'])})")
            self.emit(take(4 - h - lt))
            e("s_barrier")
            self.emit(self.k_reads(0))
            e("s_waitcnt lgkmcnt(0)")
            qk(0, 1)
            self.emit(take(h))
            e("s_nop 7")
            self.emit(self.maxfix_first(0, (0, 1)))
            n1 = pos(a.pexp)
            self.emit(part(0, n1))
            self.emit(take(lt))
            self.emit(self.stamp())
            qproc(2, take(4 - h - lt), take(h), fuse=True)
            self.emit(part(n1, pos(16)))
            self.emit(self.maxfix_first(0, (2,)))
            self.emit(part(pos(16), idx))
            self.emit(take(lt))
            self.emit(self.stamp())
            qproc(3, take(a.q3n), (), fuse=True)
            self.emit(self.k_reads(1))
            self.emit(self.maxfix_first(0, (3,)))
            if a.tstamp: self.emit(self.stamp())
            e(f"s_waitcnt vmcnt({self.vm_needed(['V0'])}) lgkmcnt(0)")
            if a.tstamp: self.emit(self.stamp())
            self.emit(take(99))
            e("s_barrier", "V0 visible; Q staging slots free")
            self.emit(self.stamp())

        def variantB():
            mksrd(SK, 6, S_T0, 262144)
            self.emit(tile("K", 0))
            mksrd(SV, 8, S_T0, 262144)
            vd_setup()
            self.emit(tile("V", 0))
            if a.b_k1: self.emit(tile("K", 1))
            mksrd(SQ, 4, S_T1, 65536); mksrd(SO, 10, S_T1, 65536)
            setup()
            e(f"s_waitcnt vmcnt({a.b_wait})")
            for g in range(4): self.emit(qgrp(g))
            if not a.b_k1: self.emit(tile("K", 1))
            self.emit(self.stamp())
            e(f"s_waitcnt vmcnt({self.vm_needed(['K0'])})")
            e("s_barrier")
            self.emit(self.k_reads(0))
            qproc(0)
            qk(0)
            self.emit(tile("V", 1))
            self.emit(self.stamp())
            qproc(1)
            qk(1)
            self.emit(self.maxfix_first(0, (0,)))
            self.emit(tile("K", 2))
            self.emit(part(0, pos(8)))
            self.emit(self.stamp())
            qproc(2)
            qk(2)
            self.emit(self.maxfix_first(0, (1,)))
            self.emit(part(pos(8), pos(16)))
            self.emit(self.maxfix_first(0, (2,)))
            self.emit(part(pos(16), idx))
            self.emit(self.stamp())
            qproc(3)
            qk(3)
            self.emit(self.k_reads(1))
            e(f"s_waitcnt vmcnt({self.vm_needed(['V0','K1'])})")
            e("s_barrier", "V0,K1 visible; Q staging slots free")
            self.emit(tile("V", 2))
            self.emit(self.maxfix_first(0, (3,)))
            self.emit(tile("K", 3))
            e("s_waitcnt lgkmcnt(0)")
            self.emit(self.stamp())

        self.alt = None
        if a.ab:
            e(f"s_bitcmp1_b32 s2, {a.ab_bit}")
            e("s_cbranch_scc0 L_varA")
            nh = len(self.out)
            variantB()
            e("s_branch L_loop")
            self.alt = (nh, len(self.out))
            self.dma_log = []
            e("L_varA:")
        variantA()
        self.first = [I("L_first:"), I(f"s_waitcnt vmcnt({self.vm_needed(['K1'])})"), I("s_barrier")] + (self.stamp() if a.tstamp else []) + tile("K", 3) + [I("s_branch L_first_ret")]
        if a.cpf2:
            self.first += [I(x) for x in ("L_last:", f"v_mbcnt_lo_u32_b32 v{T+9}, -1, 0", f"v_mbcnt_hi_u32_b32 v{T+9}, -1, v{T+9}",
                           f"v_lshlrev_b32 v{T+9}, 7, v{T+9}", f"v_min_u32 v{T+9}, L_end-L_tail, v{T+9}", f"v_add_u32 v{T+9}, L_tail-L_pc0, v{T+9}",
                           f"global_load_dword v{T+8}, v{T+9}, s[62:63]", "s_branch L_last_ret")]
        return [x for _, x in sm[idx:]]

    def epilogue(self):
        e, a = self.e, self.a
        self.emit(self.stamp())
        if a.stamp:
            e("s_waitcnt vmcnt(0)")
            self.emit(self.stamp())
            e(f"v_mbcnt_lo_u32_b32 v0, -1, 0"); e(f"v_mbcnt_hi_u32_b32 v0, -1, v0"); e("v_lshlrev_b32 v0, 2, v0")
            e(f"buffer_store_dword a{ST0}, v0, {srd(SWS)}, s{S_WSO} offen")
            e(f"buffer_store_dword a{ST1}, v0, {srd(SWS)}, s{S_WSO} offen offset:256")
        if a.spin_end:
            e("s_waitcnt vmcnt(0)")
            self.spin(a.spin_end, "L_spin2")
        e("L_end:")
        e("s_endpgm")

    def body(self, rest):
        e, a = self.e, self.a
        U = 2 * a.unroll
        txt = lambda r: [x if isinstance(x, tuple) else x.text for x in r]
        cp = lambda r: [x if isinstance(x, tuple) else I(x.text) for x in r]
        rest0 = txt(rest)
        inc = lambda: I(f"s_add_u32 s{S_G}, s{S_G}, 16384")
        seq = []
        for u in range(U):
            t = u // 2
            exA, exB = [], []
            pre = lambda r: Item(I(f"s_add_u32 s{r}, s{r}, 16384"), 2, a.d_early - 1)
            if u % 2 == 1:
                exB += [pre(S_G)] + self.dma_items("K", t + 4, [I(f"s_xor_b32 s{S_PB}, s{S_PB}, 0x8000")] if (a.unroll == 2 and u == 3) else [])
            else:
                exB += [pre(S_GV)] + self.dma_items("V", t + 2, [I(f"s_xor_b32 s{S_PB2}, s{S_PB2}, 0x8000")] if (a.unroll == 2 and u == 2) else [])
            xored = False
            if a.unroll == 2:
                if u == 2:
                    exA += [Item(I(f"v_xor_b32 v{KA(ds)}, 0x8000, v{KA(ds)}"), 0, 31) for ds in range(4)]
                xored = u >= 2
                if u == 3:
                    for db in range(8):
                        g = a.vplan[2 * db + 1] + a.v_slack + 1
                        if g <= 31: exA.append(Item(I(f"v_xor_b32 v{VA(db)}, 0x8000, v{VA(db)}"), g, 99))
                        else: exB.append(Item(I(f"v_xor_b32 v{VA(db)}, 0x8000, v{VA(db)}"), 0, 31))
            if u == 0:
                exA.append(Item(I(f"s_cmp_eq_u32 s{S_CNT}, {16 // a.unroll}"), a.first_gap - 1, a.first_gap - 1))
                exA.append(Item([I("s_cbranch_scc1 L_first"), I("L_first_ret:")], a.first_gap, a.first_gap))
            if u == a.cpf2_u and a.cpf2:
                exA.append(Item(I(f"s_cmp_eq_u32 s{S_CNT}, 2"), 9, 9))
                exA.append(Item([I("s_cbranch_scc1 L_last"), I("L_last_ret:")], 10, 10))
            if u == U - 1:
                exA.append(Item(I(f"s_sub_u32 s{S_CNT}, s{S_CNT}, 1"), 4, 31))
                exB.append(Item(I(f"s_cmp_eq_u32 s{S_CNT}, 1"), 31, 31))
            o, first, rest = self.phaseA(u, rest, extra=exA, xored=xored)
            seq += o
            seq += self.phaseB(u, first, barrier=(8 if u % 2 == 1 else None), extra=exB)
            if a.stamp and a.stamp_every and u % a.stamp_every == a.stamp_every - 1:
                seq += self.stamp() + [I(f"s_cmp_eq_u32 s{S_CNT}, 1")]
        seq.append(I("s_cbranch_scc0 L_loop"))
        assert txt(rest) == rest0
        _, pend = self.insert_waits(seq, [])
        seq2, pend2 = self.insert_waits(seq, pend)
        assert pend == pend2
        if a.spin_loop: self.spin(a.spin_loop, "L_spin1")
        if a.align: e(f".p2align {a.align}")
        for _ in range(a.pad): e("s_nop 0")
        e("L_loop:")
        n0 = len(self.out)
        self.emit(seq2)
        n1 = len(self.out)
        e("L_tail:")
        if a.spin_epi: self.spin(a.spin_epi, "L_spin3")
        o, _ = self.insert_waits((self.stamp() if not a.stamp_every else []) + self.tail_split(cp(rest)), pend)
        self.emit(o)
        self.check_seq = lambda: self.out[:n1] + self.out[n0:n1] + self.out[n1:]
        self.loop_range = (n0, n1)
        self.tail_range = (n1, len(self.out))

    def build(self):
        rest = self.prologue()
        n0 = len(self.out)
        self.body(rest)
        if self.a.drop:
            pats = self.a.drop.split(",")
            l0, l1 = self.loop_range
            keep = lambda i: not any(i.text.startswith(p.replace("~", " ")) for p in pats) or i.text == "s_waitcnt lgkmcnt(0)"
            self.out = self.out[:l0] + [i for i in self.out[l0:l1] if keep(i)] + self.out[l1:]
            self.nocheck2 = True
        self.epilogue()
        seq = self.check_seq()
        if getattr(self, "nocheck", False):
            return "", []
        if getattr(self, "nocheck2", False):
            probs = []
        elif self.alt:
            nh, nb = self.alt
            probs = check(seq[:nh] + seq[nb:], "mainA", verbose=False)
            probs += check(seq[:nb] + seq[self.loop_range[0]:], "mainB", verbose=False)
        else:
            probs = check(seq, "main", verbose=False)
        probs += check(self.slow, "slow", verbose=False)
        hdr = open("standalone__gqa_softmax__near_ridge.s.ref").read().split("; Override")[0]
        txt = hdr + "; @launch grid=(256,1,1) block=(256,1,1) lds=163840\n" + DOC
        txt += '.amdgcn_target "amdgcn-amd-amdhsa--gfx950"\n.text\n'
        txt += f".globl {KNAME}\n.p2align 8\n.type {KNAME},@function\n{KNAME}:\n"
        txt += "\n".join(str(i) for i in self.out) + "\n"
        txt += "\n".join(str(i) for i in self.first + self.slow) + "\n"
        txt += f""".section .rodata,"a"
.p2align 6
.amdhsa_kernel {KNAME}
  .amdhsa_next_free_vgpr {256 + NAGPR}
  .amdhsa_next_free_sgpr 68
  .amdhsa_accum_offset 256
  .amdhsa_group_segment_fixed_size 0
  .amdhsa_kernarg_size 48
  .amdhsa_user_sgpr_count 2
  .amdhsa_user_sgpr_kernarg_segment_ptr 1
  .amdhsa_system_sgpr_workgroup_id_x 1
.end_amdhsa_kernel
"""
        return txt, probs

    def gap_report(self, rng=None):
        n0, n1 = rng or self.loop_range
        gaps = []; cur = None
        for i in self.out[n0:n1]:
            if i.is_label: continue
            if i.is_mfma:
                if cur is not None: gaps.append(cur)
                cur = "4" if i.passes == 2 else ""
            elif cur is not None:
                cur += "E" if i.is_trans else ("v" if i.is_valu else ("d" if i.is_ds else ("M" if i.is_vmem else "s")))
        gaps.append(cur)
        def t(gp):
            if gp == "4": return 8
            gp = gp.replace("4", "")
            tm = 4; prev = "m"
            for c in gp:
                if c == "s": tm += 4
                else:
                    tm = max(tm, 8)
                    if c in "dM" and prev in "vE": tm += 4
                    if c in "vE" and prev == "M": tm += 4
                    tm += 8 if c == "E" else 4
                prev = c
            if prev in "dM": tm += 4
            return max(16, tm)
        return gaps, sum(map(t, gaps))


def get_args(argv=None):
    p = argparse.ArgumentParser()
    p.add_argument("-o", default="k2.s")
    p.add_argument("--stamp", action="store_true")
    p.add_argument("--split", type=int, default=18)
    p.add_argument("--bar_gap", type=int, default=0)
    p.add_argument("--vplan", default="2,5,8,11,14,17,20,22,24,25,26,27,28,29,30,31")
    p.add_argument("--kplan", default="3,6,9,12,15,18,21,24")
    p.add_argument("--v_slack", type=int, default=1)
    p.add_argument("--k_slack", type=int, default=2)
    p.add_argument("--d_early", type=int, default=7)
    p.add_argument("--d_step", type=int, default=6)
    p.add_argument("--d_slack", type=int, default=1)
    p.add_argument("--dma_in", default="B")
    p.add_argument("--unroll", type=int, default=2)
    p.add_argument("--align", type=int, default=6)
    p.add_argument("--drop", default="")
    p.add_argument("--late", type=int, default=2)
    p.add_argument("--q3n", type=int, default=2)
    p.add_argument("--pexp", type=int, default=8)
    p.add_argument("--perm", type=int, default=0)
    p.add_argument("--nt_upto", type=int, default=4)
    p.add_argument("--omod2", default="")
    p.add_argument("--h0_qmajor", type=int, default=0)
    p.add_argument("--sum4", type=int, default=0)
    p.add_argument("--wait_early", type=int, default=1)
    p.add_argument("--fin_exp", type=int, default=1)
    p.add_argument("--pad", type=int, default=0)
    p.add_argument("--pk", type=int, default=1)
    p.add_argument("--pack_grp", type=int, default=1)
    p.add_argument("--tstamp", type=int, default=0)
    p.add_argument("--hsplit", type=int, default=10)
    p.add_argument("--hk_early", type=int, default=3)
    p.add_argument("--hv_early", type=int, default=0)
    p.add_argument("--st_flat", type=int, default=4)
    p.add_argument("--last_more", type=int, default=5)
    p.add_argument("--st_b28", default="3,8,13")
    p.add_argument("--st_a29", default="2")
    p.add_argument("--st_b29", default="12,15")
    p.add_argument("--hvplan", default="3,6,9,10,11,12,13,14")
    p.add_argument("--hv_slack", type=int, default=1)
    p.add_argument("--hkplan", default="2,3,5,6,8,9,11,12")
    p.add_argument("--hk_slack", type=int, default=1)
    p.add_argument("--epi_from", type=int, default=0)
    p.add_argument("--cpf2", type=int, default=0)
    p.add_argument("--cpf2_u", type=int, default=1)
    p.add_argument("--cpf", type=int, default=1)
    p.add_argument("--ahead", type=int, default=6)
    p.add_argument("--mid", type=int, default=0)
    p.add_argument("--stamp_every", type=int, default=4)
    p.add_argument("--vsum", default="")
    p.add_argument("--first_gap", type=int, default=26)
    p.add_argument("--spin_end", type=int, default=0)
    p.add_argument("--spin_loop", type=int, default=0)
    p.add_argument("--spin_epi", type=int, default=0)
    p.add_argument("--ab", type=int, default=0)
    p.add_argument("--ab_bit", type=int, default=3)
    p.add_argument("--b_k1", type=int, default=1)
    p.add_argument("--b_wait", type=int, default=0)
    p.add_argument("--epi_split", type=int, default=0)
    p.add_argument("--epi_mul", type=int, default=0)
    p.add_argument("--kvmod", default="nt")
    p.add_argument("--qmod", default="nt")
    p.add_argument("--omod", default="nt")
    a = p.parse_args(argv)
    a.vplan = [int(x) for x in a.vplan.split(",")]
    a.vsum = [int(x) for x in a.vsum.split(",") if x]
    a.hvplan = [int(x) for x in a.hvplan.split(",")]
    a.hkplan = [int(x) for x in a.hkplan.split(",")]
    a.st_b28 = [int(x) for x in a.st_b28.split(",")]; a.st_a29 = [int(x) for x in a.st_a29.split(",")]; a.st_b29 = [int(x) for x in a.st_b29.split(",")]
    a.kplan = [int(x) for x in a.kplan.split(",")]
    return a


if __name__ == "__main__":
    a = get_args()
    g = Gen(a)
    txt, probs = g.build()
    open(a.o, "w").write(txt)
    for p in probs: print(p)
    gaps, est = g.gap_report()
    print("gaps:", " ".join(x or "-" for x in gaps))
    tg, test = g.gap_report(g.tail_range)
    print("tail:", " ".join(x or "-" for x in tg), test)
    print(f"wrote {a.o}: {len(g.out)} main insts, {len(g.slow)} slow insts, {len(probs)} problems; est cycles/subtile {est/(2*a.unroll):.0f}")
```

```python
import sys, struct, math, argparse
from asmlib import I, check

KNAME = "standalone__gqa_softmax__near_ridge_kernel"
CSC = math.log2(math.e) / math.sqrt(128.0)
def f2u(x): return struct.unpack("<I", struct.pack("<f", x))[0]
THR = f2u(2.0 ** 20)
MF = "v_mfma_f32_16x16x32_bf16"

def O(q, db): return (q * 8 + db) * 4
def S(buf, q): return 128 + 32 * buf + 8 * q
def NEGM(q): return 192 + 4 * q
def X(q): return 208 + 4 * q
def KA(ds): return 224 + ds
def VA(db): return 228 + db
def KD(n): return 236 + n
BPA, WA0 = 240, 241
def L(q): return 242 + q
T = 246
def Q(q, ds): return (q * 4 + ds) * 4
def KF(kb2, ds): return 64 + (kb2 * 4 + ds) * 4
def VF(db): return 96 + 4 * db
ONES = 128
ST0, ST1 = 132, 133
NAGPR = 232
def VFB(u): return {28: 136, 29: 168, 30: 200}.get(u, 96)
def vr(b, n): return f"v[{b}:{b+n-1}]"
def ar(b, n): return f"a[{b}:{b+n-1}]"

SQ, SK, SV, SO = 12, 16, 20, 24
S_W, S_KW, S_G = 28, 29, 30
S_T0, S_T1, S_T2 = 31, 32, 33
S_PB, S_CNT = 34, 35
S_C = 36
S_WSO, S_SI, S_STAMP = 38, 39, 40
SWS = 44
S_QL, S_QG = 56, 57
S_GV, S_PB2 = 58, 59
S_PERM = 3
def srd(b): return f"s[{b}:{b+3}]"


DOC = """;
;
"""


class Item:
    def __init__(self, ins, early=0, late=10**6):
        self.ins = ins if isinstance(ins, list) else [ins]
        self.early, self.late = early, late
    @property
    def cost(self): return sum(i.cost for i in self.ins)


class Gen:
    def __init__(self, a):
        self.a = a
        self.out, self.slow, self.dma_log = [], [], []

    def e(self, t, note=None): self.out.append(I(t, note))

    def emit(self, ins):
        for i in ins:
            if hasattr(i, "dma"): self.dma_log.append(i.dma)
            self.out.append(i)

    def stamp(self):
        if not self.a.stamp: return []
        return [I(f"s_memtime s[{S_STAMP}:{S_STAMP+1}]"), I(f"s_memrealtime s[{S_STAMP+2}:{S_STAMP+3}]"),
                I("s_waitcnt lgkmcnt(0)"), I(f"s_lshl_b64 exec, 1, s{S_SI}"),
                I(f"v_accvgpr_write_b32 a{ST0}, s{S_STAMP}"), I(f"v_accvgpr_write_b32 a{ST1}, s{S_STAMP+2}"),
                I("s_mov_b64 exec, -1"), I(f"s_add_u32 s{S_SI}, s{S_SI}, 1")]

    def spin(self, n, lab):
        for t in (f"{lab}:", "s_memrealtime s[66:67]", "s_waitcnt lgkmcnt(0)", "s_sub_u32 s66, s66, s64", f"s_cmp_lt_u32 s66, {n}", f"s_cbranch_scc1 {lab}"):
            self.e(t)

    def slot(self, t): return t % self.a.unroll if self.a.unroll < 4 else t % 4

    def dma_tile(self, which, t, static=False):
        base = (0 if which == "K" else 65536)
        if static or self.a.unroll == 4:
            m0 = I(f"s_add_u32 m0, s{S_KW}, {base + (t % 4) * 16384}")
        else:
            m0 = I(f"s_add_u32 m0, s{S_PB if which == 'K' else S_PB2}, {base + (t % 2) * 16384}")
        r = []
        for n in range(4):
            vo = KD(n) if which == "K" else KD(n & 1)
            sr = SK if which == "K" else SV
            sg = S_G if which == "K" else S_GV
            ld = I(" ".join(f"buffer_load_dwordx4 v{vo}, {srd(sr)}, s{sg} offen offset:{n*1024} {self.a.kvmod} lds".split()),
                   f"DMA {which}{t}.{n}")
            ld.dma = f"{which}{t}"
            r.append(ld)
        return m0, r

    def vm_needed(self, names):
        last = max(i for i, n in enumerate(self.dma_log) if n in names)
        return len(self.dma_log) - 1 - last

    def qk_mfmas(self, buf, zero_c=False, qs=range(4)):
        r = []
        for q in qs:
            for kb2 in range(2):
                d = vr(S(buf, q) + 4 * kb2, 4)
                for ds in range(4):
                    c = d
                    if ds == 0: c = "0" if zero_c else vr(NEGM(q), 4)
                    r.append(I(f"{MF} {d}, {ar(KF(kb2,ds),4)}, {ar(Q(q,ds),4)}, {c}"))
        return r

    def pv_mfmas(self, buf, qmajor=False, qs=(0, 1, 2, 3), vb=96):
        o = [(db, q) for db in range(8) for q in qs]
        if qmajor: o = [(db, q) for q in qs for db in range(8)]
        return [I(f"{MF} {vr(O(q,db),4)}, {vr(S(buf,q),4)}, {ar(vb+4*db,4)}, {vr(O(q,db),4)}") for db, q in o]

    def sum_mfma(self, buf, q, h=None):
        if h is not None:
            return I(f"v_mfma_f32_4x4x4_16b_bf16 {vr(X(q),4)}, {ar(ONES,2)}, {vr(S(buf,q)+2*h,2)}, {vr(X(q),4) if h else 0}")
        return I(f"{MF} {vr(X(q),4)}, {ar(ONES,4)}, {vr(S(buf,q),4)}, 0")

    def k_reads(self, u):
        t, kb = u // 2, u % 2
        off = self.slot(t) * 16384 + kb * 8192
        return [I(f"ds_read_b128 {ar(KF(kb2,ds),4)}, v{KA(ds)} offset:{off + kb2*4096}") for kb2 in range(2) for ds in range(4)]

    def v_reads(self, u, vb=96):
        t, kb = u // 2, u % 2
        off = self.slot(t) * 16384 + kb * 8192
        return [I(f"ds_read_b64_tr_b16 {ar(vb+4*db+2*tt,2)}, v{VA(db)} offset:{off + tt*4096}") for db in range(8) for tt in range(2)]

    def sm_stream(self, buf, qs=(0, 1, 2, 3)):
        r = []
        def post(e):
            q, i = e // 8, e % 8
            b = S(buf, q)
            if q in self.a.vsum:
                if i == 1: r.append((e, I(f"v_add_f32 v{X(q)}, v{b}, v{b+1}")))
                elif i > 1: r.append((e, I(f"v_add_f32 v{X(q)}, v{X(q)}, v{b+i}")))
            if i % 2 == 1:
                if self.a.perm: r.append((e, I(f"v_perm_b32 v{b+i//2}, v{b+i}, v{b+i-1}, s{S_PERM}")))
                else: r.append((e, I(f"v_cvt_pk_bf16_f32 v{b+i//2}, v{b+i-1}, v{b+i}")))
            if self.a.sum4:
                if i in (3, 7): r.append((e, ("SUM", buf, q, i // 4)))
            elif i == 7 and q not in self.a.vsum: r.append((e, ("SUM", buf, q)))
        e0, e1 = 8 * qs[0], 8 * qs[-1] + 8
        for e in range(e0, e1):
            r.append((e, I(f"v_exp_f32 v{S(buf,0)+e}, v{S(buf,0)+e}")))
            if e > e0: post(e - 1)
        post(e1 - 1)
        return r

    def flat_stream(self, items):
        r = []
        for x in items:
            if isinstance(x, tuple):
                r += [I("s_nop 1"), self.sum_mfma(*x[1:])]
            else:
                if r and r[-1].is_trans and set(r[-1].dst) & set(x.src): r.append(I("s_nop 0"))
                r.append(x)
        return r

    def rowmax(self, b, t0, t1):
        return [I(f"v_max3_f32 v{t0}, v{b}, v{b+1}, v{b+2}"), I(f"v_max3_f32 v{t1}, v{b+3}, v{b+4}, v{b+5}"),
                I(f"v_max3_f32 v{t0}, v{t0}, v{b+6}, v{b+7}"), I(f"v_max_f32 v{t0}, v{t0}, v{t1}"),
                I(f"v_mov_b32 v{t1}, v{t0}"), I("s_nop 1"), I(f"v_permlane16_swap_b32 v{t0}, v{t1}"), I("s_nop 1"),
                I(f"v_max_f32 v{t0}, v{t0}, v{t1}"),
                I(f"v_mov_b32 v{t1}, v{t0}"), I("s_nop 1"), I(f"v_permlane32_swap_b32 v{t0}, v{t1}"), I("s_nop 1")]

    def maxfix_first(self, buf, qs):
        r = []
        ts = {q: (T + 2 * i, T + 2 * i + 1) for i, q in enumerate(qs)}
        def each(f):
            for q in qs: r.append(I(f(q, S(buf, q), *ts[q])))
        pad = [I("s_nop 1")] if len(qs) < 3 else []
        each(lambda q, b, t0, t1: f"v_max3_f32 v{t0}, v{b}, v{b+1}, v{b+2}")
        each(lambda q, b, t0, t1: f"v_max3_f32 v{t1}, v{b+3}, v{b+4}, v{b+5}")
        each(lambda q, b, t0, t1: f"v_max3_f32 v{t0}, v{t0}, v{b+6}, v{b+7}")
        each(lambda q, b, t0, t1: f"v_max_f32 v{t0}, v{t0}, v{t1}")
        for sw in ("v_permlane16_swap_b32", "v_permlane32_swap_b32"):
            each(lambda q, b, t0, t1: f"v_mov_b32 v{t1}, v{t0}")
            r += pad
            each(lambda q, b, t0, t1: f"{sw} v{t0}, v{t1}")
            r += pad
            each(lambda q, b, t0, t1: f"v_max_f32 v{t0}, v{t0}, v{t1}")
        for q in qs:
            t0 = ts[q][0]
            for i in range(4): r.append(I(f"v_sub_f32 v{NEGM(q)+i}, 0, v{t0}"))
            for i in range(8): r.append(I(f"v_sub_f32 v{S(buf,q)+i}, v{S(buf,q)+i}, v{t0}"))
        return r

    def slow_path(self, u, label, has_next, xored, qs=(0, 1, 2, 3), reload_k=None):
        cur, nxt = u % 2, (u + 1) % 2
        r = [I(f"{label}:")]
        x = [I(f"v_xor_b32 v{KA(ds)}, 0x8000, v{KA(ds)}") for ds in range(4)] if xored else []
        r += [I("s_nop 3")] + x + self.k_reads(u) + [I(i.text) for i in x]
        r.append(I("s_waitcnt lgkmcnt(0)"))
        r += self.qk_mfmas(cur, qs=qs)
        r.append(I("s_nop 7"))
        if reload_k is not None: r += self.k_reads(reload_k)
        t0, t1, t2 = T, T + 1, T + 2
        for q in qs:
            b = S(cur, q)
            r += self.rowmax(b, t0, t1)
            r.append(I(f"v_max3_f32 v{t0}, v{t0}, v{t1}, 0"))
            r.append(I(f"v_exp_f32 v{t2}, -v{t0}"))
            for i in range(4): r.append(I(f"v_sub_f32 v{NEGM(q)+i}, v{NEGM(q)+i}, v{t0}"))
            r.append(I(f"v_mul_f32 v{L(q)}, v{L(q)}, v{t2}"))
            if has_next:
                for i in range(8): r.append(I(f"v_sub_f32 v{S(nxt,q)+i}, v{S(nxt,q)+i}, v{t0}"))
            for k in range(4): r.append(I(f"ds_bpermute_b32 v{T+6+k}, v{BPA}, v{t2} offset:{4*k}"))
            r.append(I("s_waitcnt lgkmcnt(0)"))
            for i in range(32): r.append(I(f"v_mul_f32 v{O(q,0)+i}, v{O(q,0)+i}, v{T+6+i%4}"))
            for i in range(8): r.append(I(f"v_sub_f32 v{b+i}, v{b+i}, v{t0}"))
        r += self.flat_stream([x for _, x in self.sm_stream(cur, qs)])
        r.append(I("s_nop 7"))
        if reload_k is not None: r.append(I("s_waitcnt lgkmcnt(0)"))
        r.append(I(f"s_branch {label}_ret"))
        return r

    def schedule(self, mfmas, stream, others, tail=(), tail_lag=None, fin=(), nxt_stream=None):
        out = []
        if tail_lag is None: tail_lag = 5 if self.a.sum4 else 8
        M = list(mfmas); stream = list(stream); tail = list(tail)
        others = sorted(others, key=lambda x: (x.early, x.late))
        kind = lambda o: "s" if o.ins[0].is_salu else ("d" if o.ins[0].is_ds else ("m" if o.ins[0].is_vmem else "v"))
        pend = []
        last_sum_pos = None
        def states_since(idx): return sum(i.states for i in out[idx + 1:])
        g = -1
        def pop_markers():
            while stream and isinstance(stream[0], tuple):
                x = stream.pop(0); pend.append([self.sum_mfma(*x[1:]), len(out) - 1])
        def last_real():
            return out[-1]
        def ok(n):
            l = last_real()
            return not (l.is_trans and set(l.dst) & set(n.src))
        def take(k, overdue=False):
            for o in others:
                if kind(o) == k and (o.late <= g if overdue else o.early <= g):
                    others.remove(o); return o
            return None
        def small_v():
            pop_markers()
            o = take("v", True)
            if o: return o.ins
            if stream and stream[0].cost == 4 and ok(stream[0]): return [stream.pop(0)]
            if tail and g >= 2 and not stream and not pend and (last_sum_pos is None or states_since(last_sum_pos) >= tail_lag):
                return [tail.pop(0)]
            o = take("v")
            if o: return o.ins
            return None
        while M or pend or any(isinstance(x, tuple) for x in stream):
            if pend and states_since(pend[0][1]) >= 2:
                out.append(pend.pop(0)[0]); last_sum_pos = len(out) - 1
                if out[-1].passes == 2 and M: out.append(M.pop(0))
            elif M:
                out.append(M.pop(0))
            elif pend:
                out.append(I("s_nop 1")); out.append(pend.pop(0)[0]); last_sum_pos = len(out) - 1
            else:
                while stream and not isinstance(stream[0], tuple):
                    if not ok(stream[0]): out.append(I("s_nop 0"))
                    out.append(stream.pop(0))
                pop_markers(); continue
            g += 1
            is_last = not M and not pend and not any(isinstance(x, tuple) for x in stream)
            if is_last and fin: break
            o = take("s")
            if o: out += o.ins
            pop_markers()
            nxt_exp = bool(stream) and stream[0].cost == 8
            o = take("m", True) or take("d", True)
            if not o and not nxt_exp: o = take("d") or take("m")
            if o:
                out += o.ins
                if kind(o) == "d":
                    v = small_v()
                    if v: out += v
            elif nxt_exp:
                out.append(stream.pop(0))
            else:
                for _ in range(2):
                    v = small_v()
                    if v: out += v
            pop_markers()
        for x in stream:
            if not ok(x): out.append(I("s_nop 0"))
            out.append(x)
        for o in others: out += o.ins
        if tail:
            if last_sum_pos is not None and states_since(last_sum_pos) < tail_lag:
                out.append(I(f"s_nop {tail_lag - states_since(last_sum_pos) - 1}"))
            out += tail
        out += list(fin)
        if fin and nxt_stream and self.a.fin_exp and not isinstance(nxt_stream[0], tuple):
            out.append(nxt_stream.pop(0))
        return out

    def insert_waits(self, seq, pending):
        out = []
        pend = list(pending)
        pend = [(p, -1) for p in pend]
        last_m = -1
        for x in seq:
            if x.op == "s_waitcnt" and "lgkmcnt" in x.text:
                import re
                k = int(re.search(r"lgkmcnt\((\d+)\)", x.text).group(1))
                pend = pend[len(pend) - k:] if 0 < k < len(pend) else ([] if k == 0 else pend)
            if x.is_mfma or (x.is_vmem and "store" in x.op) or x.op == "v_pk_mul_f32":
                need = [i for i, (p, _) in enumerate(pend) if p & set(x.src)]
                if need:
                    j = max(need)
                    pos = last_m + 1 if (pend[j][1] <= last_m and x.is_mfma) else len(out)
                    if x.is_mfma and self.a.wait_early and any(y.op.startswith("s_cbranch") or y.op == "s_barrier" for y in out[last_m + 1:]):
                        pm = max((k for k in range(last_m) if out[k].is_mfma and out[k].passes > 2), default=-1)
                        if pm >= 0 and pend[j][1] <= pm and not any(y.is_label for y in out[pm:last_m]):
                            pos = pm + 1; last_m += 1
                    n = sum(1 for (p, q) in pend[j + 1:] if q < pos)
                    n = min(n, 15)
                    out.insert(pos, I(f"s_waitcnt lgkmcnt({n})"))
                    pend = [(p, q + (1 if q >= pos else 0)) for (p, q) in pend[j + 1:]]
                if x.is_mfma and x.passes > 2: last_m = len(out)
            if x.is_ds: pend.append((set(x.dst), len(out)))
            out.append(x)
        return out, [p for p, _ in pend]

    def check_ins(self, qs=(0, 1, 2, 3)):
        if len(qs) == 2:
            return [I(f"v_max_f32 v{T}, v{X(qs[0])}, v{X(qs[1])}"), I(f"v_cmp_lt_f32 vcc, {THR:#x}, v{T}")]
        return [I(f"v_max3_f32 v{T}, v{X(0)}, v{X(1)}, v{X(2)}"), I(f"v_max_f32 v{T}, v{T}, v{X(3)}"),
                I(f"v_cmp_lt_f32 vcc, {THR:#x}, v{T}")]

    def split_stream(self, buf):
        sm = self.sm_stream(buf)
        idx = next(i for i, (e, x) in enumerate(sm) if e == self.a.split and isinstance(x, I) and x.is_trans)
        return [x for _, x in sm[:idx]], [x for _, x in sm[idx:]]

    def phaseA(self, u, rest, has_qk=True, extra=(), xored=False, tag=""):
        a = self.a
        nxt = (u + 1) % 2
        vreads = self.v_reads(u)
        label = f"L_slow_{u}{tag}"
        others = [Item(v, g, g + a.v_slack) for v, g in zip(vreads, a.vplan)]
        others += list(extra)
        fin = [I(f"s_cbranch_vccnz {label}"), I(f"{label}_ret:")]
        if has_qk:
            first, nrest = self.split_stream(nxt)
            o = self.schedule(self.qk_mfmas(nxt), rest, others, tail=self.check_ins(), fin=fin, nxt_stream=first)
        else:
            first, nrest = [], []
            o = list(vreads[:8])
            fl = self.flat_stream(rest)
            o += fl[:4] + vreads[8:] + fl[4:] + [I("s_nop 7")] + self.check_ins() + fin
        self.slow += self.slow_path(u, label, has_qk, xored)
        return o, first, nrest

    def phaseB(self, u, stream, has_kreads=True, barrier=None, extra=(), last=False):
        a = self.a
        cur = u % 2
        others = []
        if barrier is not None:
            others.append(Item([I(f"s_waitcnt vmcnt({barrier})")], a.bar_gap, a.bar_gap))
            others.append(Item([I("s_barrier")], a.bar_gap + 1, a.bar_gap + 1))
        if has_kreads:
            others += [Item(k, g, g + a.k_slack) for k, g in zip(self.k_reads(u + 2), a.kplan)]
        for q in range(4):
            others.append(Item(I(f"v_add_f32 v{L(q)}, v{L(q)}, v{X(q)}"), 0, 9 + 3 * q))
        others += list(extra)
        return self.schedule(self.pv_mfmas(cur, qmajor=last), stream, others)

    def hsplit(self, buf, qs):
        sm = self.sm_stream(buf, qs)
        idx = next(i for i, (e, x) in enumerate(sm) if e == 8 * qs[0] + self.a.hsplit and isinstance(x, I) and x.is_trans)
        return [x for _, x in sm[:idx]], [x for _, x in sm[idx:]]

    def site(self, u, qs, has_next, reload_k=None):
        label = f"L_slow_{u}_h{qs[0]}"
        self.slow += self.slow_path(u, label, has_next, False, qs, reload_k)
        return [I(f"s_cbranch_vccnz {label}"), I(f"{label}_ret:")]

    def phaseAh(self, u, qs, rest, qk=None, nxt_first=None, has_next=True, extra=(), vread=True):
        a = self.a
        v = self.v_reads(u, VFB(u)) if vread else []
        fin = self.site(u, qs, has_next)
        if qk:
            others = [Item([v[2 * db], v[2 * db + 1]], max(0, g - a.hv_early), g + a.hv_slack) for db, g in enumerate(a.hvplan) if v] + list(extra)
            return self.schedule(self.qk_mfmas(qk[0] % 2, qs=qk[1]), rest, others, tail=self.check_ins(qs), fin=fin, nxt_stream=nxt_first)
        return self.flat_stream(rest) + [I("s_nop 7")] + self.check_ins(qs) + [I("s_nop 3")] + fin

    def phaseBh(self, u, qs, stream, kread=None, barrier=None, extra=(), last=False, chk=None):
        a = self.a
        others = []
        if barrier is not None:
            others.append(Item([I(f"s_waitcnt vmcnt({barrier})")], 0, 0))
            others.append(Item([I("s_barrier")], 1, 1))
        if kread is not None:
            others += [Item(k, max(0, g - a.hk_early), g + a.hk_slack) for k, g in zip(self.k_reads(kread), a.hkplan)]
        for i, q in enumerate(qs):
            others.append(Item(I(f"v_add_f32 v{L(q)}, v{L(q)}, v{X(q)}"), 0, 5 + 3 * i))
        others += list(extra)
        return self.schedule(self.pv_mfmas(u % 2, qmajor=last, qs=qs, vb=VFB(u)), stream, others)

    VO, WA1, RA = T + 5, T + 3, T + 4
    def epi_setup(self):
        va = T + 8
        r = [f"v_mbcnt_lo_u32_b32 v{va}, -1, 0", f"v_mbcnt_hi_u32_b32 v{va}, -1, v{va}",
             f"v_lshlrev_b32 v{self.VO}, 4, v{va}",
             f"v_lshrrev_b32 v{va+1}, 4, v{va}", f"v_and_b32 v{WA0}, 0xf0, v{self.VO}",
             f"v_lshl_add_u32 v{WA0}, v{va+1}, 10, v{WA0}", f"v_add_u32 v{WA0}, s{S_KW}, v{WA0}", f"v_xor_b32 v{self.WA1}, 64, v{WA0}",
             f"v_lshlrev_b32 v{self.RA}, 8, v{va+1}", f"v_and_b32 v{va+1}, 1, v{va+1}", f"v_lshl_add_u32 v{self.RA}, v{va+1}, 6, v{self.RA}",
             f"v_bfe_u32 v{va+1}, v{va}, 2, 2", f"v_lshl_add_u32 v{self.RA}, v{va+1}, 4, v{self.RA}",
             f"v_and_b32 v{va+1}, 2, v{va}", f"v_lshl_add_u32 v{self.RA}, v{va+1}, 6, v{self.RA}",
             f"v_and_b32 v{va+1}, 1, v{va}", f"v_lshl_add_u32 v{self.RA}, v{va+1}, 3, v{self.RA}",
             f"v_add_u32 v{self.RA}, s{S_KW}, v{self.RA}", f"v_xor_b32 v{KD(0)}, 64, v{self.RA}"]
        r3 = [f"s_lshl_b32 s{S_T0}, s{S_W}, 14", f"s_add_u32 s{S_T1}, s{S_T0}, 4096"]
        return [I(x) for x in r], [], [I(x) for x in r3]
    def epi_pack(self, q):
        r = []
        tmp = S(q % 2, 0)
        for db in range(8):
            b = O(q, db)
            r += [I(f"v_pk_mul_f32 {vr(b+i,2)}, {vr(b+i,2)}, {vr(NEGM(q)+i,2)}") for i in (0, 2)]
        for rr in range(4):
            r += [I(f"v_cvt_pk_bf16_f32 v{tmp+4*rr+k}, v{O(q,2*k)+rr}, v{O(q,2*k+1)+rr}") for k in range(4)]
            r.append(I(f"ds_write_b128 v{self.WA1 if rr % 2 else WA0}, {vr(tmp+4*rr,4)} offset:{(q % 2) * 16384 + rr*256}"))
        return r
    def l_finish(self, qs):
        r = [I(f"v_rcp_f32 v{L(q)}, v{L(q)}") for q in qs] + [I("s_nop 0")]
        for q in qs:
            r += [I(f"ds_bpermute_b32 v{NEGM(q)+k}, v{BPA}, v{L(q)} offset:{4*k}") for k in range(4)]
        return r
    def epi_buf(self, q, j): return O(q, 0) + 4 * j
    def epi_read(self, q):
        return [I(f"ds_read_b64_tr_b16 {vr(self.epi_buf(q,j)+2*h,2)}, v{KD(0) if h else self.RA} offset:{(q % 2) * 16384 + j*1024}")
                for j in range(4) for h in range(2)]
    def epi_store(self, q):
        return [I(" ".join(f"buffer_store_dwordx4 {vr(self.epi_buf(q,j),4)}, v{self.VO}, {srd(SO)}, s{S_T0 + q % 2} offen offset:{j*1024} {self.a.omod if q < self.a.nt_upto else self.a.omod2}".split()))
                for j in range(4)]

    def tail_split(self, rest28):
        a = self.a
        H0, H1 = (0, 1), (2, 3)
        o = []
        rest = []
        su1, su2, su3 = self.epi_setup()
        for u in (28, 29, 30):
            first, nrest = self.hsplit((u + 1) % 2, H0)
            ex = [Item(x, 1 + i // 2, 1 + i // 2) for i, x in enumerate(su1)] + [Item(x, 8 + i, 8 + i) for i, x in enumerate(su3)] if u == 28 else []
            o += self.phaseAh(u, H0, rest, qk=(u + 1, H0), nxt_first=first, extra=ex)
            if a.tstamp: o += self.stamp()
            o += self.phaseBh(u, H0, first, kread=(u + 2 if u < 30 else 29), barrier=(0 if u == 29 else None))
            if a.tstamp: o += self.stamp()
            rest = nrest
        r28 = list(rest28)
        o += self.phaseAh(31, H0, rest, qk=(29, H1), nxt_first=r28, has_next=False)
        if a.tstamp: o += self.stamp()
        lf = [x for x in self.l_finish(H0) if x.op != "s_nop"]
        o += self.phaseBh(31, H0, r28, kread=30, last=a.h0_qmajor,
                          extra=[Item(lf[0], a.lf_gap, a.lf_gap), Item(lf[1], a.lf_gap + 1, a.lf_gap + 1), Item(lf[2:], a.lf_gap + 3, a.lf_gap + 3)])
        if a.tstamp: o += self.stamp()
        o += self.stamp()
        pk0 = self.epi_pack(0)
        o += pk0[:8] + self.check_ins(H1)
        o += pk0[8:18] + self.site(28, H1, True, reload_k=30) + pk0[18:] + self.epi_read(0)
        st0, st1 = self.epi_store(0), self.epi_store(1)
        p1 = self.epi_pack(1)
        cut = [0] + a.st_cut
        for j in range(4): o += p1[cut[j]:cut[j + 1]] + ([st0[j]] if j < a.st_flat else [])
        o += self.epi_read(1)
        if a.tstamp: o += self.stamp()
        stores = st0[a.st_flat:] + st1
        slots = [(0, g) for g in a.st_b28] + [(1, g) for g in a.st_a29] + [(2, g) for g in a.st_b29]
        sp = [[], [], []]
        for x, (ph, g) in zip(stores, slots): sp[ph].append(Item(x, g, g + 1))
        assert len(stores) <= len(slots)
        first, rest = self.hsplit(29 % 2, H1)
        o += self.phaseBh(28, H1, first, extra=sp[0])
        if a.tstamp: o += self.stamp()
        for k, u in enumerate((29, 30)):
            first, nrest = self.hsplit((u + 1) % 2, H1)
            o += self.phaseAh(u, H1, rest, qk=(u + 1, H1), nxt_first=first, extra=(sp[1] if k == 0 else []), vread=False)
            if a.tstamp: o += self.stamp()
            if u == 30:
                first, nrest = first + nrest[:a.last_more], nrest[a.last_more:]
            o += self.phaseBh(u, H1, first, kread=(31 if u == 29 else None), extra=(sp[2] if k == 0 else []))
            if a.tstamp: o += self.stamp()
            rest = nrest
        o += self.phaseAh(31, H1, rest, qk=None, has_next=False, vread=False)
        if a.tstamp: o += self.stamp()
        pre = [x for x in self.l_finish(H1) if x.op != "s_nop"]
        pre += [I(f"v_add_u32 v{x}, 0x10000, v{x}") for x in (WA0, self.WA1, self.RA, KD(0))]
        ex = []
        g = 2
        for x in pre:
            ex.append(Item(x, int(g), int(g))); g += 1 if (x.is_trans or x.is_ds) else 0.5
        ex += [Item(I(f"s_add_u32 s{S_T0}, s{S_T0}, 8192"), 3, 3), Item(I(f"s_add_u32 s{S_T1}, s{S_T1}, 8192"), 4, 4)]
        o += self.phaseBh(31, H1, [], last=True, extra=ex)
        if a.tstamp: o += self.stamp()
        o += self.stamp()
        p3 = self.epi_pack(3); st2 = self.epi_store(2)
        o += self.epi_pack(2) + self.epi_read(2)
        for j in range(4): o += p3[cut[j]:cut[j + 1]] + [st2[j]]
        o += self.epi_read(3) + self.epi_store(3)
        return o

    def dma_items(self, which, t, post=(), static=False):
        a = self.a
        m0, lds = self.dma_tile(which, t, static)
        gs = [a.d_early + n * a.d_step for n in range(4)]
        its = [Item(m0, max(gs[0] - 2, 0), gs[0] - 1)]
        for n in range(4): its.append(Item(lds[n], gs[n], gs[n] + a.d_slack))
        for p in post: its.append(Item(p, gs[3] + a.d_slack + 1, gs[3] + a.d_slack + 3))
        return its

    def prologue(self):
        e, a = self.e, self.a
        if a.stamp:
            e("s_memtime s[48:49]"); e("s_memrealtime s[50:51]")
        if a.spin_end or a.spin_loop or a.spin_epi: e("s_memrealtime s[64:65]")
        e("s_cmp_ge_u32 s2, 256"); e("s_cbranch_scc1 L_end")
        e("s_load_dwordx4 s[4:7], s[0:1], 0"); e("s_load_dwordx4 s[8:11], s[0:1], 16")
        if a.stamp: e(f"s_load_dwordx2 s[{SWS}:{SWS+1}], s[0:1], 40")
        vl, vg, vt, vu = T, T + 1, T + 2, T + 3
        if a.cpf:
            e("s_getpc_b64 s[62:63]")
            e("L_pc0:")
            e(f"v_lshlrev_b32 v{T+9}, 7, v0")
            e(f"v_cmp_gt_u32 vcc, L_slow_0-L_pc0+128, v{T+9}")
            e("s_and_saveexec_b64 s[60:61], vcc")
            e("s_cbranch_execz L_cpf_skip")
            e(f"global_load_dword v{T+8}, v{T+9}, s[62:63]")
            e("L_cpf_skip:")
            e("s_mov_b64 exec, s[60:61]")
        e(f"v_lshrrev_b32 v{vt}, 6, v0")
        e(f"v_and_b32 v{vl}, 63, v0", "lane")
        e(f"v_readfirstlane_b32 s{S_W}, v{vt}")
        e(f"s_and_b32 s{S_T0}, s2, 7"); e(f"s_lshr_b32 s{S_T1}, s2, 3")
        e(f"s_lshl_b32 s{S_T0}, s{S_T0}, 4"); e(f"s_lshr_b32 s{S_T2}, s{S_T1}, 1")
        e(f"s_add_u32 s{S_T0}, s{S_T0}, s{S_T2}", "kv head index")
        e(f"s_and_b32 s{S_T1}, s{S_T1}, 1"); e(f"s_lshl_b32 s{S_T2}, s{S_T0}, 1")
        e(f"s_add_u32 s{S_T1}, s{S_T1}, s{S_T2}", "q head index")
        e(f"s_lshl_b32 s{S_T0}, s{S_T0}, 18"); e(f"s_lshl_b32 s{S_T1}, s{S_T1}, 16")
        e(f"s_lshl_b32 s{S_KW}, s{S_W}, 12")
        e(f"v_lshrrev_b32 v{vg}, 4, v{vl}", "g = lane>>4")
        e(f"v_and_b32 v{vt}, 15, v{vl}", "i = lane&15")
        e(f"v_xor_b32 v{vu}, v{vt}, v{vg}")
        e(f"v_lshlrev_b32 v{vu}, 4, v{vu}")
        e(f"v_lshl_add_u32 v{KD(0)}, v{vg}, 8, v{vu}")
        e(f"v_add_u32 v{KD(0)}, s{S_KW}, v{KD(0)}")
        for n in range(1, 4): e(f"v_xor_b32 v{KD(n)}, {n<<6:#x}, v{KD(0)}")
        e(f"s_lshl_b32 s{S_QL}, s{S_W}, 14")
        e(f"s_cmp_lt_u32 s{S_W}, 2"); e(f"s_cselect_b32 s{S_QG}, 2, 1"); e(f"s_lshl_b32 s{S_QG}, s{S_QG}, 16")
        e(f"s_add_u32 s{S_QL}, s{S_QL}, s{S_QG}", "q lds base")
        e(f"s_mul_i32 s{S_QG}, s{S_W}, 12288")
        e("s_waitcnt lgkmcnt(0)")
        if a.stamp:
            e("s_memtime s[52:53]"); e("s_memrealtime s[54:55]"); e("s_waitcnt lgkmcnt(0)")
        def mksrd(sr, p, off, n):
            e(f"s_add_u32 s{sr}, s{p}, s{off}"); e(f"s_addc_u32 s{sr+1}, s{p+1}, 0")
            e(f"s_mov_b32 s{sr+2}, {n}"); e(f"s_mov_b32 s{sr+3}, 0x20000")
        def vd_setup():
            e(f"v_mul_u32_u24 v{BPA}, 80, v{vg}")
        def qgrp(grp):
            r = [I(f"s_add_u32 m0, s{S_QL}, {grp*4096}"), I(f"s_add_u32 s{S_T2}, s{S_QG}, {grp*4096}")]
            for n in range(4):
                ld = I(" ".join(f"buffer_load_dwordx4 v{KD(n)}, {srd(SQ)}, s{S_T2} offen offset:{n*1024} {a.qmod} lds".split()))
                ld.dma = f"Q{grp}"
                r.append(ld)
            return r
        def tile(which, t):
            m0, lds = self.dma_tile(which, t, static=True)
            return [m0, I(f"s_mov_b32 s{S_G if which == 'K' else S_GV}, {t*16384}")] + lds
        QA = X(3)
        def setup():
            if a.stamp:
                e(f"s_mov_b32 s{SWS+2}, 0x1000000"); e(f"s_mov_b32 s{SWS+3}, 0x20000")
                e(f"s_lshl_b32 s{S_WSO}, s2, 2"); e(f"s_add_u32 s{S_WSO}, s{S_WSO}, s{S_W}"); e(f"s_lshl_b32 s{S_WSO}, s{S_WSO}, 9")
                e(f"v_accvgpr_write_b32 a{ST0}, 0"); e(f"v_accvgpr_write_b32 a{ST1}, 0"); e(f"s_mov_b32 s{S_SI}, 2")
                e("s_mov_b64 exec, 1"); e(f"v_accvgpr_write_b32 a{ST0}, s48"); e(f"v_accvgpr_write_b32 a{ST1}, s50")
                e("s_mov_b64 exec, 2"); e(f"v_accvgpr_write_b32 a{ST0}, s52"); e(f"v_accvgpr_write_b32 a{ST1}, s54")
                e("s_mov_b64 exec, -1")
                self.emit(self.stamp())
            e(f"v_xor_b32 v{vu}, v{vt}, v{vg}")
            e(f"v_lshlrev_b32 v{vu}, 4, v{vu}")
            e(f"v_lshl_add_u32 v{KA(0)}, v{vt}, 8, v{vu}")
            for ds in range(1, 4): e(f"v_xor_b32 v{KA(ds)}, {ds<<6:#x}, v{KA(0)}")
            e(f"v_lshrrev_b32 v{vu}, 2, v{vl}", "key = lane>>2")
            e(f"v_lshlrev_b32 v{VA(0)}, 8, v{vu}")
            e(f"v_and_b32 v{vu}, 7, v{vu}")
            e(f"v_lshl_add_u32 v{VA(0)}, v{vu}, 4, v{VA(0)}")
            e(f"v_and_b32 v{vu}, 2, v{vl}")
            e(f"v_lshl_add_u32 v{VA(0)}, v{vu}, 6, v{VA(0)}")
            e(f"v_and_b32 v{vu}, 1, v{vl}")
            e(f"v_lshl_add_u32 v{VA(0)}, v{vu}, 3, v{VA(0)}")
            e(f"v_add_u32 v{VA(0)}, 0x10000, v{VA(0)}")
            for db in range(1, 8): e(f"v_xor_b32 v{VA(db)}, {db<<4:#x}, v{VA(0)}")
            for ds in range(4): e(f"v_add_u32 v{QA+ds}, s{S_QL}, v{KA(ds)}")
            e(f"s_mov_b32 s{S_C}, {f2u(CSC):#x}"); e(f"s_mov_b32 s{S_C+1}, {f2u(CSC):#x}")
            if a.perm: e(f"s_mov_b32 s{S_PERM}, 0x07060302")
            for q in range(4): e(f"v_mov_b32 v{L(q)}, 0")
            e(f"v_mov_b32 v{vu}, 0x3f803f80")
            for i in range(4): e(f"v_accvgpr_write_b32 a{ONES+i}, v{vu}")
            for i in range(128): e(f"v_mov_b32 v{i}, 0")
            if a.unroll == 2:
                e(f"s_mov_b32 s{S_PB}, s{S_KW}"); e(f"s_add_u32 s{S_PB2}, s{S_KW}, 0x8000")
            e(f"s_mov_b32 s{S_CNT}, {16 // a.unroll}")
        RAW = S(1, 0); TMP = S(1, 2)
        def qproc(q, early=(), mid=(), fuse=False):
            e(f"s_waitcnt vmcnt({self.vm_needed([f'Q{q}'])})")
            for ds in range(4): e(f"ds_read_b128 {vr(RAW+4*ds,4)}, v{QA+ds} offset:{q*4096}")
            self.emit(early)
            mf = lambda ds: [I(f"{MF} {vr(S(0,q)+4*kb2,4)}, {ar(KF(kb2,ds),4)}, {vr(RAW+4*ds,4)}, {vr(S(0,q)+4*kb2,4) if ds else 0}") for kb2 in range(2)]
            for ds in range(4):
                if ds == 2: self.emit(mid)
                e(f"s_waitcnt lgkmcnt({3-ds})")
                for k in range(4):
                    e(f"v_lshlrev_b32 v{TMP+2*k}, 16, v{RAW+4*ds+k}")
                    e(f"v_and_b32 v{TMP+2*k+1}, 0xffff0000, v{RAW+4*ds+k}")
                    if fuse and ds and k in (0, 2): self.emit([mf(ds - 1)[k // 2]])
                for k in range(4): e(f"v_pk_mul_f32 {vr(TMP+2*k,2)}, {vr(TMP+2*k,2)}, s[{S_C}:{S_C+1}]")
                for k in range(4): e(f"v_cvt_pk_bf16_f32 v{RAW+4*ds+k}, v{TMP+2*k}, v{TMP+2*k+1}")
                if not fuse:
                    for k in range(4): e(f"v_accvgpr_write_b32 a{Q(q,ds)+k}, v{RAW+4*ds+k}")
            if fuse:
                w = [I(f"v_accvgpr_write_b32 a{Q(q,0)+k}, v{RAW+k}") for k in range(16)]
                m = mf(3)
                self.emit(w[:2] + [m[0]] + w[2:4] + [m[1]] + w[4:])
        sm = self.sm_stream(0)
        pos = lambda e0: next(i for i, (ee, x) in enumerate(sm) if ee == e0 and isinstance(x, I) and x.is_trans)
        part = lambda a0, a1: self.flat_stream([x if isinstance(x, tuple) else I(x.text) for _, x in sm[a0:a1]])
        idx = pos(a.split)
        qk = lambda *qs: self.emit([I("s_nop 0")] + self.qk_mfmas(0, zero_c=True, qs=qs))

        def variantA():
            mksrd(SQ, 4, S_T1, 65536)
            self.emit(qgrp(0)); self.emit(qgrp(1))
            mksrd(SK, 6, S_T0, 262144)
            mksrd(SV, 8, S_T0, 262144); mksrd(SO, 10, S_T1, 65536)
            vd_setup(); setup()
            queue = [tile("K", 0), qgrp(2), qgrp(3), tile("V", 0), tile("K", 1), tile("K", 2), tile("V", 1)]
            flat = []
            for grp in queue:
                lds = [x for x in grp if x.is_vmem]; hd = [x for x in grp if not x.is_vmem]
                for n, x in enumerate(lds): flat.append((hd if n == 0 else []) + [x])
            def take(n):
                r = []
                for _ in range(n):
                    if flat: r += flat.pop(0)
                return r
            self.emit(take(a.ahead))
            self.emit(self.stamp())
            h = a.mid
            lt = a.late
            qproc(0, take(4 - h - lt), take(h)); self.emit(take(lt))
            qproc(1, take(4 - h - lt), take(h)); self.emit(take(lt))
            self.emit(self.stamp())
            e(f"s_waitcnt vmcnt({self.vm_needed(['K0'])})")
            self.emit(take(4 - h - lt))
            e("s_barrier")
            self.emit(self.k_reads(0))
            e("s_waitcnt lgkmcnt(0)")
            qk(0, 1)
            self.emit(take(h))
            e("s_nop 7")
            self.emit(self.maxfix_first(0, (0, 1)))
            n1 = pos(a.pexp)
            self.emit(part(0, n1))
            self.emit(take(lt))
            self.emit(self.stamp())
            qproc(2, take(4 - h - lt), take(h), fuse=True)
            self.emit(part(n1, pos(16)))
            self.emit(self.maxfix_first(0, (2,)))
            self.emit(part(pos(16), idx))
            self.emit(take(lt))
            self.emit(self.stamp())
            qproc(3, take(a.q3n), (), fuse=True)
            self.emit(self.k_reads(1))
            self.emit(self.maxfix_first(0, (3,)))
            if a.tstamp: self.emit(self.stamp())
            e(f"s_waitcnt vmcnt({self.vm_needed(['V0'])}) lgkmcnt(0)")
            if a.tstamp: self.emit(self.stamp())
            self.emit(take(99))
            e("s_barrier", "V0 visible; Q staging slots free")
            self.emit(self.stamp())

        def variantB():
            mksrd(SK, 6, S_T0, 262144)
            self.emit(tile("K", 0))
            mksrd(SV, 8, S_T0, 262144)
            vd_setup()
            self.emit(tile("V", 0))
            if a.b_k1: self.emit(tile("K", 1))
            mksrd(SQ, 4, S_T1, 65536); mksrd(SO, 10, S_T1, 65536)
            setup()
            e(f"s_waitcnt vmcnt({a.b_wait})")
            for g in range(4): self.emit(qgrp(g))
            if not a.b_k1: self.emit(tile("K", 1))
            self.emit(self.stamp())
            e(f"s_waitcnt vmcnt({self.vm_needed(['K0'])})")
            e("s_barrier")
            self.emit(self.k_reads(0))
            qproc(0)
            qk(0)
            self.emit(tile("V", 1))
            self.emit(self.stamp())
            qproc(1)
            qk(1)
            self.emit(self.maxfix_first(0, (0,)))
            self.emit(tile("K", 2))
            self.emit(part(0, pos(8)))
            self.emit(self.stamp())
            qproc(2)
            qk(2)
            self.emit(self.maxfix_first(0, (1,)))
            self.emit(part(pos(8), pos(16)))
            self.emit(self.maxfix_first(0, (2,)))
            self.emit(part(pos(16), idx))
            self.emit(self.stamp())
            qproc(3)
            qk(3)
            self.emit(self.k_reads(1))
            e(f"s_waitcnt vmcnt({self.vm_needed(['V0','K1'])})")
            e("s_barrier", "V0,K1 visible; Q staging slots free")
            self.emit(tile("V", 2))
            self.emit(self.maxfix_first(0, (3,)))
            self.emit(tile("K", 3))
            e("s_waitcnt lgkmcnt(0)")
            self.emit(self.stamp())

        self.alt = None
        if a.ab:
            e(f"s_bitcmp1_b32 s2, {a.ab_bit}")
            e("s_cbranch_scc0 L_varA")
            nh = len(self.out)
            variantB()
            e("s_branch L_loop")
            self.alt = (nh, len(self.out))
            self.dma_log = []
            e("L_varA:")
        variantA()
        self.first = [I("L_first:"), I(f"s_waitcnt vmcnt({self.vm_needed(['K1'])})"), I("s_barrier")] + (self.stamp() if a.tstamp else []) + tile("K", 3) + [I("s_branch L_first_ret")]
        if a.cpf2:
            self.first += [I(x) for x in ("L_last:", f"v_mbcnt_lo_u32_b32 v{T+9}, -1, 0", f"v_mbcnt_hi_u32_b32 v{T+9}, -1, v{T+9}",
                           f"v_lshlrev_b32 v{T+9}, 7, v{T+9}", f"v_min_u32 v{T+9}, L_end-L_tail, v{T+9}", f"v_add_u32 v{T+9}, L_tail-L_pc0, v{T+9}",
                           f"global_load_dword v{T+8}, v{T+9}, s[62:63]", "s_branch L_last_ret")]
        return [x for _, x in sm[idx:]]

    def epilogue(self):
        e, a = self.e, self.a
        self.emit(self.stamp())
        if a.stamp:
            e("s_waitcnt vmcnt(0)")
            self.emit(self.stamp())
            e(f"v_mbcnt_lo_u32_b32 v0, -1, 0"); e(f"v_mbcnt_hi_u32_b32 v0, -1, v0"); e("v_lshlrev_b32 v0, 2, v0")
            e(f"buffer_store_dword a{ST0}, v0, {srd(SWS)}, s{S_WSO} offen")
            e(f"buffer_store_dword a{ST1}, v0, {srd(SWS)}, s{S_WSO} offen offset:256")
        if a.spin_end:
            e("s_waitcnt vmcnt(0)")
            self.spin(a.spin_end, "L_spin2")
        e("L_end:")
        e("s_endpgm")

    def body(self, rest):
        e, a = self.e, self.a
        U = 2 * a.unroll
        txt = lambda r: [x if isinstance(x, tuple) else x.text for x in r]
        cp = lambda r: [x if isinstance(x, tuple) else I(x.text) for x in r]
        rest0 = txt(rest)
        inc = lambda: I(f"s_add_u32 s{S_G}, s{S_G}, 16384")
        seq = []
        for u in range(U):
            t = u // 2
            exA, exB = [], []
            pre = lambda r: Item(I(f"s_add_u32 s{r}, s{r}, 16384"), 2, a.d_early - 1)
            if u % 2 == 1:
                exB += [pre(S_G)] + self.dma_items("K", t + 4, [I(f"s_xor_b32 s{S_PB}, s{S_PB}, 0x8000")] if (a.unroll == 2 and u == 3) else [])
            else:
                exB += [pre(S_GV)] + self.dma_items("V", t + 2, [I(f"s_xor_b32 s{S_PB2}, s{S_PB2}, 0x8000")] if (a.unroll == 2 and u == 2) else [])
            xored = False
            if a.unroll == 2:
                if u == 2:
                    exA += [Item(I(f"v_xor_b32 v{KA(ds)}, 0x8000, v{KA(ds)}"), 0, 31) for ds in range(4)]
                xored = u >= 2
                if u == 3:
                    for db in range(8):
                        g = a.vplan[2 * db + 1] + a.v_slack + 1
                        if g <= 31: exA.append(Item(I(f"v_xor_b32 v{VA(db)}, 0x8000, v{VA(db)}"), g, 99))
                        else: exB.append(Item(I(f"v_xor_b32 v{VA(db)}, 0x8000, v{VA(db)}"), 0, 31))
            if u == 0:
                exA.append(Item(I(f"s_cmp_eq_u32 s{S_CNT}, {16 // a.unroll}"), a.first_gap - 1, a.first_gap - 1))
                exA.append(Item([I("s_cbranch_scc1 L_first"), I("L_first_ret:")], a.first_gap, a.first_gap))
            if u == a.cpf2_u and a.cpf2:
                exA.append(Item(I(f"s_cmp_eq_u32 s{S_CNT}, 2"), 9, 9))
                exA.append(Item([I("s_cbranch_scc1 L_last"), I("L_last_ret:")], 10, 10))
            if u == U - 1:
                exA.append(Item(I(f"s_sub_u32 s{S_CNT}, s{S_CNT}, 1"), 4, 31))
                exB.append(Item(I(f"s_cmp_eq_u32 s{S_CNT}, 1"), 31, 31))
            o, first, rest = self.phaseA(u, rest, extra=exA, xored=xored)
            seq += o
            seq += self.phaseB(u, first, barrier=(8 if u % 2 == 1 else None), extra=exB)
            if a.stamp and a.stamp_every and u % a.stamp_every == a.stamp_every - 1:
                seq += self.stamp() + [I(f"s_cmp_eq_u32 s{S_CNT}, 1")]
        seq.append(I("s_cbranch_scc0 L_loop"))
        assert txt(rest) == rest0
        _, pend = self.insert_waits(seq, [])
        seq2, pend2 = self.insert_waits(seq, pend)
        assert pend == pend2
        if a.spin_loop: self.spin(a.spin_loop, "L_spin1")
        if a.align: e(f".p2align {a.align}")
        for _ in range(a.pad): e("s_nop 0")
        e("L_loop:")
        n0 = len(self.out)
        self.emit(seq2)
        n1 = len(self.out)
        e("L_tail:")
        if a.spin_epi: self.spin(a.spin_epi, "L_spin3")
        o, _ = self.insert_waits((self.stamp() if not a.stamp_every else []) + self.tail_split(cp(rest)), pend)
        self.emit(o)
        self.check_seq = lambda: self.out[:n1] + self.out[n0:n1] + self.out[n1:]
        self.loop_range = (n0, n1)
        self.tail_range = (n1, len(self.out))

    def build(self):
        rest = self.prologue()
        n0 = len(self.out)
        self.body(rest)
        if self.a.drop:
            pats = self.a.drop.split(",")
            l0, l1 = self.loop_range
            keep = lambda i: not any(i.text.startswith(p.replace("~", " ")) for p in pats) or i.text == "s_waitcnt lgkmcnt(0)"
            self.out = self.out[:l0] + [i for i in self.out[l0:l1] if keep(i)] + self.out[l1:]
            self.nocheck2 = True
        self.epilogue()
        seq = self.check_seq()
        if getattr(self, "nocheck", False):
            return "", []
        if getattr(self, "nocheck2", False):
            probs = []
        elif self.alt:
            nh, nb = self.alt
            probs = check(seq[:nh] + seq[nb:], "mainA", verbose=False)
            probs += check(seq[:nb] + seq[self.loop_range[0]:], "mainB", verbose=False)
        else:
            probs = check(seq, "main", verbose=False)
        probs += check(self.slow, "slow", verbose=False)
        hdr = open("standalone__gqa_softmax__near_ridge.s.ref").read().split("; Override")[0]
        txt = hdr + "; @launch grid=(256,1,1) block=(256,1,1) lds=163840\n" + DOC
        txt += '.amdgcn_target "amdgcn-amd-amdhsa--gfx950"\n.text\n'
        txt += f".globl {KNAME}\n.p2align 8\n.type {KNAME},@function\n{KNAME}:\n"
        txt += "\n".join(str(i) for i in self.out) + "\n"
        txt += "\n".join(str(i) for i in self.first + self.slow) + "\n"
        txt += f""".section .rodata,"a"
.p2align 6
.amdhsa_kernel {KNAME}
  .amdhsa_next_free_vgpr {256 + NAGPR}
  .amdhsa_next_free_sgpr 68
  .amdhsa_accum_offset 256
  .amdhsa_group_segment_fixed_size 0
  .amdhsa_kernarg_size 48
  .amdhsa_user_sgpr_count 2
  .amdhsa_user_sgpr_kernarg_segment_ptr 1
  .amdhsa_system_sgpr_workgroup_id_x 1
.end_amdhsa_kernel
"""
        return txt, probs

    def gap_report(self, rng=None):
        n0, n1 = rng or self.loop_range
        gaps = []; cur = None
        for i in self.out[n0:n1]:
            if i.is_label: continue
            if i.is_mfma:
                if cur is not None: gaps.append(cur)
                cur = "4" if i.passes == 2 else ""
            elif cur is not None:
                cur += "E" if i.is_trans else ("v" if i.is_valu else ("d" if i.is_ds else ("M" if i.is_vmem else "s")))
        gaps.append(cur)
        def t(gp):
            if gp == "4": return 8
            gp = gp.replace("4", "")
            tm = 4; prev = "m"
            for c in gp:
                if c == "s": tm += 4
                else:
                    tm = max(tm, 8)
                    if c in "dM" and prev in "vE": tm += 4
                    if c in "vE" and prev == "M": tm += 4
                    tm += 8 if c == "E" else 4
                prev = c
            if prev in "dM": tm += 4
            return max(16, tm)
        return gaps, sum(map(t, gaps))


def get_args(argv=None):
    p = argparse.ArgumentParser()
    p.add_argument("-o", default="k2.s")
    p.add_argument("--stamp", action="store_true")
    p.add_argument("--split", type=int, default=18)
    p.add_argument("--bar_gap", type=int, default=0)
    p.add_argument("--vplan", default="2,5,8,11,14,17,20,22,24,25,26,27,28,29,30,31")
    p.add_argument("--kplan", default="3,6,9,12,15,18,21,24")
    p.add_argument("--v_slack", type=int, default=1)
    p.add_argument("--k_slack", type=int, default=2)
    p.add_argument("--d_early", type=int, default=7)
    p.add_argument("--d_step", type=int, default=6)
    p.add_argument("--d_slack", type=int, default=1)
    p.add_argument("--dma_in", default="B")
    p.add_argument("--unroll", type=int, default=2)
    p.add_argument("--align", type=int, default=6)
    p.add_argument("--drop", default="")
    p.add_argument("--lf_gap", type=int, default=11)
    p.add_argument("--st_cut", default="20,26,31,36")
    p.add_argument("--late", type=int, default=2)
    p.add_argument("--q3n", type=int, default=2)
    p.add_argument("--pexp", type=int, default=8)
    p.add_argument("--perm", type=int, default=0)
    p.add_argument("--nt_upto", type=int, default=4)
    p.add_argument("--omod2", default="")
    p.add_argument("--h0_qmajor", type=int, default=0)
    p.add_argument("--sum4", type=int, default=0)
    p.add_argument("--wait_early", type=int, default=1)
    p.add_argument("--fin_exp", type=int, default=1)
    p.add_argument("--pad", type=int, default=0)
    p.add_argument("--pk", type=int, default=1)
    p.add_argument("--pack_grp", type=int, default=1)
    p.add_argument("--tstamp", type=int, default=0)
    p.add_argument("--hsplit", type=int, default=10)
    p.add_argument("--hk_early", type=int, default=3)
    p.add_argument("--hv_early", type=int, default=0)
    p.add_argument("--st_flat", type=int, default=4)
    p.add_argument("--last_more", type=int, default=5)
    p.add_argument("--st_b28", default="3,8,13")
    p.add_argument("--st_a29", default="2")
    p.add_argument("--st_b29", default="12,15")
    p.add_argument("--hvplan", default="3,6,9,10,11,12,13,14")
    p.add_argument("--hv_slack", type=int, default=1)
    p.add_argument("--hkplan", default="2,3,5,6,8,9,11,12")
    p.add_argument("--hk_slack", type=int, default=1)
    p.add_argument("--epi_from", type=int, default=0)
    p.add_argument("--cpf2", type=int, default=0)
    p.add_argument("--cpf2_u", type=int, default=1)
    p.add_argument("--cpf", type=int, default=1)
    p.add_argument("--ahead", type=int, default=6)
    p.add_argument("--mid", type=int, default=0)
    p.add_argument("--stamp_every", type=int, default=4)
    p.add_argument("--vsum", default="")
    p.add_argument("--first_gap", type=int, default=26)
    p.add_argument("--spin_end", type=int, default=0)
    p.add_argument("--spin_loop", type=int, default=0)
    p.add_argument("--spin_epi", type=int, default=0)
    p.add_argument("--ab", type=int, default=0)
    p.add_argument("--ab_bit", type=int, default=3)
    p.add_argument("--b_k1", type=int, default=1)
    p.add_argument("--b_wait", type=int, default=0)
    p.add_argument("--epi_split", type=int, default=0)
    p.add_argument("--epi_mul", type=int, default=0)
    p.add_argument("--kvmod", default="nt")
    p.add_argument("--qmod", default="nt")
    p.add_argument("--omod", default="sc1")
    a = p.parse_args(argv)
    a.vplan = [int(x) for x in a.vplan.split(",")]
    a.vsum = [int(x) for x in a.vsum.split(",") if x]
    a.hvplan = [int(x) for x in a.hvplan.split(",")]
    a.hkplan = [int(x) for x in a.hkplan.split(",")]
    a.st_b28 = [int(x) for x in a.st_b28.split(",")]; a.st_a29 = [int(x) for x in a.st_a29.split(",")]; a.st_b29 = [int(x) for x in a.st_b29.split(",")]
    a.st_cut = [int(x) for x in a.st_cut.split(",")]
    a.kplan = [int(x) for x in a.kplan.split(",")]
    return a


if __name__ == "__main__":
    a = get_args()
    g = Gen(a)
    txt, probs = g.build()
    open(a.o, "w").write(txt)
    for p in probs: print(p)
    gaps, est = g.gap_report()
    print("gaps:", " ".join(x or "-" for x in gaps))
    tg, test = g.gap_report(g.tail_range)
    print("tail:", " ".join(x or "-" for x in tg), test)
    print(f"wrote {a.o}: {len(g.out)} main insts, {len(g.slow)} slow insts, {len(probs)} problems; est cycles/subtile {est/(2*a.unroll):.0f}")
```

```python
import sys, re, struct, math, argparse
from asmlib import I, check

KNAME = "standalone__gqa_softmax__near_ridge_kernel"
CSC = math.log2(math.e) / math.sqrt(128.0)
def f2u(x): return struct.unpack("<I", struct.pack("<f", x))[0]
THR = f2u(2.0 ** 20)
MF = "v_mfma_f32_16x16x32_bf16"

def O(q, db): return (q * 8 + db) * 4
def SB(h, qq): return 128 + 32 * h + 8 * qq
def NEGM(q): return 192 + 4 * q
def X(q): return 208 + 4 * q
def KA(ds): return 224 + ds
def VA(db): return 228 + db
def KD(n): return 236 + n
BPA, WA0 = 240, 241
def L(q): return 242 + q
T = 246
WA1, RA, VO = T + 3, T + 4, T + 5
def Q(q, ds): return (q * 4 + ds) * 4
def KF(kb, ds): return 64 + (kb * 4 + ds) * 4
def VF(db, half): return 128 + (db * 2 + half) * 4
ONES = 192
ST0, ST1 = 252, 253
NAGPR = 256
def VF2(db, half): return ('a', 196 + (db * 2 + half) * 4) if db < 7 else ('v', 208 + 4 * half)
def vr(b, n): return f"v[{b}:{b+n-1}]"
def ar(b, n): return f"a[{b}:{b+n-1}]"

SQ, SK, SV, SO = 12, 16, 20, 24
S_W, S_KW, S_G = 28, 29, 30
S_T0, S_T1, S_T2 = 31, 32, 33
S_PB, S_CNT = 34, 35
S_C = 36
S_WSO, S_SI, S_STAMP = 38, 39, 40
SWS = 44
S_QL, S_QG = 56, 57
S_GV, S_PB2 = 58, 59
def srd(b): return f"s[{b}:{b+3}]"

DOC = """;
;    as its C operand (-m), so P = exp2(S - m).  For every unit the row sums of P (ones-MFMA) are checked; when one exceeds
;    and redoes the exponentials before any of that P reaches O.  m never exceeds the true max, so nothing underflows early.
;
"""


class Item:
    def __init__(self, ins, early=0, late=10**6):
        self.ins = ins if isinstance(ins, list) else [ins]
        self.early, self.late = early, late


def clone(x):
    if isinstance(x, tuple): return x
    y = I(x.text, x.note)
    for k in ("dma", "tag", "need"):
        if hasattr(x, k): setattr(y, k, getattr(x, k))
    return y


class Gen:
    def __init__(self, a):
        self.a = a
        self.out, self.slow, self.dma_log = [], [], []

    def e(self, t, note=None): self.out.append(I(t, note))

    def emit(self, ins):
        for i in ins:
            if hasattr(i, "dma"): self.dma_log.append(i.dma)
            self.out.append(i)

    def stamp(self):
        if not self.a.stamp: return []
        return [I(f"s_memtime s[{S_STAMP}:{S_STAMP+1}]"), I(f"s_memrealtime s[{S_STAMP+2}:{S_STAMP+3}]"),
                I("s_waitcnt lgkmcnt(0)"), I(f"s_lshl_b64 exec, 1, s{S_SI}"),
                I(f"v_accvgpr_write_b32 a{ST0}, s{S_STAMP}"), I(f"v_accvgpr_write_b32 a{ST1}, s{S_STAMP+2}"),
                I("s_mov_b64 exec, -1"), I(f"s_add_u32 s{S_SI}, s{S_SI}, 1")]

    def dma_tile(self, which, t, static=False):
        base = (0 if which == "K" else 65536)
        if static: m0 = I(f"s_add_u32 m0, s{S_KW}, {base + (t % 4) * 16384}")
        else: m0 = I(f"s_add_u32 m0, s{S_PB if which == 'K' else S_PB2}, {base + (t % 2) * 16384}")
        r = []
        for n in range(4):
            vo = KD(n) if which == "K" else KD(n & 1)
            ld = I(" ".join(f"buffer_load_dwordx4 v{vo}, {srd(SK if which == 'K' else SV)}, s{S_G if which == 'K' else S_GV} offen offset:{n*1024} {self.a.kvmod} lds".split()),
                   f"DMA {which}{t}.{n}")
            ld.dma = f"{which}{t}"
            r.append(ld)
        return m0, r

    def vm_needed(self, names):
        last = max(i for i, n in enumerate(self.dma_log) if n in names)
        return len(self.dma_log) - 1 - last

    def qk_mfmas(self, u, zero_c=False, qmajor=False):
        t, h = u // 2, u % 2
        r = []
        for kb, ql in ([(kb, ql) for ql in range(2) for kb in range(4)] if qmajor else [(kb, ql) for kb in range(4) for ql in range(2)]):
            if True:
                q = 2 * h + ql
                d = vr(SB(h, 2 * ql + (kb >> 1)) + 4 * (kb & 1), 4)
                for ds in range(4):
                    c = d if ds else ("0" if zero_c else vr(NEGM(q), 4))
                    m = I(f"{MF} {d}, {ar(KF(kb,ds),4)}, {ar(Q(q,ds),4)}, {c}")
                    m.need = (("a", KF(kb, ds)), ("K", t, kb, ds))
                    r.append(m)
        return r

    def pv_mfmas(self, u, qmajor=False, alt=False):
        t, h = u // 2, u % 2
        o = [(db, ql, hf) for db in range(8) for ql in range(2) for hf in range(2)]
        if qmajor: o = [(db, ql, hf) for ql in range(2) for db in range(8) for hf in range(2)]
        r = []
        for db, ql, hf in o:
            d = vr(O(2 * h + ql, db), 4)
            k, b = VF2(db, hf) if alt else ("a", VF(db, hf))
            m = I(f"{MF} {d}, {vr(SB(h,2*ql+hf),4)}, {k}[{b}:{b+3}], {d}")
            m.need = ((k, b), ("V", t, db, hf))
            r.append(m)
        return r

    def sum_mfma(self, h, qq):
        q = 2 * h + qq // 2
        return I(f"{MF} {vr(X(q),4)}, {ar(ONES,4)}, {vr(SB(h,qq),4)}, {vr(X(q),4) if qq % 2 else 0}")

    def k_reads(self, t, kbs=range(4)):
        r = []
        for kb in kbs:
            for ds in range(4):
                x = I(f"ds_read_b128 {ar(KF(kb,ds),4)}, v{KA(ds)} offset:{(t % 2) * 16384 + kb * 4096}")
                x.tag = [(("a", KF(kb, ds)), ("K", t, kb, ds))]
                r.append(x)
        return r

    def v_reads(self, t, dbs=range(8), alt=False):
        r = []
        for db in dbs:
            for hf in range(2):
                for tt in range(2):
                    k, b = VF2(db, hf) if alt else ("a", VF(db, hf))
                    x = I(f"ds_read_b64_tr_b16 {k}[{b+2*tt}:{b+2*tt+1}], v{VA(db)} offset:{(t % 2) * 16384 + hf * 8192 + tt * 4096}")
                    x.tag = [((k, b), ("V", t, db, hf) if tt else ("partial",))]
                    r.append(x)
        return r

    def sm_stream(self, h):
        r = []
        def post(e):
            qq, i = e // 8, e % 8
            b = SB(h, qq)
            if i % 2 == 1: r.append((e, I(f"v_cvt_pk_bf16_f32 v{b+i//2}, v{b+i-1}, v{b+i}")))
            if i == 7: r.append((e, ("SUM", h, qq)))
        for e in range(32):
            r.append((e, I(f"v_exp_f32 v{SB(h,0)+e}, v{SB(h,0)+e}")))
            if e: post(e - 1)
        post(31)
        return r

    def split_stream(self, h, split):
        sm = self.sm_stream(h)
        idx = next(i for i, (e, x) in enumerate(sm) if e == split and isinstance(x, I) and x.is_trans)
        return [x for _, x in sm[:idx]], [x for _, x in sm[idx:]]

    def flat_stream(self, items):
        r = []
        for x in items:
            if isinstance(x, tuple): r += [I("s_nop 1"), self.sum_mfma(*x[1:])]
            else:
                if r and r[-1].is_trans and set(r[-1].dst) & set(x.src): r.append(I("s_nop 0"))
                r.append(x)
        return r

    def rowmax(self, groups):
        r = []
        pad = [I("s_nop 1")]
        for b, n, t0, t1 in groups:
            r += [I(f"v_max3_f32 v{t0}, v{b}, v{b+1}, v{b+2}"), I(f"v_max3_f32 v{t1}, v{b+3}, v{b+4}, v{b+5}")]
            for i in range(6, n, 4):
                r.append(I(f"v_max3_f32 v{t0}, v{t0}, v{b+i}, v{b+i+1}"))
                if i + 2 < n: r.append(I(f"v_max3_f32 v{t1}, v{t1}, v{b+i+2}, v{b+i+3}"))
            r.append(I(f"v_max_f32 v{t0}, v{t0}, v{t1}"))
        for sw in ("v_permlane16_swap_b32", "v_permlane32_swap_b32"):
            r += [I(f"v_mov_b32 v{t1}, v{t0}") for _, _, t0, t1 in groups] + pad
            r += [I(f"{sw} v{t0}, v{t1}") for _, _, t0, t1 in groups] + [clone(pad[0])]
            r += [I(f"v_max_f32 v{t0}, v{t0}, v{t1}") for _, _, t0, t1 in groups]
            pad = [clone(pad[0])]
        return r

    def slow_path(self, u, label, x_cur, x_next, reread=None):
        t, h = u // 2, u % 2
        xo = lambda: [I(f"v_xor_b32 v{KA(ds)}, 0x8000, v{KA(ds)}") for ds in range(4)]
        r = [I(f"{label}:"), I("s_nop 3")]
        if reread is None: reread = (h == 1)
        if reread:
            r += (xo() if x_cur else []) + self.k_reads(t) + (xo() if x_cur else [])
        r.append(I("s_waitcnt lgkmcnt(0)"))
        r += self.qk_mfmas(u)
        r.append(I("s_nop 7"))
        if reread:
            r += (xo() if x_next else []) + self.k_reads(t + 1) + (xo() if x_next else [])
        t0, t1, t2 = T, T + 1, T + 2
        for ql in range(2):
            q = 2 * h + ql
            b = SB(h, 2 * ql)
            r += self.rowmax([(b, 16, t0, t1)])
            r.append(I(f"v_max_f32 v{t0}, 0, v{t0}"))
            r.append(I(f"v_exp_f32 v{t2}, -v{t0}"))
            for i in range(4): r.append(I(f"v_sub_f32 v{NEGM(q)+i}, v{NEGM(q)+i}, v{t0}"))
            r.append(I(f"v_mul_f32 v{L(q)}, v{L(q)}, v{t2}"))
            for k in range(4): r.append(I(f"ds_bpermute_b32 v{T+6+k}, v{BPA}, v{t2} offset:{4*k}"))
            for i in range(16): r.append(I(f"v_sub_f32 v{b+i}, v{b+i}, v{t0}"))
            r.append(I("s_waitcnt lgkmcnt(0)"))
            for i in range(32): r.append(I(f"v_mul_f32 v{O(q,0)+i}, v{O(q,0)+i}, v{T+6+i%4}"))
        r += self.flat_stream([x for _, x in self.sm_stream(h)])
        r.append(I("s_nop 7"))
        r.append(I(f"s_branch {label}_ret"))
        return r

    def schedule(self, mfmas, stream, others, tail=(), tail_lag=8, fin=(), nxt_stream=None):
        out = []
        M = list(mfmas); stream = list(stream); tail = list(tail)
        others = sorted(others, key=lambda x: (x.late, x.early) if x.ins[0].is_ds else (x.early, x.late))
        kind = lambda o: "s" if o.ins[0].is_salu else ("d" if o.ins[0].is_ds else ("m" if o.ins[0].is_vmem else "v"))
        pend = []
        last_sum_pos = None
        def states_since(idx): return sum(i.states for i in out[idx + 1:])
        g = -1
        def pop_markers():
            while stream and isinstance(stream[0], tuple):
                x = stream.pop(0); pend.append([self.sum_mfma(*x[1:]), len(out) - 1])
        def ok(n):
            l = out[-1]
            return not (l.is_trans and set(l.dst) & set(n.src))
        def take(k, overdue=False):
            for o in others:
                if kind(o) == k and (o.late <= g if overdue else o.early <= g):
                    others.remove(o); return o
            return None
        def small_v():
            pop_markers()
            o = take("v", True)
            if o: return o.ins
            if stream and stream[0].cost == 4 and ok(stream[0]): return [stream.pop(0)]
            if tail and g >= 2 and not stream and not pend and (last_sum_pos is None or states_since(last_sum_pos) >= tail_lag):
                return [tail.pop(0)]
            o = take("v")
            if o: return o.ins
            return None
        while M or pend or any(isinstance(x, tuple) for x in stream):
            if pend and states_since(pend[0][1]) >= 2:
                out.append(pend.pop(0)[0]); last_sum_pos = len(out) - 1
            elif M:
                out.append(M.pop(0))
            elif pend:
                out.append(I("s_nop 1")); out.append(pend.pop(0)[0]); last_sum_pos = len(out) - 1
            else:
                while stream and not isinstance(stream[0], tuple):
                    if not ok(stream[0]): out.append(I("s_nop 0"))
                    out.append(stream.pop(0))
                pop_markers(); continue
            g += 1
            is_last = not M and not pend and not any(isinstance(x, tuple) for x in stream)
            if is_last and fin: break
            o = take("s")
            if o: out += o.ins
            pop_markers()
            nxt_exp = bool(stream) and stream[0].cost == 8
            o = take("m", True) or take("d", True)
            if not o and not nxt_exp: o = take("d") or take("m")
            if o:
                out += o.ins
                if kind(o) == "d":
                    v = small_v()
                    if v: out += v
            elif nxt_exp:
                out.append(stream.pop(0))
            else:
                for _ in range(2):
                    v = small_v()
                    if v: out += v
                    if v and v[0].is_trans: break
            pop_markers()
        for x in stream:
            if not ok(x): out.append(I("s_nop 0"))
            out.append(x)
        for o in others: out += o.ins
        if tail:
            if last_sum_pos is not None and states_since(last_sum_pos) < tail_lag:
                out.append(I(f"s_nop {tail_lag - states_since(last_sum_pos) - 1}"))
            out += tail
        out += list(fin)
        if fin and nxt_stream and not isinstance(nxt_stream[0], tuple):
            out.append(nxt_stream.pop(0))
        return out

    def insert_waits(self, seq, pending):
        out = []
        pend = [(p, -1) for p in pending]
        last_m = -1
        for x in seq:
            if x.op == "s_waitcnt" and "lgkmcnt" in x.text:
                k = int(re.search(r"lgkmcnt\((\d+)\)", x.text).group(1))
                pend = pend[len(pend) - k:] if 0 < k < len(pend) else ([] if k == 0 else pend)
            if x.is_mfma or (x.is_vmem and "store" in x.op) or x.op in ("v_pk_mul_f32", "v_mul_f32"):
                need = [i for i, (p, _) in enumerate(pend) if p & set(x.src)]
                if need:
                    j = max(need)
                    pos = last_m + 1 if (pend[j][1] <= last_m and x.is_mfma) else len(out)
                    if x.is_mfma and any(y.op.startswith("s_cbranch") or y.op == "s_barrier" for y in out[last_m + 1:]):
                        pm = max((k for k in range(last_m) if out[k].is_mfma), default=-1)
                        if pm >= 0 and pend[j][1] <= pm and not any(y.is_label for y in out[pm:last_m]):
                            pos = pm + 1; last_m += 1
                    n = min(15, sum(1 for (p, q) in pend[j + 1:] if q < pos))
                    out.insert(pos, I(f"s_waitcnt lgkmcnt({n})"))
                    pend = [(p, q + (1 if q >= pos else 0)) for (p, q) in pend[j + 1:]]
                if x.is_mfma: last_m = len(out)
            if x.is_ds: pend.append((set(x.dst), len(out)))
            out.append(x)
        return out, [p for p, _ in pend]

    def check_ins(self, h):
        return [I(f"v_max_f32 v{T}, v{X(2*h)}, v{X(2*h+1)}"), I(f"v_cmp_lt_f32 vcc, {THR:#x}, v{T}")]

    def dma_items(self, which, t, gs, post=()):
        m0, lds = self.dma_tile(which, t)
        r = S_G if which == "K" else S_GV
        its = [Item(I(f"s_add_u32 s{r}, s{r}, 16384"), max(gs[0] - 4, 2), gs[0] - 1), Item(m0, max(gs[0] - 2, 0), gs[0] - 1)]
        for n in range(4): its.append(Item(lds[n], gs[n], gs[n] + 1))
        for p in post: its.append(Item(p, gs[3] + 2, gs[3] + 4))
        return its

    def epi_pack_bg(self, q):
        r = []
        tmp = SB(0, 2 * (q % 2))
        for rr in range(4):
            r += [I(f"v_mul_f32 v{O(q,db)+rr}, v{O(q,db)+rr}, v{NEGM(q)+rr}") for db in range(8)]
            r += [I(f"v_cvt_pk_bf16_f32 v{tmp+4*rr+k}, v{O(q,2*k)+rr}, v{O(q,2*k+1)+rr}") for k in range(4)]
            r.append(I(f"ds_write_b128 v{WA1 if rr % 2 else WA0}, {vr(tmp+4*rr,4)} offset:{(q % 2) * 16384 + rr*256}"))
        return r
    def schedule_bg(self, mfmas, bg):
        out = []; bg = list(bg)
        for m in mfmas:
            out.append(m)
            if bg and bg[0].is_salu: out.append(bg.pop(0))
            if not bg: continue
            x = bg[0]
            if x.is_vmem or x.is_trans: out.append(bg.pop(0)); continue
            out.append(bg.pop(0))
            if bg and bg[0].is_valu and not bg[0].is_trans: out.append(bg.pop(0))
        return out, bg
    def schedule_vd(self, mfmas, V, D):
        out = []; nv = 0; since = -1
        for m in mfmas:
            out.append(m); since += 1
            k = 2
            if D and D[0][0] <= nv and since >= D[0][1]:
                x = D.pop(0)[2]; out.append(x); since = 0
                k = 0 if x.is_vmem else 1
            for _ in range(k):
                if V: out.append(V.pop(0)); nv += 1
        for i in range(len(D)): D[i] = (D[i][0] - nv, D[i][1], D[i][2])
        return out
    def epi_pack(self, q):
        r = []
        tmp = SB(0, 2 * (q % 2))
        for db in range(8):
            b = O(q, db)
            r += [I(f"v_pk_mul_f32 {vr(b+i,2)}, {vr(b+i,2)}, {vr(NEGM(q)+i,2)}") for i in (0, 2)]
        for rr in range(4):
            r += [I(f"v_cvt_pk_bf16_f32 v{tmp+4*rr+k}, v{O(q,2*k)+rr}, v{O(q,2*k+1)+rr}") for k in range(4)]
            r.append(I(f"ds_write_b128 v{WA1 if rr % 2 else WA0}, {vr(tmp+4*rr,4)} offset:{(q % 2) * 16384 + rr*256}"))
        return r
    def l_finish(self, qs):
        r = [I(f"v_rcp_f32 v{L(q)}, v{L(q)}") for q in qs] + [I("s_nop 0")]
        for q in qs:
            r += [I(f"ds_bpermute_b32 v{NEGM(q)+k}, v{BPA}, v{L(q)} offset:{4*k}") for k in range(4)]
        return r
    def epi_read(self, q):
        return [I(f"ds_read_b64_tr_b16 {vr(O(q,0)+4*j+2*h,2)}, v{KD(0) if h else RA} offset:{(q % 2) * 16384 + j*1024}")
                for j in range(4) for h in range(2)]
    def epi_store(self, q):
        return [I(" ".join(f"buffer_store_dwordx4 {vr(O(q,0)+4*j,4)}, v{VO}, {srd(SO)}, s{S_T0 + q % 2} offen offset:{j*1024} {self.a.omod if (q < 2 or self.a.omod2 is None) else self.a.omod2}".split()))
                for j in range(4)]

    def prologue(self):
        e, a = self.e, self.a
        if a.stamp:
            e("s_memtime s[48:49]"); e("s_memrealtime s[50:51]")
        e("s_cmp_ge_u32 s2, 256"); e("s_cbranch_scc1 L_end")
        e("s_load_dwordx4 s[4:7], s[0:1], 0"); e("s_load_dwordx4 s[8:11], s[0:1], 16")
        if a.stamp: e(f"s_load_dwordx2 s[{SWS}:{SWS+1}], s[0:1], 40")
        vl, vg, vt, vu = T + 6, T + 1, T + 2, T
        e("s_getpc_b64 s[62:63]")
        e("L_pc0:")
        e(f"v_lshlrev_b32 v{T+9}, 7, v0")
        e(f"v_cmp_gt_u32 vcc, L_slow_0-L_pc0+128, v{T+9}")
        e("s_and_saveexec_b64 s[60:61], vcc")
        e("s_cbranch_execz L_cpf_skip")
        e(f"global_load_dword v{T+8}, v{T+9}, s[62:63]")
        e("L_cpf_skip:")
        e("s_mov_b64 exec, s[60:61]")
        e(f"v_lshrrev_b32 v{vt}, 6, v0")
        e(f"v_and_b32 v{vl}, 63, v0", "lane")
        e(f"v_readfirstlane_b32 s{S_W}, v{vt}")
        e(f"s_and_b32 s{S_T0}, s2, 7"); e(f"s_lshr_b32 s{S_T1}, s2, 3")
        e(f"s_lshl_b32 s{S_T0}, s{S_T0}, 4"); e(f"s_lshr_b32 s{S_T2}, s{S_T1}, 1")
        e(f"s_add_u32 s{S_T0}, s{S_T0}, s{S_T2}", "kv head index")
        e(f"s_and_b32 s{S_T1}, s{S_T1}, 1"); e(f"s_lshl_b32 s{S_T2}, s{S_T0}, 1")
        e(f"s_add_u32 s{S_T1}, s{S_T1}, s{S_T2}", "q head index")
        e(f"s_lshl_b32 s{S_T0}, s{S_T0}, 18"); e(f"s_lshl_b32 s{S_T1}, s{S_T1}, 16")
        e(f"s_lshl_b32 s{S_KW}, s{S_W}, 12")
        e(f"v_lshrrev_b32 v{vg}, 4, v{vl}", "g = lane>>4")
        e(f"v_and_b32 v{vt}, 15, v{vl}", "i = lane&15")
        e(f"v_xor_b32 v{vu}, v{vt}, v{vg}")
        e(f"v_lshlrev_b32 v{vu}, 4, v{vu}")
        e(f"v_lshl_add_u32 v{KD(0)}, v{vg}, 8, v{vu}")
        e(f"v_add_u32 v{KD(0)}, s{S_KW}, v{KD(0)}")
        for n in range(1, 4): e(f"v_xor_b32 v{KD(n)}, {n<<6:#x}, v{KD(0)}")
        e(f"s_lshl_b32 s{S_QL}, s{S_W}, 14")
        e(f"s_cmp_lt_u32 s{S_W}, 2"); e(f"s_cselect_b32 s{S_QG}, 2, 1"); e(f"s_lshl_b32 s{S_QG}, s{S_QG}, 16")
        e(f"s_add_u32 s{S_QL}, s{S_QL}, s{S_QG}", "q lds base")
        e(f"s_mul_i32 s{S_QG}, s{S_W}, 12288")
        e("s_waitcnt lgkmcnt(0)")
        if a.stamp:
            e("s_memtime s[52:53]"); e("s_memrealtime s[54:55]"); e("s_waitcnt lgkmcnt(0)")
        def mksrd(sr, p, off, n):
            e(f"s_add_u32 s{sr}, s{p}, s{off}"); e(f"s_addc_u32 s{sr+1}, s{p+1}, 0")
            e(f"s_mov_b32 s{sr+2}, {n}"); e(f"s_mov_b32 s{sr+3}, 0x20000")
        def qgrp(grp):
            r = [I(f"s_add_u32 m0, s{S_QL}, {grp*4096}"), I(f"s_add_u32 s{S_T2}, s{S_QG}, {grp*4096}")]
            for n in range(4):
                ld = I(" ".join(f"buffer_load_dwordx4 v{KD(n)}, {srd(SQ)}, s{S_T2} offen offset:{n*1024} {a.qmod} lds".split()))
                ld.dma = f"Q{grp}"
                r.append(ld)
            return r
        def tile(which, t):
            m0, lds = self.dma_tile(which, t, static=True)
            return [m0, I(f"s_mov_b32 s{S_G if which == 'K' else S_GV}, {t*16384}")] + lds
        mksrd(SQ, 4, S_T1, 65536)
        self.emit(qgrp(0)); self.emit(qgrp(1))
        mksrd(SK, 6, S_T0, 262144); mksrd(SV, 8, S_T0, 262144); mksrd(SO, 10, S_T1, 65536)
        if a.stamp:
            e(f"s_mov_b32 s{SWS+2}, 0x1000000"); e(f"s_mov_b32 s{SWS+3}, 0x20000")
            e(f"s_lshl_b32 s{S_WSO}, s2, 2"); e(f"s_add_u32 s{S_WSO}, s{S_WSO}, s{S_W}"); e(f"s_lshl_b32 s{S_WSO}, s{S_WSO}, 9")
            e(f"v_accvgpr_write_b32 a{ST0}, 0"); e(f"v_accvgpr_write_b32 a{ST1}, 0"); e(f"s_mov_b32 s{S_SI}, 2")
            e("s_mov_b64 exec, 1"); e(f"v_accvgpr_write_b32 a{ST0}, s48"); e(f"v_accvgpr_write_b32 a{ST1}, s50")
            e("s_mov_b64 exec, 2"); e(f"v_accvgpr_write_b32 a{ST0}, s52"); e(f"v_accvgpr_write_b32 a{ST1}, s54")
            e("s_mov_b64 exec, -1")
            self.emit(self.stamp())
        e(f"v_lshl_add_u32 v{KA(0)}, v{vt}, 8, v{vu}")
        for ds in range(1, 4): e(f"v_xor_b32 v{KA(ds)}, {ds<<6:#x}, v{KA(0)}")
        e(f"v_lshrrev_b32 v{vu}, 2, v{vl}", "key = lane>>2")
        e(f"v_lshlrev_b32 v{VA(0)}, 8, v{vu}")
        e(f"v_and_b32 v{vu}, 7, v{vu}")
        e(f"v_lshl_add_u32 v{VA(0)}, v{vu}, 4, v{VA(0)}")
        e(f"v_and_b32 v{vu}, 2, v{vl}")
        e(f"v_lshlrev_b32 v{RA}, 6, v{vu}")
        e(f"v_and_b32 v{vu}, 1, v{vl}")
        e(f"v_lshl_add_u32 v{RA}, v{vu}, 3, v{RA}", "128*(c>>1) + 8*(c&1)")
        e(f"v_add3_u32 v{VA(0)}, v{VA(0)}, v{RA}, 0x10000".replace(", 0x10000", f", s{S_C}"))
        self.out.insert(len(self.out) - 1, I(f"s_mov_b32 s{S_C}, 0x10000"))
        for db in range(1, 8): e(f"v_xor_b32 v{VA(db)}, {db<<4:#x}, v{VA(0)}")
        e(f"v_mul_u32_u24 v{BPA}, 80, v{vg}")
        e(f"v_lshlrev_b32 v{VO}, 4, v{vl}")
        e(f"v_lshlrev_b32 v{WA0}, 4, v{vt}")
        e(f"v_lshl_add_u32 v{WA0}, v{vg}, 10, v{WA0}")
        e(f"v_add_u32 v{WA0}, s{S_KW}, v{WA0}")
        e(f"v_xor_b32 v{WA1}, 64, v{WA0}")
        e(f"v_lshl_add_u32 v{RA}, v{vg}, 8, v{RA}")
        e(f"v_and_b32 v{vu}, 1, v{vg}")
        e(f"v_lshl_add_u32 v{RA}, v{vu}, 6, v{RA}")
        e(f"v_bfe_u32 v{vu}, v{vl}, 2, 2")
        e(f"v_lshl_add_u32 v{RA}, v{vu}, 4, v{RA}")
        e(f"v_add_u32 v{RA}, s{S_KW}, v{RA}")
        QA = X(3)
        for ds in range(4): e(f"v_add_u32 v{QA+ds}, s{S_QL}, v{KA(ds)}")
        e(f"s_mov_b32 s{S_C}, {f2u(CSC):#x}"); e(f"s_mov_b32 s{S_C+1}, {f2u(CSC):#x}")
        for q in range(4): e(f"v_mov_b32 v{L(q)}, 0")
        e(f"v_mov_b32 v{vu}, 0x3f803f80")
        for i in range(4): e(f"v_accvgpr_write_b32 a{ONES+i}, v{vu}")
        for i in range(128): e(f"v_mov_b32 v{i}, 0")
        e(f"s_mov_b32 s{S_PB}, s{S_KW}"); e(f"s_add_u32 s{S_PB2}, s{S_KW}, 0x8000")
        e(f"s_mov_b32 s{S_CNT}, 8")
        e(f"s_lshl_b32 s{S_T0}, s{S_W}, 14"); e(f"s_add_u32 s{S_T1}, s{S_T0}, 4096")
        RAW, TMP, SX = SB(1, 0), SB(1, 2), SB(1, 3)
        def qproc(q, early=(), fuse=False):
            e(f"s_waitcnt vmcnt({self.vm_needed([f'Q{q}'])})")
            for ds in range(4): e(f"ds_read_b128 {vr(RAW+4*ds,4)}, v{QA+ds} offset:{q*4096}")
            self.emit(early)
            mf = lambda ds: [I(f"{MF} {vr(SX+4*kb,4)}, {ar(KF(kb,ds),4)}, {vr(RAW+4*ds,4)}, {vr(SX+4*kb,4) if ds else 0}") for kb in range(2)]
            for ds in range(4):
                e(f"s_waitcnt lgkmcnt({3-ds})")
                for k in range(4):
                    e(f"v_lshlrev_b32 v{TMP+2*k}, 16, v{RAW+4*ds+k}")
                    e(f"v_and_b32 v{TMP+2*k+1}, 0xffff0000, v{RAW+4*ds+k}")
                    if fuse and ds and k in (0, 2): self.emit([mf(ds - 1)[k // 2]])
                for k in range(4): e(f"v_pk_mul_f32 {vr(TMP+2*k,2)}, {vr(TMP+2*k,2)}, s[{S_C}:{S_C+1}]")
                for k in range(4): e(f"v_cvt_pk_bf16_f32 v{RAW+4*ds+k}, v{TMP+2*k}, v{TMP+2*k+1}")
                if not fuse:
                    for k in range(4): e(f"v_accvgpr_write_b32 a{Q(q,ds)+k}, v{RAW+4*ds+k}")
            if fuse:
                w = [I(f"v_accvgpr_write_b32 a{Q(q,0)+k}, v{RAW+k}") for k in range(16)]
                m = mf(3)
                self.emit(w[:2] + [m[0]] + w[2:4] + [m[1]] + w[4:])
                self.emit(self.rowmax([(SX, 8, T, T + 1)]))
                for i in range(4): e(f"v_sub_f32 v{NEGM(q)+i}, 0, v{T}")
        queue = [tile("K", 0), qgrp(2), qgrp(3), tile("V", 0), tile("K", 1), tile("K", 2), tile("V", 1)]
        flat = []
        for grp in queue:
            lds = [x for x in grp if x.is_vmem]; hd = [x for x in grp if not x.is_vmem]
            for n, x in enumerate(lds): flat.append((hd if n == 0 else []) + [x])
        def take(n):
            r = []
            for _ in range(n):
                if flat: r += flat.pop(0)
            return r
        lt = a.late
        self.emit(take(a.ahead))
        self.emit(self.stamp())
        qproc(0, take(4 - lt)); self.emit(take(lt))
        qproc(1, take(4 - lt)); self.emit(take(lt))
        self.emit(self.stamp())
        e(f"s_waitcnt vmcnt({self.vm_needed(['K0'])})")
        self.emit(take(4 - lt))
        e("s_barrier")
        o, _ = self.insert_waits(self.k_reads(0) + self.qk_mfmas(0, zero_c=True), [])
        self.emit(o)
        e("s_nop 7")
        self.emit(self.rowmax([(SB(0, 0), 16, T, T + 1), (SB(0, 2), 16, T + 2, T + 7)]))
        for q, tm in ((0, T), (1, T + 2)):
            for i in range(4): e(f"v_sub_f32 v{NEGM(q)+i}, 0, v{tm}")
            for i in range(16): e(f"v_sub_f32 v{SB(0,2*q)+i}, v{SB(0,2*q)+i}, v{tm}")
        first, rest = self.split_stream(0, a.split)
        n1 = next(i for i, x in enumerate(first) if isinstance(x, I) and x.text.startswith(f"v_exp_f32 v{SB(0,0)+a.pexp},"))
        self.emit(self.flat_stream(first[:n1]))
        self.emit(take(lt))
        self.emit(self.stamp())
        qproc(2, take(4 - lt), fuse=True)
        self.emit(self.flat_stream(first[n1:]))
        self.emit(take(lt))
        self.emit(self.stamp())
        qproc(3, take(a.q3n), fuse=True)
        e(f"s_waitcnt vmcnt({self.vm_needed(['V0'])})")
        self.emit(take(99))
        e("s_barrier", "V0 visible; Q staging slots free")
        self.emit(self.v_reads(0)[:len(a.vb_plan)])
        self.emit(self.stamp())
        self.first = [I("L_first:"), I(f"s_waitcnt vmcnt({self.vm_needed(['K1'])})"), I("s_barrier")] + tile("K", 3) + [I("s_branch L_first_ret")]
        return rest

    def body(self, rest):
        e, a = self.e, self.a
        txt = lambda r: [x if isinstance(x, tuple) else x.text for x in r]
        rest0 = txt(rest)
        seq = []
        plan = lambda items, gs, slack, lo=None: [Item(x, (g if lo is None else min(g, max(lo(i), g - a.bearly))), g + slack) for i, (x, g) in enumerate(zip(items, gs))]
        for u in range(4):
            t, h = u // 2, u % 2
            exA, exB = [], []
            nvb, nva, nkb = len(a.vb_plan), len(a.va_plan), len(a.kb_plan)
            if h == 0:
                exA += plan(self.v_reads(t)[nvb:nvb + nva], a.va_plan, 1)
                exB += plan(self.v_reads(t)[nvb + nva:] + self.k_reads(t + 1)[:nkb], a.vc_plan + a.kb_plan, 0, lambda i: 1)
                exB += self.dma_items("V", t + 2, a.dv_plan, [I(f"s_xor_b32 s{S_PB2}, s{S_PB2}, 0x8000")] if u == 2 else [])
            else:
                exA += plan(self.k_reads(t + 1)[nkb:], a.ka_plan, 2)
                exB += [Item(I("s_waitcnt vmcnt(8)"), 0, 0), Item(I("s_barrier"), 1, 1)]
                exB += plan(self.v_reads(t + 1)[:nvb], a.vb_plan, 0, lambda i: 4 * (i // 4) + 6)
                exB += self.dma_items("K", t + 4, a.dk_plan, [I(f"s_xor_b32 s{S_PB}, s{S_PB}, 0x8000")] if u == 3 else [])
            if u == 1: exA += [Item(I(f"v_xor_b32 v{KA(ds)}, 0x8000, v{KA(ds)}"), a.ka_plan[-1] + 3, 31) for ds in range(4)]
            if u == 3: exA += [Item(I(f"v_xor_b32 v{VA(db)}, 0x8000, v{VA(db)}"), 2, 31) for db in range(8)]
            if u == 0:
                exA.append(Item(I(f"s_cmp_eq_u32 s{S_CNT}, 8"), a.first_gap - 1, a.first_gap - 1))
                exA.append(Item([I("s_cbranch_scc1 L_first"), I("L_first_ret:")], a.first_gap, a.first_gap))
            if u == 1:
                exA.append(Item(I(f"s_sub_u32 s{S_CNT}, s{S_CNT}, 1"), 4, 27))
                exA.append(Item(I(f"s_cmp_eq_u32 s{S_CNT}, 0"), 28, 31))
            label = f"L_slow_{u}"
            fin = [I(f"s_cbranch_vccnz {label}"), I(f"{label}_ret:")]
            first, nrest = self.split_stream(1 - h, a.split if h else a.split_odd)
            seq += self.schedule(self.qk_mfmas(u + 1), rest, exA, tail=self.check_ins(h), fin=fin, nxt_stream=first)
            sp = self.slow_path(u, label, x_cur=(u in (1, 3)), x_next=(u == 1))
            self.slow += sp
            if u == 1:
                seq.append(I("s_cbranch_scc1 L_tail"))
                rest_tail = [clone(x) for x in first + nrest]
            for i in range(2): exB.append(Item(I(f"v_add_f32 v{L(2*h+i)}, v{L(2*h+i)}, v{X(2*h+i)}"), 0, 31))
            seq += self.schedule(self.pv_mfmas(u), first, exB)
            rest = nrest
            if a.stamp and a.stamp_every and u % a.stamp_every == a.stamp_every - 1:
                seq += self.stamp()
        seq.append(I("s_branch L_loop"))
        assert txt(rest) == rest0
        _, pend = self.insert_waits(seq, [])
        seq2, pend2 = self.insert_waits(seq, pend)
        assert pend == pend2
        e(".p2align 6")
        e("L_loop:")
        n0 = len(self.out)
        self.emit(seq2)
        n1 = len(self.out)
        n_exit = next(i for i in range(n0, n1) if "L_tail" in self.out[i].text) + 1
        e("L_tail:")
        _, pend_exit = self.insert_waits(self.out[n0:n_exit], pend)
        o, _ = self.insert_waits(self.tail(rest_tail), pend_exit)
        self.emit(o)
        self.check_seq = lambda: self.out[:n1] + self.out[n0:n_exit] + self.out[n1:]
        self.loop_range, self.n_exit, self.tail_range = (n0, n1), n_exit, (n1, len(self.out))

    def tail(self, rest):
        a = self.a
        cut = [0] + a.st_cut
        o = self.stamp() if not a.stamp_every else []
        fl = self.flat_stream(rest)
        vr15 = self.v_reads(1, alt=True)
        o += fl[:a.z1_pre] + [I("s_waitcnt vmcnt(0)", "V15 landed; own out-of-range DMA writes too"), I("s_barrier")]
        fl = fl[a.z1_pre:]
        step = max(1, (len(fl) - 8) // 7)
        for k in range(7):
            o += vr15[4 * k:4 * k + 4] + fl[k * step:(k + 1) * step]
        o += fl[7 * step:]
        o += [I(f"v_add_f32 v{L(2+i)}, v{L(2+i)}, v{X(2+i)}") for i in range(2)] + [I(f"v_xor_b32 v{KD(0)}, 64, v{RA}"), I("s_nop 4")]
        self.slow += self.slow_path(2, "L_slow_z1", False, False, reread=False)
        o += self.check_ins(0) + [I("s_nop 3"), I("s_cbranch_vccnz L_slow_z1"), I("L_slow_z1_ret:")]
        if a.tstamp: o += self.stamp()
        lf = [x for x in self.l_finish((0, 1)) if x.op != "s_nop"]
        bg = [I(f"v_add_f32 v{L(i)}, v{L(i)}, v{X(i)}") for i in range(2)] + vr15[28:] + lf
        z, left = self.schedule_bg(self.pv_mfmas(2, alt=True), bg); o += z + left
        o += self.stamp()
        st0, st1 = self.epi_store(0), self.epi_store(1)
        o += [I("s_nop 3")] + self.epi_pack(0) + self.epi_read(0)
        V, D = [], []
        for x in self.epi_pack_bg(1):
            if x.is_ds: D.append((len(V), 0, x))
            else: V.append(x)
        for j, (at, dl) in enumerate(a.st0_plan): D.insert(at + j, (0, dl, st0[j]))
        D += [(len(V), 0, x) for x in self.epi_read(1)]
        m3 = self.pv_mfmas(1)
        for m in m3: m.need = (m.need[0], ("V", 0) + m.need[1][2:])
        o += self.schedule_vd(m3, V, D)
        assert not V
        if a.tstamp: o += self.stamp()
        mq = self.qk_mfmas(3, qmajor=True)
        k0 = a.z4_k0
        D += [(0, dl, x) for x, dl in zip(st1, a.st1_pos)]
        o += self.schedule_vd(mq[:k0], [], D)
        ex = [Item(x[2], 1 + 4 * i, 1 + 4 * i) for i, x in enumerate(D)]
        sm = [x for _, x in self.sm_stream(1)]
        z = self.schedule(mq[k0:], sm, ex)
        o += z
        if a.tstamp: o += self.stamp()
        fl = []
        self.slow += self.slow_path(3, "L_slow_z5", False, False, reread=False)
        o += fl + [I("s_nop 7")] + self.check_ins(1) + [I("s_nop 3"), I("s_cbranch_vccnz L_slow_z5"), I("L_slow_z5_ret:")]
        if a.tstamp: o += self.stamp()
        lf = [x for x in self.l_finish((2, 3)) if x.op != "s_nop"]
        bg = [I(f"v_add_f32 v{L(2+i)}, v{L(2+i)}, v{X(2+i)}") for i in range(2)] + lf[:2]
        bg += [I(f"s_add_u32 s{S_T0}, s{S_T0}, 8192"), lf[2], I(f"s_add_u32 s{S_T1}, s{S_T1}, 8192")] + lf[3:]
        bg += [I(f"v_add_u32 v{x}, 0x10000, v{x}") for x in (WA0, WA1, RA, KD(0))]
        z, left = self.schedule_bg(self.pv_mfmas(3, qmajor=True, alt=True), bg); o += z + left
        o += self.stamp()
        p3, st2 = self.epi_pack(3), self.epi_store(2)
        o += self.epi_pack(2) + self.epi_read(2)
        for j in range(4): o += p3[cut[j]:cut[j + 1]] + [st2[j]]
        o += self.epi_read(3) + self.epi_store(3)
        return o

    def finish(self):
        e, a = self.e, self.a
        self.emit(self.stamp())
        if a.stamp:
            e("s_waitcnt vmcnt(0)")
            self.emit(self.stamp())
            e(f"v_mbcnt_lo_u32_b32 v0, -1, 0"); e(f"v_mbcnt_hi_u32_b32 v0, -1, v0"); e("v_lshlrev_b32 v0, 2, v0")
            e(f"buffer_store_dword a{ST0}, v0, {srd(SWS)}, s{S_WSO} offen")
            e(f"buffer_store_dword a{ST1}, v0, {srd(SWS)}, s{S_WSO} offen offset:256")
        e("L_end:")
        e("s_endpgm")

    def verify_tags(self):
        n0, n1 = self.loop_range
        tags, bad = {}, []
        def run(ins, off):
            for x in ins:
                if hasattr(x, "need"):
                    r, tg = x.need
                    want = (tg[0], tg[1] + off) + tg[2:]
                    if tags.get(r) != want: bad.append(f"tag: {x} wants {want} has {tags.get(r)}")
                for r, tg in getattr(x, "tag", []):
                    tags[r] = tg if len(tg) == 1 else (tg[0], tg[1] + off) + tg[2:]
        run(self.out[:n0], 0)
        for it in range(7): run(self.out[n0:n1], 2 * it)
        run(self.out[n0:self.n_exit], 14)
        run(self.out[n1:], 14)
        return bad

    def build(self):
        rest = self.prologue()
        self.body(rest)
        probs = self.verify_tags()
        if self.a.drop:
            pats = self.a.drop.split(",")
            l0, l1 = self.loop_range
            keep = lambda i: not any(i.text.startswith(p.replace("~", " ")) for p in pats)
            self.out = self.out[:l0] + [i for i in self.out[l0:l1] if keep(i)] + self.out[l1:]
        self.finish()
        if getattr(self, "nocheck", False): return "", probs
        if not self.a.drop:
            probs += check(self.check_seq(), "main", verbose=False)
        probs += check(self.slow, "slow", verbose=False)
        hdr = open("standalone__gqa_softmax__near_ridge.s.ref").read().split("; Override")[0]
        txt = hdr + "; @launch grid=(256,1,1) block=(256,1,1) lds=163840\n" + DOC
        txt += '.amdgcn_target "amdgcn-amd-amdhsa--gfx950"\n.text\n'
        txt += f".globl {KNAME}\n.p2align 8\n.type {KNAME},@function\n{KNAME}:\n"
        txt += "\n".join(str(i) for i in self.out) + "\n"
        txt += "\n".join(str(i) for i in self.first + self.slow) + "\n"
        txt += f""".section .rodata,"a"
.p2align 6
.amdhsa_kernel {KNAME}
  .amdhsa_next_free_vgpr {256 + NAGPR}
  .amdhsa_next_free_sgpr 64
  .amdhsa_accum_offset 256
  .amdhsa_group_segment_fixed_size 0
  .amdhsa_kernarg_size 48
  .amdhsa_user_sgpr_count 2
  .amdhsa_user_sgpr_kernarg_segment_ptr 1
  .amdhsa_system_sgpr_workgroup_id_x 1
.end_amdhsa_kernel
"""
        return txt, probs

    def gap_report(self, rng=None):
        n0, n1 = rng or self.loop_range
        gaps = []; cur = None
        for i in self.out[n0:n1]:
            if i.is_label: continue
            if i.is_mfma:
                if cur is not None: gaps.append(cur)
                cur = ""
            elif cur is not None:
                cur += "E" if i.is_trans else ("v" if i.is_valu else ("d" if i.is_ds else ("M" if i.is_vmem else "s")))
        gaps.append(cur)
        def t(gp):
            tm = 4; prev = "m"
            for c in gp:
                if c == "s": tm += 4
                else:
                    tm = max(tm, 8)
                    if c in "dM" and prev in "vE": tm += 4
                    if c in "vE" and prev == "M": tm += 4
                    tm += 8 if c == "E" else 4
                prev = c
            if prev in "dM": tm += 4
            return max(16, tm)
        return gaps, sum(map(t, gaps))


def get_args(argv=None):
    p = argparse.ArgumentParser()
    p.add_argument("-o", default="k5.s")
    p.add_argument("--stamp", action="store_true")
    p.add_argument("--stamp_every", type=int, default=4)
    p.add_argument("--split", type=int, default=18)
    p.add_argument("--split_odd", type=int, default=17)
    p.add_argument("--bearly", type=int, default=4)
    p.add_argument("--va_plan", default="2,5,8,11,14,17,20,21,22,23,24,25,26,27,28,29,30,31")
    p.add_argument("--vc_plan", default="6,7,9")
    p.add_argument("--kb_plan", default="11,14,16,18,20,22,24,25,29")
    p.add_argument("--ka_plan", default="1,4,7,10,12,15,18")
    p.add_argument("--vb_plan", default="9,12,14,15,17,20,22,25,27,28,30")
    p.add_argument("--dv_plan", default="5,12,17,23")
    p.add_argument("--dk_plan", default="5,12,21,29")
    p.add_argument("--first_gap", type=int, default=28)
    p.add_argument("--ahead", type=int, default=6)
    p.add_argument("--late", type=int, default=2)
    p.add_argument("--q3n", type=int, default=2)
    p.add_argument("--pexp", type=int, default=8)
    p.add_argument("--nflat", type=int, default=12)
    p.add_argument("--st_cut", default="20,26,31,36")
    p.add_argument("--st_gaps", default="4,14,19,24")
    p.add_argument("--drop", default="")
    p.add_argument("--st0", default="0:4,1:2,2:2,3:2")
    p.add_argument("--omod2", default=None)
    p.add_argument("--tstamp", type=int, default=0)
    p.add_argument("--z1_pre", type=int, default=6)
    p.add_argument("--st0_pos", default="8,16,24,32")
    p.add_argument("--st1_pos", default="3,3,3,3")
    p.add_argument("--z4_k0", type=int, default=12)
    p.add_argument("--kvmod", default="nt")
    p.add_argument("--qmod", default="nt")
    p.add_argument("--omod", default="sc1")
    a = p.parse_args(argv)
    for k in ("va_plan", "vc_plan", "kb_plan", "ka_plan", "vb_plan", "dv_plan", "dk_plan", "st_cut", "st_gaps", "st0_pos", "st1_pos"):
        setattr(a, k, [int(x) for x in getattr(a, k).split(",")])
    a.st0_plan = [tuple(int(y) for y in x.split(":")) for x in a.st0.split(",")]
    assert len(a.va_plan) + len(a.vb_plan) + len(a.vc_plan) == 32 and len(a.ka_plan) + len(a.kb_plan) == 16
    return a


if __name__ == "__main__":
    a = get_args()
    g = Gen(a)
    txt, probs = g.build()
    open(a.o, "w").write(txt)
    for p in probs: print(p)
    gaps, est = g.gap_report()
    print("gaps:", " ".join(x or "-" for x in gaps))
    tg, test = g.gap_report(g.tail_range)
    print("tail:", " ".join(x or "-" for x in tg), test)
    print(f"wrote {a.o}: {len(g.out)} main insts, {len(g.slow)} slow insts, {len(probs)} problems; est cycles/unit {est/4:.0f}")
```

```python
import sys, re, struct, math, argparse
from asmlib import I, check

KNAME = "standalone__gqa_softmax__near_ridge_kernel"
CSC = math.log2(math.e) / math.sqrt(128.0)
def f2u(x): return struct.unpack("<I", struct.pack("<f", x))[0]
THR = f2u(2.0 ** 20)
MF = "v_mfma_f32_16x16x32_bf16"

def O(q, db): return (q * 8 + db) * 4
def SB(h, qq): return 128 + 32 * h + 8 * qq
def NEGM(q): return 192 + 4 * q
def X(q): return 208 + 4 * q
def KA(ds): return 224 + ds
def VA(db): return 228 + db
def KD(n): return 236 + n
BPA, WA0 = 240, 241
def L(q): return 242 + q
T = 246
WA1, RA, VO = T + 3, T + 4, T + 5
def Q(q, ds): return (q * 4 + ds) * 4
def KF(kb, ds): return 64 + (kb * 4 + ds) * 4
def VF(db, half): return 128 + (db * 2 + half) * 4
ONES = 192
ST0, ST1 = 252, 253
NAGPR = 256
def VF2(db, half): return ('a', 196 + (db * 2 + half) * 4) if db < 7 else ('v', 228 - 4 * half)
def vr(b, n): return f"v[{b}:{b+n-1}]"
def ar(b, n): return f"a[{b}:{b+n-1}]"

SQ, SK, SV, SO = 12, 16, 20, 24
S_W, S_KW, S_G = 28, 29, 30
S_T0, S_T1, S_T2 = 31, 32, 33
S_PB, S_CNT = 34, 35
S_C = 36
S_WSO, S_SI, S_STAMP = 38, 39, 40
SWS = 44
S_QL, S_QG = 56, 57
S_GV, S_PB2 = 58, 59
def srd(b): return f"s[{b}:{b+3}]"

DOC = """;
;    as its C operand (-m), so P = exp2(S - m).  For every unit the row sums of P (ones-MFMA) are checked; when one exceeds
;    and redoes the exponentials before any of that P reaches O.  m never exceeds the true max, so nothing underflows early.
;
"""


class Item:
    def __init__(self, ins, early=0, late=10**6):
        self.ins = ins if isinstance(ins, list) else [ins]
        self.early, self.late = early, late


def clone(x):
    if isinstance(x, tuple): return x
    y = I(x.text, x.note)
    for k in ("dma", "tag", "need"):
        if hasattr(x, k): setattr(y, k, getattr(x, k))
    return y


class Gen:
    def __init__(self, a):
        self.a = a
        self.out, self.slow, self.dma_log = [], [], []

    def e(self, t, note=None): self.out.append(I(t, note))

    def emit(self, ins):
        for i in ins:
            if hasattr(i, "dma"): self.dma_log.append(i.dma)
            self.out.append(i)

    def stamp(self):
        if not self.a.stamp: return []
        return [I(f"s_memtime s[{S_STAMP}:{S_STAMP+1}]"), I(f"s_memrealtime s[{S_STAMP+2}:{S_STAMP+3}]"),
                I("s_waitcnt lgkmcnt(0)"), I(f"s_lshl_b64 exec, 1, s{S_SI}"),
                I(f"v_accvgpr_write_b32 a{ST0}, s{S_STAMP}"), I(f"v_accvgpr_write_b32 a{ST1}, s{S_STAMP+2}"),
                I("s_mov_b64 exec, -1"), I(f"s_add_u32 s{S_SI}, s{S_SI}, 1")]

    def dma_tile(self, which, t, static=False):
        base = (0 if which == "K" else 65536)
        if static: m0 = I(f"s_add_u32 m0, s{S_KW}, {base + (t % 4) * 16384}")
        else: m0 = I(f"s_add_u32 m0, s{S_PB if which == 'K' else S_PB2}, {base + (t % 2) * 16384}")
        r = []
        for n in range(4):
            vo = KD(n) if which == "K" else KD(n & 1)
            ld = I(" ".join(f"buffer_load_dwordx4 v{vo}, {srd(SK if which == 'K' else SV)}, s{S_G if which == 'K' else S_GV} offen offset:{n*1024} {self.a.kvmod} lds".split()),
                   f"DMA {which}{t}.{n}")
            ld.dma = f"{which}{t}"
            r.append(ld)
        return m0, r

    def vm_needed(self, names):
        last = max(i for i, n in enumerate(self.dma_log) if n in names)
        return len(self.dma_log) - 1 - last

    def qk_mfmas(self, u, zero_c=False, qmajor=False, qls=(0, 1)):
        t, h = u // 2, u % 2
        r = []
        for kb, ql in ([(kb, ql) for ql in range(2) for kb in range(4)] if qmajor else [(kb, ql) for kb in range(4) for ql in range(2)]):
            if ql in qls:
                q = 2 * h + ql
                d = vr(SB(h, 2 * ql + (kb >> 1)) + 4 * (kb & 1), 4)
                for ds in range(4):
                    c = d if ds else ("0" if zero_c else vr(NEGM(q), 4))
                    m = I(f"{MF} {d}, {ar(KF(kb,ds),4)}, {ar(Q(q,ds),4)}, {c}")
                    m.need = (("a", KF(kb, ds)), ("K", t, kb, ds))
                    r.append(m)
        return r

    def pv_mfmas(self, u, qmajor=False, alt=False):
        t, h = u // 2, u % 2
        o = [(db, ql, hf) for db in range(8) for ql in range(2) for hf in range(2)]
        if qmajor: o = [(db, ql, hf) for ql in range(2) for db in range(8) for hf in range(2)]
        r = []
        for db, ql, hf in o:
            d = vr(O(2 * h + ql, db), 4)
            k, b = VF2(db, hf) if alt else ("a", VF(db, hf))
            m = I(f"{MF} {d}, {vr(SB(h,2*ql+hf),4)}, {k}[{b}:{b+3}], {d}")
            m.need = ((k, b), ("V", t, db, hf))
            r.append(m)
        return r

    def sum_mfma(self, h, qq):
        q = 2 * h + qq // 2
        return I(f"{MF} {vr(X(q),4)}, {ar(ONES,4)}, {vr(SB(h,qq),4)}, {vr(X(q),4) if qq % 2 else 0}")

    def k_reads(self, t, kbs=range(4)):
        r = []
        for kb in kbs:
            for ds in range(4):
                x = I(f"ds_read_b128 {ar(KF(kb,ds),4)}, v{KA(ds)} offset:{(t % 2) * 16384 + kb * 4096}")
                x.tag = [(("a", KF(kb, ds)), ("K", t, kb, ds))]
                r.append(x)
        return r

    def v_reads(self, t, dbs=range(8), alt=False):
        r = []
        for db in dbs:
            for hf in range(2):
                for tt in range(2):
                    k, b = VF2(db, hf) if alt else ("a", VF(db, hf))
                    x = I(f"ds_read_b64_tr_b16 {k}[{b+2*tt}:{b+2*tt+1}], v{VA(db)} offset:{(t % 2) * 16384 + hf * 8192 + tt * 4096}")
                    x.tag = [((k, b), ("V", t, db, hf) if tt else ("partial",))]
                    r.append(x)
        return r

    def sm_stream(self, h, qls=(0, 1)):
        r = []
        def post(e):
            qq, i = e // 8, e % 8
            b = SB(h, qq)
            if i % 2 == 1: r.append((e, I(f"v_cvt_pk_bf16_f32 v{b+i//2}, v{b+i-1}, v{b+i}")))
            if i == 7: r.append((e, ("SUM", h, qq)))
        e0, e1 = 16 * qls[0], 16 * qls[-1] + 16
        for e in range(e0, e1):
            r.append((e, I(f"v_exp_f32 v{SB(h,0)+e}, v{SB(h,0)+e}")))
            if e > e0: post(e - 1)
        post(e1 - 1)
        return r

    def split_stream(self, h, split):
        sm = self.sm_stream(h)
        idx = next(i for i, (e, x) in enumerate(sm) if e == split and isinstance(x, I) and x.is_trans)
        return [x for _, x in sm[:idx]], [x for _, x in sm[idx:]]

    def flat_stream(self, items):
        r = []
        for x in items:
            if isinstance(x, tuple): r += [I("s_nop 1"), self.sum_mfma(*x[1:])]
            else:
                if r and r[-1].is_trans and set(r[-1].dst) & set(x.src): r.append(I("s_nop 0"))
                r.append(x)
        return r

    def rowmax(self, groups):
        r = []
        pad = [I("s_nop 1")]
        for b, n, t0, t1 in groups:
            r += [I(f"v_max3_f32 v{t0}, v{b}, v{b+1}, v{b+2}"), I(f"v_max3_f32 v{t1}, v{b+3}, v{b+4}, v{b+5}")]
            for i in range(6, n, 4):
                r.append(I(f"v_max3_f32 v{t0}, v{t0}, v{b+i}, v{b+i+1}"))
                if i + 2 < n: r.append(I(f"v_max3_f32 v{t1}, v{t1}, v{b+i+2}, v{b+i+3}"))
            r.append(I(f"v_max_f32 v{t0}, v{t0}, v{t1}"))
        for sw in ("v_permlane16_swap_b32", "v_permlane32_swap_b32"):
            r += [I(f"v_mov_b32 v{t1}, v{t0}") for _, _, t0, t1 in groups] + pad
            r += [I(f"{sw} v{t0}, v{t1}") for _, _, t0, t1 in groups] + [clone(pad[0])]
            r += [I(f"v_max_f32 v{t0}, v{t0}, v{t1}") for _, _, t0, t1 in groups]
            pad = [clone(pad[0])]
        return r

    def slow_path(self, u, label, x_cur, x_next, reread=None, qls=(0, 1)):
        t, h = u // 2, u % 2
        xo = lambda: [I(f"v_xor_b32 v{KA(ds)}, 0x8000, v{KA(ds)}") for ds in range(4)]
        r = [I(f"{label}:"), I("s_nop 3")]
        if reread is None: reread = (h == 1)
        if reread:
            r += (xo() if x_cur else []) + self.k_reads(t) + (xo() if x_cur else [])
        r.append(I("s_waitcnt lgkmcnt(0)"))
        r += self.qk_mfmas(u, qls=qls)
        r.append(I("s_nop 7"))
        if reread:
            r += (xo() if x_next else []) + self.k_reads(t + 1) + (xo() if x_next else [])
        t0, t1, t2 = T, T + 1, T + 2
        for ql in qls:
            q = 2 * h + ql
            b = SB(h, 2 * ql)
            r += self.rowmax([(b, 16, t0, t1)])
            r.append(I(f"v_max_f32 v{t0}, 0, v{t0}"))
            r.append(I(f"v_exp_f32 v{t2}, -v{t0}"))
            for i in range(4): r.append(I(f"v_sub_f32 v{NEGM(q)+i}, v{NEGM(q)+i}, v{t0}"))
            r.append(I(f"v_mul_f32 v{L(q)}, v{L(q)}, v{t2}"))
            for k in range(4): r.append(I(f"ds_bpermute_b32 v{T+6+k}, v{BPA}, v{t2} offset:{4*k}"))
            for i in range(16): r.append(I(f"v_sub_f32 v{b+i}, v{b+i}, v{t0}"))
            r.append(I("s_waitcnt lgkmcnt(0)"))
            for i in range(32): r.append(I(f"v_mul_f32 v{O(q,0)+i}, v{O(q,0)+i}, v{T+6+i%4}"))
        r += self.flat_stream([x for _, x in self.sm_stream(h, qls)])
        r.append(I("s_nop 7"))
        r.append(I(f"s_branch {label}_ret"))
        return r

    def schedule(self, mfmas, stream, others, tail=(), tail_lag=8, fin=(), nxt_stream=None):
        out = []
        M = list(mfmas); stream = list(stream); tail = list(tail)
        others = sorted(others, key=lambda x: (x.late, x.early) if x.ins[0].is_ds else (x.early, x.late))
        kind = lambda o: "s" if o.ins[0].is_salu else ("d" if o.ins[0].is_ds else ("m" if o.ins[0].is_vmem else "v"))
        pend = []
        last_sum_pos = None
        def states_since(idx): return sum(i.states for i in out[idx + 1:])
        g = -1
        def pop_markers():
            while stream and isinstance(stream[0], tuple):
                x = stream.pop(0); pend.append([self.sum_mfma(*x[1:]), len(out) - 1])
        def ok(n):
            l = out[-1]
            return not (l.is_trans and set(l.dst) & set(n.src))
        def take(k, overdue=False):
            for o in others:
                if kind(o) == k and (o.late <= g if overdue else o.early <= g):
                    others.remove(o); return o
            return None
        def small_v():
            pop_markers()
            o = take("v", True)
            if o: return o.ins
            if stream and stream[0].cost == 4 and ok(stream[0]): return [stream.pop(0)]
            if tail and g >= 2 and not stream and not pend and (last_sum_pos is None or states_since(last_sum_pos) >= tail_lag):
                return [tail.pop(0)]
            o = take("v")
            if o: return o.ins
            return None
        while M or pend or any(isinstance(x, tuple) for x in stream):
            if pend and states_since(pend[0][1]) >= 2:
                out.append(pend.pop(0)[0]); last_sum_pos = len(out) - 1
            elif M:
                out.append(M.pop(0))
            elif pend:
                out.append(I("s_nop 1")); out.append(pend.pop(0)[0]); last_sum_pos = len(out) - 1
            else:
                while stream and not isinstance(stream[0], tuple):
                    if not ok(stream[0]): out.append(I("s_nop 0"))
                    out.append(stream.pop(0))
                pop_markers(); continue
            g += 1
            is_last = not M and not pend and not any(isinstance(x, tuple) for x in stream)
            if is_last and fin: break
            o = take("s")
            if o: out += o.ins
            pop_markers()
            nxt_exp = bool(stream) and stream[0].cost == 8
            o = take("m", True) or take("d", True)
            if not o and not nxt_exp: o = take("d") or take("m")
            if o:
                out += o.ins
                if kind(o) == "d":
                    v = small_v()
                    if v: out += v
            elif nxt_exp:
                out.append(stream.pop(0))
            else:
                for _ in range(2):
                    v = small_v()
                    if v: out += v
                    if v and v[0].is_trans: break
            pop_markers()
        for x in stream:
            if not ok(x): out.append(I("s_nop 0"))
            out.append(x)
        for o in others: out += o.ins
        if tail:
            if last_sum_pos is not None and states_since(last_sum_pos) < tail_lag:
                out.append(I(f"s_nop {tail_lag - states_since(last_sum_pos) - 1}"))
            out += tail
        out += list(fin)
        if fin and nxt_stream and not isinstance(nxt_stream[0], tuple):
            out.append(nxt_stream.pop(0))
        return out

    def insert_waits(self, seq, pending):
        out = []
        pend = [(p, -1) for p in pending]
        last_m = -1
        for x in seq:
            if x.op == "s_waitcnt" and "lgkmcnt" in x.text:
                k = int(re.search(r"lgkmcnt\((\d+)\)", x.text).group(1))
                pend = pend[len(pend) - k:] if 0 < k < len(pend) else ([] if k == 0 else pend)
            if x.is_mfma or (x.is_vmem and "store" in x.op) or x.op in ("v_pk_mul_f32", "v_mul_f32"):
                need = [i for i, (p, _) in enumerate(pend) if p & set(x.src)]
                if need:
                    j = max(need)
                    pos = last_m + 1 if (pend[j][1] <= last_m and x.is_mfma) else len(out)
                    if x.is_mfma and any(y.op.startswith("s_cbranch") or y.op == "s_barrier" for y in out[last_m + 1:]):
                        pm = max((k for k in range(last_m) if out[k].is_mfma), default=-1)
                        if pm >= 0 and pend[j][1] <= pm and not any(y.is_label for y in out[pm:last_m]):
                            pos = pm + 1; last_m += 1
                    n = min(15, sum(1 for (p, q) in pend[j + 1:] if q < pos))
                    out.insert(pos, I(f"s_waitcnt lgkmcnt({n})"))
                    pend = [(p, q + (1 if q >= pos else 0)) for (p, q) in pend[j + 1:]]
                if x.is_mfma: last_m = len(out)
            if x.is_ds: pend.append((set(x.dst), len(out)))
            out.append(x)
        return out, [p for p, _ in pend]

    def check_ins(self, h):
        return [I(f"v_max_f32 v{T}, v{X(2*h)}, v{X(2*h+1)}"), I(f"v_cmp_lt_f32 vcc, {THR:#x}, v{T}")]

    def dma_items(self, which, t, gs, post=()):
        m0, lds = self.dma_tile(which, t)
        r = S_G if which == "K" else S_GV
        its = [Item(I(f"s_add_u32 s{r}, s{r}, 16384"), max(gs[0] - 4, 2), gs[0] - 1), Item(m0, max(gs[0] - 2, 0), gs[0] - 1)]
        for n in range(4): its.append(Item(lds[n], gs[n], gs[n] + 1))
        for p in post: its.append(Item(p, gs[3] + 2, gs[3] + 4))
        return its

    def epi_pack_bg(self, q):
        r = []
        tmp = SB(0, 2 * (q % 2))
        for rr in range(4):
            r += [I(f"v_mul_f32 v{O(q,db)+rr}, v{O(q,db)+rr}, v{NEGM(q)+rr}") for db in range(8)]
            r += [I(f"v_cvt_pk_bf16_f32 v{tmp+4*rr+k}, v{O(q,2*k)+rr}, v{O(q,2*k+1)+rr}") for k in range(4)]
            r.append(I(f"ds_write_b128 v{WA1 if rr % 2 else WA0}, {vr(tmp+4*rr,4)} offset:{(q % 2) * 16384 + rr*256}"))
        return r
    def schedule_bg(self, mfmas, bg):
        out = []; bg = list(bg)
        for m in mfmas:
            out.append(m)
            if bg and bg[0].is_salu: out.append(bg.pop(0))
            if not bg: continue
            x = bg[0]
            if x.is_vmem or x.is_trans: out.append(bg.pop(0)); continue
            out.append(bg.pop(0))
            if bg and bg[0].is_valu and not bg[0].is_trans: out.append(bg.pop(0))
        return out, bg
    def schedule_vd(self, mfmas, V, D):
        out = []; nv = 0; since = -1
        for m in mfmas:
            out.append(m); since += 1
            k = 2
            if D and D[0][0] <= nv and since >= D[0][1]:
                x = D.pop(0)[2]; out.append(x); since = 0
                k = 0 if x.is_vmem else 1
            for _ in range(k):
                if V: out.append(V.pop(0)); nv += 1
        for i in range(len(D)): D[i] = (D[i][0] - nv, D[i][1], D[i][2])
        return out
    def epi_pack(self, q):
        r = []
        tmp = SB(0, 2 * (q % 2))
        for db in range(8):
            b = O(q, db)
            r += [I(f"v_pk_mul_f32 {vr(b+i,2)}, {vr(b+i,2)}, {vr(NEGM(q)+i,2)}") for i in (0, 2)]
        for rr in range(4):
            r += [I(f"v_cvt_pk_bf16_f32 v{tmp+4*rr+k}, v{O(q,2*k)+rr}, v{O(q,2*k+1)+rr}") for k in range(4)]
            r.append(I(f"ds_write_b128 v{WA1 if rr % 2 else WA0}, {vr(tmp+4*rr,4)} offset:{(q % 2) * 16384 + rr*256}"))
        return r
    def l_finish(self, qs):
        r = [I(f"v_rcp_f32 v{L(q)}, v{L(q)}") for q in qs] + [I("s_nop 0")]
        for q in qs:
            r += [I(f"ds_bpermute_b32 v{NEGM(q)+k}, v{BPA}, v{L(q)} offset:{4*k}") for k in range(4)]
        return r
    def epi_read(self, q):
        return [I(f"ds_read_b64_tr_b16 {vr(O(q,0)+4*j+2*h,2)}, v{KD(0) if h else RA} offset:{(q % 2) * 16384 + j*1024}")
                for j in range(4) for h in range(2)]
    def epi_store(self, q):
        return [I(" ".join(f"buffer_store_dwordx4 {vr(O(q,0)+4*j,4)}, v{VO}, {srd(SO)}, s{S_T0 + q % 2} offen offset:{j*1024} {self.a.omod if (q < 2 or self.a.omod2 is None) else self.a.omod2}".split()))
                for j in range(4)]

    def prologue(self):
        e, a = self.e, self.a
        if a.stamp:
            e("s_memtime s[48:49]"); e("s_memrealtime s[50:51]")
        e("s_cmp_ge_u32 s2, 256"); e("s_cbranch_scc1 L_end")
        e("s_load_dwordx4 s[4:7], s[0:1], 0"); e("s_load_dwordx4 s[8:11], s[0:1], 16")
        if a.stamp: e(f"s_load_dwordx2 s[{SWS}:{SWS+1}], s[0:1], 40")
        vl, vg, vt, vu = T + 6, T + 1, T + 2, T
        e("s_getpc_b64 s[62:63]")
        e("L_pc0:")
        e(f"v_lshlrev_b32 v{T+9}, 7, v0")
        e(f"v_cmp_gt_u32 vcc, L_slow_0-L_pc0+128, v{T+9}")
        e("s_and_saveexec_b64 s[60:61], vcc")
        e("s_cbranch_execz L_cpf_skip")
        e(f"global_load_dword v{T+8}, v{T+9}, s[62:63]")
        e("L_cpf_skip:")
        e("s_mov_b64 exec, s[60:61]")
        e(f"v_lshrrev_b32 v{vt}, 6, v0")
        e(f"v_and_b32 v{vl}, 63, v0", "lane")
        e(f"v_readfirstlane_b32 s{S_W}, v{vt}")
        e(f"s_and_b32 s{S_T0}, s2, 7"); e(f"s_lshr_b32 s{S_T1}, s2, 3")
        e(f"s_lshl_b32 s{S_T0}, s{S_T0}, 4"); e(f"s_lshr_b32 s{S_T2}, s{S_T1}, 1")
        e(f"s_add_u32 s{S_T0}, s{S_T0}, s{S_T2}", "kv head index")
        e(f"s_and_b32 s{S_T1}, s{S_T1}, 1"); e(f"s_lshl_b32 s{S_T2}, s{S_T0}, 1")
        e(f"s_add_u32 s{S_T1}, s{S_T1}, s{S_T2}", "q head index")
        e(f"s_lshl_b32 s{S_T0}, s{S_T0}, 18"); e(f"s_lshl_b32 s{S_T1}, s{S_T1}, 16")
        e(f"s_lshl_b32 s{S_KW}, s{S_W}, 12")
        e(f"v_lshrrev_b32 v{vg}, 4, v{vl}", "g = lane>>4")
        e(f"v_and_b32 v{vt}, 15, v{vl}", "i = lane&15")
        e(f"v_xor_b32 v{vu}, v{vt}, v{vg}")
        e(f"v_lshlrev_b32 v{vu}, 4, v{vu}")
        e(f"v_lshl_add_u32 v{KD(0)}, v{vg}, 8, v{vu}")
        e(f"v_add_u32 v{KD(0)}, s{S_KW}, v{KD(0)}")
        for n in range(1, 4): e(f"v_xor_b32 v{KD(n)}, {n<<6:#x}, v{KD(0)}")
        e(f"s_lshl_b32 s{S_QL}, s{S_W}, 14")
        e(f"s_cmp_lt_u32 s{S_W}, 2"); e(f"s_cselect_b32 s{S_QG}, 2, 1"); e(f"s_lshl_b32 s{S_QG}, s{S_QG}, 16")
        e(f"s_add_u32 s{S_QL}, s{S_QL}, s{S_QG}", "q lds base")
        e(f"s_mul_i32 s{S_QG}, s{S_W}, 12288")
        e("s_waitcnt lgkmcnt(0)")
        if a.stamp:
            e("s_memtime s[52:53]"); e("s_memrealtime s[54:55]"); e("s_waitcnt lgkmcnt(0)")
        def mksrd(sr, p, off, n):
            e(f"s_add_u32 s{sr}, s{p}, s{off}"); e(f"s_addc_u32 s{sr+1}, s{p+1}, 0")
            e(f"s_mov_b32 s{sr+2}, {n}"); e(f"s_mov_b32 s{sr+3}, 0x20000")
        def qgrp(grp):
            r = [I(f"s_add_u32 m0, s{S_QL}, {grp*4096}"), I(f"s_add_u32 s{S_T2}, s{S_QG}, {grp*4096}")]
            for n in range(4):
                ld = I(" ".join(f"buffer_load_dwordx4 v{KD(n)}, {srd(SQ)}, s{S_T2} offen offset:{n*1024} {a.qmod} lds".split()))
                ld.dma = f"Q{grp}"
                r.append(ld)
            return r
        def tile(which, t):
            m0, lds = self.dma_tile(which, t, static=True)
            return [m0, I(f"s_mov_b32 s{S_G if which == 'K' else S_GV}, {t*16384}")] + lds
        mksrd(SQ, 4, S_T1, 65536)
        self.emit(qgrp(0)); self.emit(qgrp(1))
        mksrd(SK, 6, S_T0, 262144); mksrd(SV, 8, S_T0, 262144); mksrd(SO, 10, S_T1, 65536)
        if a.stamp:
            e(f"s_mov_b32 s{SWS+2}, 0x1000000"); e(f"s_mov_b32 s{SWS+3}, 0x20000")
            e(f"s_lshl_b32 s{S_WSO}, s2, 2"); e(f"s_add_u32 s{S_WSO}, s{S_WSO}, s{S_W}"); e(f"s_lshl_b32 s{S_WSO}, s{S_WSO}, 9")
            e(f"v_accvgpr_write_b32 a{ST0}, 0"); e(f"v_accvgpr_write_b32 a{ST1}, 0"); e(f"s_mov_b32 s{S_SI}, 2")
            e("s_mov_b64 exec, 1"); e(f"v_accvgpr_write_b32 a{ST0}, s48"); e(f"v_accvgpr_write_b32 a{ST1}, s50")
            e("s_mov_b64 exec, 2"); e(f"v_accvgpr_write_b32 a{ST0}, s52"); e(f"v_accvgpr_write_b32 a{ST1}, s54")
            e("s_mov_b64 exec, -1")
            self.emit(self.stamp())
        e(f"v_lshl_add_u32 v{KA(0)}, v{vt}, 8, v{vu}")
        for ds in range(1, 4): e(f"v_xor_b32 v{KA(ds)}, {ds<<6:#x}, v{KA(0)}")
        e(f"v_lshrrev_b32 v{vu}, 2, v{vl}", "key = lane>>2")
        e(f"v_lshlrev_b32 v{VA(0)}, 8, v{vu}")
        e(f"v_and_b32 v{vu}, 7, v{vu}")
        e(f"v_lshl_add_u32 v{VA(0)}, v{vu}, 4, v{VA(0)}")
        e(f"v_and_b32 v{vu}, 2, v{vl}")
        e(f"v_lshlrev_b32 v{RA}, 6, v{vu}")
        e(f"v_and_b32 v{vu}, 1, v{vl}")
        e(f"v_lshl_add_u32 v{RA}, v{vu}, 3, v{RA}", "128*(c>>1) + 8*(c&1)")
        e(f"v_add3_u32 v{VA(0)}, v{VA(0)}, v{RA}, 0x10000".replace(", 0x10000", f", s{S_C}"))
        self.out.insert(len(self.out) - 1, I(f"s_mov_b32 s{S_C}, 0x10000"))
        for db in range(1, 8): e(f"v_xor_b32 v{VA(db)}, {db<<4:#x}, v{VA(0)}")
        e(f"v_mul_u32_u24 v{BPA}, 80, v{vg}")
        e(f"v_lshlrev_b32 v{VO}, 4, v{vl}")
        e(f"v_lshlrev_b32 v{WA0}, 4, v{vt}")
        e(f"v_lshl_add_u32 v{WA0}, v{vg}, 10, v{WA0}")
        e(f"v_add_u32 v{WA0}, s{S_KW}, v{WA0}")
        e(f"v_xor_b32 v{WA1}, 64, v{WA0}")
        e(f"v_lshl_add_u32 v{RA}, v{vg}, 8, v{RA}")
        e(f"v_and_b32 v{vu}, 1, v{vg}")
        e(f"v_lshl_add_u32 v{RA}, v{vu}, 6, v{RA}")
        e(f"v_bfe_u32 v{vu}, v{vl}, 2, 2")
        e(f"v_lshl_add_u32 v{RA}, v{vu}, 4, v{RA}")
        e(f"v_add_u32 v{RA}, s{S_KW}, v{RA}")
        QA = X(3)
        for ds in range(4): e(f"v_add_u32 v{QA+ds}, s{S_QL}, v{KA(ds)}")
        e(f"s_mov_b32 s{S_C}, {f2u(CSC):#x}"); e(f"s_mov_b32 s{S_C+1}, {f2u(CSC):#x}")
        for q in range(4): e(f"v_mov_b32 v{L(q)}, 0")
        e(f"v_mov_b32 v{vu}, 0x3f803f80")
        for i in range(4): e(f"v_accvgpr_write_b32 a{ONES+i}, v{vu}")
        for i in range(128): e(f"v_mov_b32 v{i}, 0")
        e(f"s_mov_b32 s{S_PB}, s{S_KW}"); e(f"s_add_u32 s{S_PB2}, s{S_KW}, 0x8000")
        e(f"s_mov_b32 s{S_CNT}, 8")
        e(f"s_lshl_b32 s{S_T0}, s{S_W}, 14"); e(f"s_add_u32 s{S_T1}, s{S_T0}, 4096")
        RAW, TMP, SX = SB(1, 0), SB(1, 2), SB(1, 3)
        def qproc(q, early=(), fuse=False):
            e(f"s_waitcnt vmcnt({self.vm_needed([f'Q{q}'])})")
            for ds in range(4): e(f"ds_read_b128 {vr(RAW+4*ds,4)}, v{QA+ds} offset:{q*4096}")
            self.emit(early)
            mf = lambda ds: [I(f"{MF} {vr(SX+4*kb,4)}, {ar(KF(kb,ds),4)}, {vr(RAW+4*ds,4)}, {vr(SX+4*kb,4) if ds else 0}") for kb in range(2)]
            for ds in range(4):
                e(f"s_waitcnt lgkmcnt({3-ds})")
                for k in range(4):
                    e(f"v_lshlrev_b32 v{TMP+2*k}, 16, v{RAW+4*ds+k}")
                    e(f"v_and_b32 v{TMP+2*k+1}, 0xffff0000, v{RAW+4*ds+k}")
                    if fuse and ds and k in (0, 2): self.emit([mf(ds - 1)[k // 2]])
                for k in range(4): e(f"v_pk_mul_f32 {vr(TMP+2*k,2)}, {vr(TMP+2*k,2)}, s[{S_C}:{S_C+1}]")
                for k in range(4): e(f"v_cvt_pk_bf16_f32 v{RAW+4*ds+k}, v{TMP+2*k}, v{TMP+2*k+1}")
                if not fuse:
                    for k in range(4): e(f"v_accvgpr_write_b32 a{Q(q,ds)+k}, v{RAW+4*ds+k}")
            if fuse:
                w = [I(f"v_accvgpr_write_b32 a{Q(q,0)+k}, v{RAW+k}") for k in range(16)]
                m = mf(3)
                self.emit(w[:2] + [m[0]] + w[2:4] + [m[1]] + w[4:])
                self.emit(self.rowmax([(SX, 8, T, T + 1)]))
                for i in range(4): e(f"v_sub_f32 v{NEGM(q)+i}, 0, v{T}")
        queue = [tile("K", 0), qgrp(2), qgrp(3), tile("V", 0), tile("K", 1), tile("K", 2), tile("V", 1)]
        flat = []
        for grp in queue:
            lds = [x for x in grp if x.is_vmem]; hd = [x for x in grp if not x.is_vmem]
            for n, x in enumerate(lds): flat.append((hd if n == 0 else []) + [x])
        def take(n):
            r = []
            for _ in range(n):
                if flat: r += flat.pop(0)
            return r
        lt = a.late
        self.emit(take(a.ahead))
        self.emit(self.stamp())
        qproc(0, take(4 - lt)); self.emit(take(lt))
        qproc(1, take(4 - lt)); self.emit(take(lt))
        self.emit(self.stamp())
        e(f"s_waitcnt vmcnt({self.vm_needed(['K0'])})")
        self.emit(take(4 - lt))
        e("s_barrier")
        o, _ = self.insert_waits(self.k_reads(0) + self.qk_mfmas(0, zero_c=True), [])
        self.emit(o)
        e("s_nop 7")
        self.emit(self.rowmax([(SB(0, 0), 16, T, T + 1), (SB(0, 2), 16, T + 2, T + 7)]))
        for q, tm in ((0, T), (1, T + 2)):
            for i in range(4): e(f"v_sub_f32 v{NEGM(q)+i}, 0, v{tm}")
            for i in range(16): e(f"v_sub_f32 v{SB(0,2*q)+i}, v{SB(0,2*q)+i}, v{tm}")
        first, rest = self.split_stream(0, a.split)
        n1 = next(i for i, x in enumerate(first) if isinstance(x, I) and x.text.startswith(f"v_exp_f32 v{SB(0,0)+a.pexp},"))
        self.emit(self.flat_stream(first[:n1]))
        self.emit(take(lt))
        self.emit(self.stamp())
        qproc(2, take(4 - lt), fuse=True)
        self.emit(self.flat_stream(first[n1:]))
        self.emit(take(lt))
        self.emit(self.stamp())
        qproc(3, take(a.q3n), fuse=True)
        e(f"s_waitcnt vmcnt({self.vm_needed(['V0'])})")
        self.emit(take(99))
        e("s_barrier", "V0 visible; Q staging slots free")
        self.emit(self.v_reads(0)[:len(a.vb_plan)])
        self.emit(self.stamp())
        self.first = [I("L_first:"), I(f"s_waitcnt vmcnt({self.vm_needed(['K1'])})"), I("s_barrier")] + tile("K", 3) + [I("s_branch L_first_ret")]
        return rest

    def body(self, rest):
        e, a = self.e, self.a
        txt = lambda r: [x if isinstance(x, tuple) else x.text for x in r]
        rest0 = txt(rest)
        seq = []
        plan = lambda items, gs, slack, lo=None: [Item(x, (g if lo is None else min(g, max(lo(i), g - a.bearly))), g + slack) for i, (x, g) in enumerate(zip(items, gs))]
        for u in range(4):
            t, h = u // 2, u % 2
            exA, exB = [], []
            nvb, nva, nkb = len(a.vb_plan), len(a.va_plan), len(a.kb_plan)
            if h == 0:
                exA += plan(self.v_reads(t)[nvb:nvb + nva], a.va_plan, 1)
                exB += plan(self.v_reads(t)[nvb + nva:] + self.k_reads(t + 1)[:nkb], a.vc_plan + a.kb_plan, 0, lambda i: 1)
                exB += self.dma_items("V", t + 2, a.dv_plan, [I(f"s_xor_b32 s{S_PB2}, s{S_PB2}, 0x8000")] if u == 2 else [])
            else:
                exA += plan(self.k_reads(t + 1)[nkb:], a.ka_plan, 2)
                exB += [Item(I("s_waitcnt vmcnt(8)"), 0, 0), Item(I("s_barrier"), 1, 1)]
                exB += plan(self.v_reads(t + 1)[:nvb], a.vb_plan, 0, lambda i: 4 * (i // 4) + 6)
                exB += self.dma_items("K", t + 4, a.dk_plan, [I(f"s_xor_b32 s{S_PB}, s{S_PB}, 0x8000")] if u == 3 else [])
            if u == 1: exA += [Item(I(f"v_xor_b32 v{KA(ds)}, 0x8000, v{KA(ds)}"), a.ka_plan[-1] + 3, 31) for ds in range(4)]
            if u == 3: exA += [Item(I(f"v_xor_b32 v{VA(db)}, 0x8000, v{VA(db)}"), 2, 31) for db in range(8)]
            if u == 0:
                exA.append(Item(I(f"s_cmp_eq_u32 s{S_CNT}, 8"), a.first_gap - 1, a.first_gap - 1))
                exA.append(Item([I("s_cbranch_scc1 L_first"), I("L_first_ret:")], a.first_gap, a.first_gap))
            if u == 1:
                exA.append(Item(I(f"s_sub_u32 s{S_CNT}, s{S_CNT}, 1"), 4, 27))
                exA.append(Item(I(f"s_cmp_eq_u32 s{S_CNT}, 0"), 28, 31))
            label = f"L_slow_{u}"
            fin = [I(f"s_cbranch_vccnz {label}"), I(f"{label}_ret:")]
            first, nrest = self.split_stream(1 - h, a.split if h else a.split_odd)
            seq += self.schedule(self.qk_mfmas(u + 1), rest, exA, tail=self.check_ins(h), fin=fin, nxt_stream=first)
            sp = self.slow_path(u, label, x_cur=(u in (1, 3)), x_next=(u == 1))
            self.slow += sp
            if u == 1:
                seq.append(I("s_cbranch_scc1 L_tail"))
                rest_tail = [clone(x) for x in first + nrest]
            for i in range(2): exB.append(Item(I(f"v_add_f32 v{L(2*h+i)}, v{L(2*h+i)}, v{X(2*h+i)}"), 0, 31))
            seq += self.schedule(self.pv_mfmas(u), first, exB)
            rest = nrest
            if a.stamp and a.stamp_every and u % a.stamp_every == a.stamp_every - 1:
                seq += self.stamp()
        seq.append(I("s_branch L_loop"))
        assert txt(rest) == rest0
        _, pend = self.insert_waits(seq, [])
        seq2, pend2 = self.insert_waits(seq, pend)
        assert pend == pend2
        e(".p2align 6")
        e("L_loop:")
        n0 = len(self.out)
        self.emit(seq2)
        n1 = len(self.out)
        n_exit = next(i for i in range(n0, n1) if "L_tail" in self.out[i].text) + 1
        e("L_tail:")
        _, pend_exit = self.insert_waits(self.out[n0:n_exit], pend)
        o, _ = self.insert_waits(self.tail(rest_tail), pend_exit)
        self.emit(o)
        self.check_seq = lambda: self.out[:n1] + self.out[n0:n_exit] + self.out[n1:]
        self.loop_range, self.n_exit, self.tail_range = (n0, n1), n_exit, (n1, len(self.out))

    def tail(self, rest):
        a = self.a
        cut = [0] + a.st_cut
        o = self.stamp() if not a.stamp_every else []
        cmp1 = lambda q: I(f"v_cmp_lt_f32 vcc, {THR:#x}, v{X(q)}")
        s0 = [x for _, x in self.sm_stream(0, (0,))][1:]
        fl = self.flat_stream(s0)
        vr15 = self.v_reads(1, alt=True)
        o += fl[:a.z1_pre] + [I("s_waitcnt vmcnt(0)", "V15 landed; own out-of-range DMA writes too"), I("s_barrier")]
        fl = fl[a.z1_pre:]
        step = max(1, len(fl) // 3)
        o += vr15[:8] + fl[:step] + vr15[8:16] + fl[step:2 * step] + vr15[16:24] + fl[2 * step:] + vr15[24:]
        self.slow += self.slow_path(2, "L_slow_z0", False, False, reread=False, qls=(0,))
        o += [cmp1(0)] + [I(f"v_add_f32 v{L(2+i)}, v{L(2+i)}, v{X(2+i)}") for i in range(2)] + [I(f"v_xor_b32 v{KD(0)}, 64, v{RA}"), I("s_nop 1")]
        o += [I("s_cbranch_vccnz L_slow_z0"), I("L_slow_z0_ret:")]
        if a.tstamp: o += self.stamp()
        pv = self.pv_mfmas(2, qmajor=True, alt=True)
        lf0 = [x for x in self.l_finish((0,)) if x.op != "s_nop"]
        lf1 = [x for x in self.l_finish((1,)) if x.op != "s_nop"]
        ex = [Item(I(f"v_add_f32 v{L(0)}, v{L(0)}, v{X(0)}"), 0, 1), Item(lf0[0], 3, 3)] + [Item(x, 5 + 2 * i, 6 + 3 * i) for i, x in enumerate(lf0[1:])]
        self.slow += self.slow_path(2, "L_slow_z1", False, False, reread=False, qls=(1,))
        o += self.schedule(pv[:16], [x for _, x in self.sm_stream(0, (1,))], ex)
        pk0 = self.epi_pack(0)
        o += pk0[:8] + [cmp1(1)] + pk0[8:16] + [I("s_cbranch_vccnz L_slow_z1"), I("L_slow_z1_ret:")]
        if a.tstamp: o += self.stamp()
        st0, st1 = self.epi_store(0), self.epi_store(1)
        V = [I(f"v_add_f32 v{L(1)}, v{L(1)}, v{X(1)}")] + [x for x in pk0[16:] if not x.is_ds]
        D = [(5 + 4 * i, 0, x) for i, x in enumerate(y for y in pk0[16:] if y.is_ds)] + [(17, 0, x) for x in self.epi_read(0)]
        z = self.schedule_vd(pv[16:], V, D)
        o += z + V + [lf1[0]] + [x[2] for x in D] + lf1[1:]
        o += self.stamp()
        V, D = [], []
        for x in self.epi_pack_bg(1):
            if x.is_ds: D.append((len(V), 0, x))
            else: V.append(x)
        for j, (at, dl) in enumerate(a.st0_plan): D.insert(at + j, (0, dl, st0[j]))
        D += [(len(V), 0, x) for x in self.epi_read(1)]
        m3 = self.pv_mfmas(1)
        for m in m3: m.need = (m.need[0], ("V", 0) + m.need[1][2:])
        o += self.schedule_vd(m3, V, D)
        assert not V
        if a.tstamp: o += self.stamp()
        mq = self.qk_mfmas(3, qmajor=True)
        k0 = a.z4_k0
        D += [(0, dl, x) for x, dl in zip(st1, a.st1_pos)]
        o += self.schedule_vd(mq[:k0], [], D)
        ex = [Item(x[2], 1 + 4 * i, 1 + 4 * i) for i, x in enumerate(D)]
        s2 = [x for _, x in self.sm_stream(1, (0,))]
        s3 = [x for _, x in self.sm_stream(1, (1,))]
        self.slow += self.slow_path(3, "L_slow_z4", False, False, reread=False, qls=(0,))
        self.slow += self.slow_path(3, "L_slow_z5", False, False, reread=False, qls=(1,))
        o += self.schedule(mq[k0:], s2, ex)
        n3 = a.z5_pre
        o += self.flat_stream(s3[:n3]) + [cmp1(2)] + self.flat_stream(s3[n3:n3 + 3]) + [I("s_cbranch_vccnz L_slow_z4"), I("L_slow_z4_ret:")]
        if a.tstamp: o += self.stamp()
        pv = self.pv_mfmas(3, qmajor=True, alt=True)
        lf2 = [x for x in self.l_finish((2,)) if x.op != "s_nop"]
        lf3 = [x for x in self.l_finish((3,)) if x.op != "s_nop"]
        ex = [Item(I(f"v_add_f32 v{L(2)}, v{L(2)}, v{X(2)}"), 0, 1), Item(lf2[0], 3, 3)] + [Item(x, 5 + 2 * i, 6 + 2 * i) for i, x in enumerate(lf2[1:])]
        ex += [Item(I(f"s_add_u32 s{S_T0}, s{S_T0}, 8192"), 2, 2), Item(I(f"s_add_u32 s{S_T1}, s{S_T1}, 8192"), 4, 4)]
        o += self.schedule(pv[:16], s3[n3 + 3:], ex)
        pk2 = self.epi_pack(2)
        o += [I(f"v_add_u32 v{x}, 0x10000, v{x}") for x in (WA0, WA1, RA, KD(0))]
        o += pk2[:4] + [cmp1(3)] + pk2[4:16] + [I("s_cbranch_vccnz L_slow_z5"), I("L_slow_z5_ret:")]
        if a.tstamp: o += self.stamp()
        V = [I(f"v_add_f32 v{L(3)}, v{L(3)}, v{X(3)}"), lf3[0]] + [x for x in pk2[16:] if not x.is_ds]
        D = [(3, 0, x) for x in lf3[1:]] + [(6 + 4 * i, 0, x) for i, x in enumerate(y for y in pk2[16:] if y.is_ds)] + [(18, 0, x) for x in self.epi_read(2)]
        o += self.schedule_vd(pv[16:], V, D)
        assert not V
        o += [x[2] for x in D] + self.stamp()
        p3, st2 = self.epi_pack(3), self.epi_store(2)
        for j in range(4): o += p3[cut[j]:cut[j + 1]] + [st2[j]]
        o += self.epi_read(3) + self.epi_store(3)
        return o

    def finish(self):
        e, a = self.e, self.a
        self.emit(self.stamp())
        if a.stamp:
            e("s_waitcnt vmcnt(0)")
            self.emit(self.stamp())
            e(f"v_mbcnt_lo_u32_b32 v0, -1, 0"); e(f"v_mbcnt_hi_u32_b32 v0, -1, v0"); e("v_lshlrev_b32 v0, 2, v0")
            e(f"buffer_store_dword a{ST0}, v0, {srd(SWS)}, s{S_WSO} offen")
            e(f"buffer_store_dword a{ST1}, v0, {srd(SWS)}, s{S_WSO} offen offset:256")
        e("L_end:")
        e("s_endpgm")

    def verify_tags(self):
        n0, n1 = self.loop_range
        tags, bad = {}, []
        def run(ins, off):
            for x in ins:
                if hasattr(x, "need"):
                    r, tg = x.need
                    want = (tg[0], tg[1] + off) + tg[2:]
                    if tags.get(r) != want: bad.append(f"tag: {x} wants {want} has {tags.get(r)}")
                for r, tg in getattr(x, "tag", []):
                    tags[r] = tg if len(tg) == 1 else (tg[0], tg[1] + off) + tg[2:]
        run(self.out[:n0], 0)
        for it in range(7): run(self.out[n0:n1], 2 * it)
        run(self.out[n0:self.n_exit], 14)
        run(self.out[n1:], 14)
        return bad

    def build(self):
        rest = self.prologue()
        self.body(rest)
        probs = self.verify_tags()
        if self.a.drop:
            pats = self.a.drop.split(",")
            l0, l1 = self.loop_range
            keep = lambda i: not any(i.text.startswith(p.replace("~", " ")) for p in pats)
            self.out = self.out[:l0] + [i for i in self.out[l0:l1] if keep(i)] + self.out[l1:]
        self.finish()
        if getattr(self, "nocheck", False): return "", probs
        if not self.a.drop:
            probs += check(self.check_seq(), "main", verbose=False)
        probs += check(self.slow, "slow", verbose=False)
        hdr = open("standalone__gqa_softmax__near_ridge.s.ref").read().split("; Override")[0]
        txt = hdr + "; @launch grid=(256,1,1) block=(256,1,1) lds=163840\n" + DOC
        txt += '.amdgcn_target "amdgcn-amd-amdhsa--gfx950"\n.text\n'
        txt += f".globl {KNAME}\n.p2align 8\n.type {KNAME},@function\n{KNAME}:\n"
        txt += "\n".join(str(i) for i in self.out) + "\n"
        txt += "\n".join(str(i) for i in self.first + self.slow) + "\n"
        txt += f""".section .rodata,"a"
.p2align 6
.amdhsa_kernel {KNAME}
  .amdhsa_next_free_vgpr {256 + NAGPR}
  .amdhsa_next_free_sgpr 64
  .amdhsa_accum_offset 256
  .amdhsa_group_segment_fixed_size 0
  .amdhsa_kernarg_size 48
  .amdhsa_user_sgpr_count 2
  .amdhsa_user_sgpr_kernarg_segment_ptr 1
  .amdhsa_system_sgpr_workgroup_id_x 1
.end_amdhsa_kernel
"""
        return txt, probs

    def gap_report(self, rng=None):
        n0, n1 = rng or self.loop_range
        gaps = []; cur = None
        for i in self.out[n0:n1]:
            if i.is_label: continue
            if i.is_mfma:
                if cur is not None: gaps.append(cur)
                cur = ""
            elif cur is not None:
                cur += "E" if i.is_trans else ("v" if i.is_valu else ("d" if i.is_ds else ("M" if i.is_vmem else "s")))
        gaps.append(cur)
        def t(gp):
            tm = 4; prev = "m"
            for c in gp:
                if c == "s": tm += 4
                else:
                    tm = max(tm, 8)
                    if c in "dM" and prev in "vE": tm += 4
                    if c in "vE" and prev == "M": tm += 4
                    tm += 8 if c == "E" else 4
                prev = c
            if prev in "dM": tm += 4
            return max(16, tm)
        return gaps, sum(map(t, gaps))


def get_args(argv=None):
    p = argparse.ArgumentParser()
    p.add_argument("-o", default="k5.s")
    p.add_argument("--stamp", action="store_true")
    p.add_argument("--stamp_every", type=int, default=4)
    p.add_argument("--split", type=int, default=18)
    p.add_argument("--split_odd", type=int, default=17)
    p.add_argument("--bearly", type=int, default=4)
    p.add_argument("--va_plan", default="2,5,8,11,14,17,20,21,22,23,24,25,26,27,28,29,30,31")
    p.add_argument("--vc_plan", default="6,7,9")
    p.add_argument("--kb_plan", default="11,14,16,18,20,22,24,25,29")
    p.add_argument("--ka_plan", default="1,4,7,10,12,15,18")
    p.add_argument("--vb_plan", default="9,12,14,15,17,20,22,25,27,28,30")
    p.add_argument("--dv_plan", default="5,12,17,23")
    p.add_argument("--dk_plan", default="5,12,21,29")
    p.add_argument("--first_gap", type=int, default=28)
    p.add_argument("--ahead", type=int, default=6)
    p.add_argument("--late", type=int, default=2)
    p.add_argument("--q3n", type=int, default=2)
    p.add_argument("--pexp", type=int, default=8)
    p.add_argument("--nflat", type=int, default=12)
    p.add_argument("--st_cut", default="8,18,27,36")
    p.add_argument("--st_gaps", default="4,14,19,24")
    p.add_argument("--drop", default="")
    p.add_argument("--z5_pre", type=int, default=8)
    p.add_argument("--st0", default="0:2,0:3,0:3,1:3")
    p.add_argument("--omod2", default=None)
    p.add_argument("--tstamp", type=int, default=0)
    p.add_argument("--z1_pre", type=int, default=6)
    p.add_argument("--st0_pos", default="8,16,24,32")
    p.add_argument("--st1_pos", default="3,3,3,3")
    p.add_argument("--z4_k0", type=int, default=10)
    p.add_argument("--kvmod", default="nt")
    p.add_argument("--qmod", default="nt")
    p.add_argument("--omod", default="sc1")
    a = p.parse_args(argv)
    for k in ("va_plan", "vc_plan", "kb_plan", "ka_plan", "vb_plan", "dv_plan", "dk_plan", "st_cut", "st_gaps", "st0_pos", "st1_pos"):
        setattr(a, k, [int(x) for x in getattr(a, k).split(",")])
    a.st0_plan = [tuple(int(y) for y in x.split(":")) for x in a.st0.split(",")]
    assert len(a.va_plan) + len(a.vb_plan) + len(a.vc_plan) == 32 and len(a.ka_plan) + len(a.kb_plan) == 16
    return a


if __name__ == "__main__":
    a = get_args()
    g = Gen(a)
    txt, probs = g.build()
    open(a.o, "w").write(txt)
    for p in probs: print(p)
    gaps, est = g.gap_report()
    print("gaps:", " ".join(x or "-" for x in gaps))
    tg, test = g.gap_report(g.tail_range)
    print("tail:", " ".join(x or "-" for x in tg), test)
    print(f"wrote {a.o}: {len(g.out)} main insts, {len(g.slow)} slow insts, {len(probs)} problems; est cycles/unit {est/4:.0f}")
```
